```python
import torch

def _softmax(x, axis=-1):
    return torch.softmax(x, dim=axis)
def _gelu(x):
    return torch.nn.functional.gelu(x, approximate="tanh")
def _silu(x):
    return torch.nn.functional.silu(x)
def _sigmoid(x):
    return torch.sigmoid(x)
def _layernorm(x, axis=-1, eps=1e-5):
    m = x.mean(dim=axis, keepdim=True)
    v = x.var(dim=axis, keepdim=True, unbiased=False)
    return (x - m) / torch.sqrt(v + eps)
def _scatter_add(tgt, idx, src, axis=0):
    return tgt.clone().index_add_(axis, idx, src)
def _segment_sum(src, seg, n):
    out = torch.zeros((n,) + src.shape[1:], dtype=src.dtype)
    return out.index_add_(0, seg, src)
def _pad(x, pw):
    flat = tuple(v for pair in reversed(pw) for v in pair)
    return torch.nn.functional.pad(x, flat)

kernel_name = 'sequential_preLN__sliding_block__swiglu_ffn__prompt'

def setup_inputs():

    _w = (lambda a: (lambda t: t.to(torch.bfloat16) if t.is_floating_point() else t)(torch.as_tensor(a)))
    def _A_setup():
        B, S, D = 1, 2048, 448
        return {
            "x": _w((lambda *s: torch.randn(*s, dtype=torch.bfloat16) * 0.05)(B, S, D)),
            "wqkv": _w((lambda *s: torch.randn(*s, dtype=torch.bfloat16) * 0.05)(D, 3 * D)),
            "wo": _w((lambda *s: torch.randn(*s, dtype=torch.bfloat16) * 0.05)(D, D)),
        }
    _A_in = _A_setup()

    def _B_setup():
        B, S, D, F = 1, 2048, 448, 1792
        return {
            "x": _w((lambda *s: torch.randn(*s, dtype=torch.bfloat16) * 0.05)(B, S, D)),
            "w_gate": _w((lambda *s: torch.randn(*s, dtype=torch.bfloat16) * 0.05)(D, F)),
            "w_up": _w((lambda *s: torch.randn(*s, dtype=torch.bfloat16) * 0.05)(D, F)),
            "w_down": _w((lambda *s: torch.randn(*s, dtype=torch.bfloat16) * 0.05)(F, D)),
        }
    _B_in = _B_setup()

    return {
        "A_x": _A_in["x"],
        "A_wqkv": _A_in["wqkv"],
        "A_wo": _A_in["wo"],
        "B_x": _B_in["x"],
        "B_w_gate": _B_in["w_gate"],
        "B_w_up": _B_in["w_up"],
        "B_w_down": _B_in["w_down"],
    }

def reference(A_x, A_wqkv, A_wo, B_x, B_w_gate, B_w_up, B_w_down):
    def _A_ref(x, wqkv, wo):
        B, S, D = x.shape
        H = 16; Dh = D // H; W = 256
        qkv = (lambda x, *d: x.permute(*d))((x @ wqkv).reshape(B, S, 3, H, Dh), 2, 0, 3, 1, 4)
        q, k, v = qkv[0], qkv[1], qkv[2]
        scores = torch.einsum("bhqd,bhkd->bhqk", q, k) * (Dh ** -0.5)
        idx = torch.arange(S)
        mask = (idx[:, None] - idx[None, :] >= 0) & (idx[:, None] - idx[None, :] < W)
        scores = torch.where(mask[None, None], scores, -1e9)
        p = _softmax(scores, axis=-1)
        o = torch.einsum("bhqk,bhkd->bhqd", p, v)
        return (lambda x, *d: x.permute(*d))(o, 0, 2, 1, 3).reshape(B, S, D) @ wo

    def _B_ref(x, w_gate, w_up, w_down):
        g = _silu(x @ w_gate)
        u = x @ w_up
        return (g * u) @ w_down

    x = A_x
    h = x + _A_ref(_layernorm(x, axis=-1), A_wqkv, A_wo)
    h2 = h + _B_ref(_layernorm(h, axis=-1), B_w_gate, B_w_up, B_w_down)
    return h2
```

```python
import math, struct
S=2048; D=448; F=1792; NQKV=1344; H=16; DH=28; WIN=256
KA_X=0; KA_WQKV=8; KA_WO=16; KA_BX=24; KA_WG=32; KA_WU=40; KA_WD=48; KA_OUT=56; KA_DBG=64; KA_WS=72
WS_QKV=0x000000; SZ_QKV=S*NQKV*2
WS_O  =0x600000; SZ_O=S*D*2
WS_H  =0x800000; SZ_H=S*D*2
WS_ACT=0xA00000; SZ_ACT=S*F*2
WS_CS =0x1200000; SZ_CS=2*F*4
WS_ST =0x1210000; SZ_ST=14*2*S*4
LOG2E=1.4426950408889634

def f32bits(x): return struct.unpack("<I",struct.pack("<f",x))[0]

class Asm:
    def __init__(s): s.L=[]
    def __call__(s,t):
        for l in t.split("\n"):
            l=l.strip()
            if l: s.L.append("    "+l)
    def label(s,l): s.L.append(l+":")
    def c(s,t): s.L.append("    ; "+t)
    def text(s): return "\n".join(s.L)

def kstart(a,name):
    a.L.append(f".globl {name}\n.p2align 8\n.type {name},@function\n{name}:")

def srd(a, d, lo, hi, size, off=0):
    if off:
        a(f"s_add_u32 s{d}, s{lo}, {off}")
        a(f"s_addc_u32 s{d+1}, s{hi}, 0")
    else:
        a(f"s_mov_b32 s{d}, s{lo}")
        a(f"s_mov_b32 s{d+1}, s{hi}")
    a(f"s_and_b32 s{d+1}, s{d+1}, 0xffff")
    a(f"s_mov_b32 s{d+2}, {size}")
    a(f"s_mov_b32 s{d+3}, 0x00020000")

def kdesc(name, vgpr, sgpr=102, accum=None):
    if accum is None: accum=(vgpr+3)//4*4
    return f""".p2align 6
.amdhsa_kernel {name}
  .amdhsa_next_free_vgpr {vgpr}
  .amdhsa_next_free_sgpr {sgpr}
  .amdhsa_accum_offset {accum}
  .amdhsa_group_segment_fixed_size 0
  .amdhsa_kernarg_size 80
  .amdhsa_user_sgpr_count 2
  .amdhsa_user_sgpr_kernarg_segment_ptr 1
  .amdhsa_system_sgpr_workgroup_id_x 1
  .amdhsa_float_denorm_mode_32 3
  .amdhsa_float_denorm_mode_16_64 3
.end_amdhsa_kernel"""

def sdiv(a, q, r, n, d, tmp):
    magic=-(-(1<<32)//d)
    a(f"s_mul_hi_u32 s{q}, s{n}, {magic}")
    a(f"s_mul_i32 s{tmp}, s{q}, {d}")
    a(f"s_sub_u32 s{r}, s{n}, s{tmp}")

def v(r,n=1):
    return f"v{r}" if n==1 else f"v[{r}:{r+n-1}]"
```

```python
from common import *
K1_NWG=252; K1_THREADS=768
XB=0; WB=57344; WSLOT=24576
K1_LDS=WB+4*WSLOT
def gen_k1(name="k1_kernel"):
    a=Asm(); kstart(a,name)
    a(f"s_cmp_ge_u32 s2, {K1_NWG}")
    a(f"s_cbranch_scc1 L_{name}_end")
    a(f"s_load_dwordx4 s[4:7], s[0:1], {KA_X}")
    a(f"s_load_dwordx2 s[8:9], s[0:1], {KA_WS}")
    a(f"s_load_dwordx4 s[12:15], s[0:1], {KA_WG}")
    a("v_and_b32 v1, 63, v0")
    a("v_lshrrev_b32 v2, 6, v0")
    a("s_nop 0")
    a("v_readfirstlane_b32 s28, v2")
    a("s_cmp_ge_u32 s2, 224")
    a(f"s_cbranch_scc1 L_{name}_cs")
    a("s_and_b32 s31, s2, 7")
    a("s_lshr_b32 s32, s2, 3")
    sdiv(a,33,30,32,7,34)
    a("s_lshl_b32 s29, s31, 2")
    a("s_add_u32 s29, s29, s33")
    a("s_and_b32 s35, s28, 1")
    a("s_lshr_b32 s36, s28, 1")
    a("v_and_b32 v3, 31, v1")
    a("s_lshl_b32 s37, s35, 5")
    a("v_add_u32 v3, s37, v3")
    a("v_lshrrev_b32 v4, 5, v1")
    a("v_bfe_u32 v5, v3, 1, 3")
    a("v_xor_b32 v5, v5, v4")
    a("v_lshlrev_b32 v5, 4, v5")
    a("v_lshl_add_u32 v10, v3, 7, v5")
    for s_ in range(1,4):
        a(f"v_xor_b32 v{10+s_}, {32*s_}, v10")
    a("v_bfe_u32 v5, v1, 2, 2")
    a("v_lshl_add_u32 v6, v4, 3, v5")
    a("v_mul_u32_u24 v6, 384, v6")
    a("v_lshrrev_b32 v7, 1, v5")
    a("v_xor_b32 v7, s36, v7")
    a("v_lshl_add_u32 v6, v7, 6, v6")
    a("v_bfe_u32 v7, v1, 4, 1")
    a("v_lshl_add_u32 v6, v7, 5, v6")
    a("v_and_b32 v7, 1, v1")
    a("v_lshl_add_u32 v6, v7, 4, v6")
    a("v_bfe_u32 v7, v1, 1, 1")
    a("v_lshl_add_u32 v6, v7, 3, v6")
    a(f"v_add_u32 v14, {WB}, v6")
    a(f"v_add_u32 v15, {WB+2*WSLOT}, v6")
    for u in range(3):
        a(f"v_add_u32 v5, {64*u}, v1")
        a("v_mul_u32_u24 v6, 2731, v5")
        a("v_lshrrev_b32 v6, 16, v6")
        a("v_mul_u32_u24 v7, 24, v6")
        a("v_sub_u32 v7, v5, v7")
        a("v_lshrrev_b32 v8, 2, v7")
        a("v_bfe_u32 v9, v6, 1, 1")
        a("v_xor_b32 v8, v8, v9")
        a("v_and_b32 v7, 3, v7")
        a("v_lshlrev_b32 v7, 4, v7")
        a("v_lshl_add_u32 v7, v8, 6, v7")
        a("v_mul_u32_u24 v6, 2688, v6")
        a(f"v_add_u32 v{16+u}, v6, v7")
    a("s_waitcnt lgkmcnt(0)")
    srd(a,16,4,5,S*D*2)
    srd(a,20,6,7,D*NQKV*2)
    srd(a,24,8,9,SZ_QKV,WS_QKV)
    a("s_sub_u32 s38, s28, 8")
    a(f"s_mul_i32 s39, s38, {16*2688}")
    a("s_mul_i32 s40, s30, 384")
    a("s_add_u32 s39, s39, s40")
    a(f"s_mul_i32 s41, s38, {6*1024}")
    a(f"s_add_u32 s41, s41, {WB}")
    a("s_cmp_ge_u32 s28, 8")
    a(f"s_cbranch_scc1 L_{name}_roleB")
    a("v_lshrrev_b32 v5, 3, v1")
    a("s_lshl_b32 s37, s28, 3")
    a("v_add_u32 v5, s37, v5")
    a("v_mul_u32_u24 v6, 896, v5")
    a("v_and_b32 v7, 7, v1")
    a("v_lshl_add_u32 v6, v7, 4, v6")
    a(f"s_mul_i32 s37, s29, {64*896}")
    XR=32
    for i in range(7):
        a(f"buffer_load_dwordx4 {v(XR+4*i,4)}, v6, s[16:19], s37 offen offset:{128*i}")
    a("v_bfe_u32 v8, v5, 1, 3")
    a("v_xor_b32 v8, v8, v7")
    a("v_lshlrev_b32 v8, 4, v8")
    a("v_lshl_add_u32 v8, v5, 7, v8")
    FR=64
    a("v_mov_b32 v20, 0\nv_mov_b32 v21, 0\nv_mov_b32 v22, 0\nv_mov_b32 v23, 0")
    a("v_mov_b32 v24, 0\nv_mov_b32 v25, 0\nv_mov_b32 v26, 0\nv_mov_b32 v27, 0")
    for i in range(7):
        a(f"s_waitcnt vmcnt({6-i})")
        for d_ in range(4):
            dd=4*i+d_
            a(f"v_lshlrev_b32 v{FR+2*dd}, 16, v{XR+dd}")
            a(f"v_and_b32 v{FR+2*dd+1}, 0xffff0000, v{XR+dd}")
        for d_ in range(4):
            dd=4*i+d_
            sa=20+4*(d_&1)
            a(f"v_pk_add_f32 {v(sa,2)}, {v(sa,2)}, {v(FR+2*dd,2)}")
            a(f"v_pk_fma_f32 {v(sa+2,2)}, {v(FR+2*dd,2)}, {v(FR+2*dd,2)}, {v(sa+2,2)}")
    a("v_pk_add_f32 v[20:21], v[20:21], v[24:25]")
    a("v_pk_add_f32 v[22:23], v[22:23], v[26:27]")
    a("v_add_f32 v20, v20, v21")
    a("v_add_f32 v22, v22, v23")
    for dpp in ("quad_perm:[1,0,3,2]","quad_perm:[2,3,0,1]","row_half_mirror"):
        a("s_nop 1")
        a(f"v_add_f32_dpp v20, v20, v20 {dpp} row_mask:0xf bank_mask:0xf")
        a(f"v_add_f32_dpp v22, v22, v22 {dpp} row_mask:0xf bank_mask:0xf")
    a(f"v_mul_f32 v20, {f32bits(1.0/D)}, v20")
    a(f"v_mul_f32 v22, {f32bits(1.0/D)}, v22")
    a("v_fma_f32 v22, -v20, v20, v22")
    a("v_max_f32 v22, 0, v22")
    a(f"v_add_f32 v22, {f32bits(1e-5)}, v22")
    a("v_rsq_f32 v24, v22")
    a("s_nop 0")
    a("v_mul_f32 v26, v20, v24")
    a("v_sub_f32 v26, 0, v26")
    for dd in range(28):
        a(f"v_pk_fma_f32 {v(FR+2*dd,2)}, {v(FR+2*dd,2)}, v[24:25], v[26:27] op_sel_hi:[1,0,0]")
    for dd in range(28):
        a(f"v_cvt_pk_bf16_f32 v{XR+dd}, v{FR+2*dd}, v{FR+2*dd+1}")
        if dd%4==3:
            i=dd//4
            a(f"ds_write_b128 v8, {v(XR+4*i,4)} offset:{XB+8192*i}")
    a("s_waitcnt lgkmcnt(0)")
    a(f"s_branch L_{name}_loop")
    a.label(f"L_{name}_roleB")
    def issue_w(c):
        slot=c%4
        for u in range(6):
            a(f"s_add_u32 m0, s41, {slot*WSLOT+u*1024}")
            a(f"s_add_u32 s42, s39, {(64*c+8*(u//3))*2688}")
            a(f"buffer_load_dwordx4 v{16+u%3}, s[20:23], s42 offen lds")
    for c in range(4): issue_w(c)
    a.label(f"L_{name}_loop")
    ACC=32; BF=48; AF=64
    for c in range(7):
        issued=min(7,c+4) if c==0 else min(7,c+3)
        a(f"s_waitcnt vmcnt({6*(issued-c-1)})")
        a("s_barrier")
        if c>=1 and c+3<7:
            a("s_cmp_lt_u32 s28, 8")
            a(f"s_cbranch_scc1 L_{name}_skip{c}")
            issue_w(c+3)
            a.label(f"L_{name}_skip{c}")
        slot=c%4
        ab=14 if slot<2 else 15
        so=(slot&1)*WSLOT
        for s_ in range(4):
            a(f"ds_read_b128 {v(BF+4*s_,4)}, v{10+s_} offset:{XB+c*8192}")
            a(f"ds_read_b64_tr_b16 {v(AF+4*s_,2)}, v{ab} offset:{so+s_*16*384}")
            a(f"ds_read_b64_tr_b16 {v(AF+4*s_+2,2)}, v{ab} offset:{so+s_*16*384+4*384}")
        for s_ in range(4):
            a(f"s_waitcnt lgkmcnt({3*(3-s_)})")
            cin = "0" if (c==0 and s_==0) else v(ACC,16)
            a(f"v_mfma_f32_32x32x16_bf16 {v(ACC,16)}, {v(AF+4*s_,4)}, {v(BF+4*s_,4)}, {cin}")
    a("s_mul_i32 s40, s30, 192")
    a("s_lshl_b32 s42, s36, 5")
    a("s_add_u32 s40, s40, s42")
    a("s_cmp_lt_u32 s40, 448")
    a(f"s_cselect_b32 s43, {f32bits(DH**-0.5*LOG2E)}, {f32bits(1.0)}")
    a("s_lshl_b32 s44, s29, 1")
    a("s_add_u32 s44, s44, s35")
    a(f"s_mul_i32 s44, s44, {168*512}")
    a("s_lshl_b32 s40, s40, 6")
    a("s_add_u32 s44, s44, s40")
    a("v_lshlrev_b32 v5, 4, v1")
    a("s_nop 7")
    for r in range(16):
        a(f"v_mul_f32 v{ACC+r}, s43, v{ACC+r}")
    for r in range(8):
        a(f"v_cvt_pk_bf16_f32 v{BF+r}, v{ACC+2*r}, v{ACC+2*r+1}")
    a(f"buffer_store_dwordx4 {v(BF,4)}, v5, s[24:27], s44 offen")
    a(f"buffer_store_dwordx4 {v(BF+4,4)}, v5, s[24:27], s44 offen offset:1024")
    a("s_endpgm")
    a.label(f"L_{name}_cs")
    a("s_sub_u32 s31, s2, 224")
    sdiv(a,32,33,31,14,34)
    a("v_lshrrev_b32 v3, 4, v1")
    a("s_lshl_b32 s35, s28, 2")
    a("v_add_u32 v3, s35, v3")
    a("v_mul_u32_u24 v4, 3584, v3")
    a("v_and_b32 v5, 15, v1")
    a("v_lshl_add_u32 v4, v5, 4, v4")
    a("s_waitcnt lgkmcnt(0)")
    a("s_cmp_eq_u32 s32, 0")
    a("s_cselect_b32 s36, s12, s14")
    a("s_cselect_b32 s37, s13, s15")
    srd(a,16,36,37,D*F*2)
    srd(a,24,8,9,SZ_CS,WS_CS)
    a("s_lshl_b32 s38, s33, 8")
    for i in range(10):
        a(f"s_add_u32 s39, s38, {i*48*3584}")
        a(f"buffer_load_dwordx4 {v(32+4*i,4)}, v4, s[16:19], s39 offen")
    for r in range(8): a(f"v_mov_b32 v{16+r}, 0")
    for i in range(10):
        a(f"s_waitcnt vmcnt({9-i})")
        for d_ in range(4):
            a(f"v_lshlrev_b32 v{24+2*d_}, 16, v{32+4*i+d_}")
            a(f"v_and_b32 v{25+2*d_}, 0xffff0000, v{32+4*i+d_}")
        for d_ in range(4):
            a(f"v_pk_add_f32 {v(16+2*d_,2)}, {v(16+2*d_,2)}, {v(24+2*d_,2)}")
    a("v_lshlrev_b32 v6, 9, v3")
    a("v_lshl_add_u32 v6, v5, 5, v6")
    a("ds_write_b128 v6, v[16:19]")
    a("ds_write_b128 v6, v[20:23] offset:16")
    a("s_waitcnt lgkmcnt(0)")
    a("s_barrier")
    a("s_cmp_ge_u32 s28, 2")
    a(f"s_cbranch_scc1 L_{name}_end")
    a("v_lshlrev_b32 v6, 2, v0")
    for i in range(48):
        a(f"ds_read_b32 v{32+i}, v6 offset:{512*i}")
        if i%12==11:
            a("s_waitcnt lgkmcnt(0)")
    a("v_mov_b32 v16, 0")
    a("v_mov_b32 v17, 0")
    for i in range(0,48,2):
        a(f"v_pk_add_f32 v[16:17], v[16:17], {v(32+i,2)}")
    a("v_add_f32 v16, v16, v17")
    a(f"s_mul_i32 s38, s32, {F*4}")
    a("s_lshl_b32 s39, s33, 9")
    a("s_add_u32 s38, s38, s39")
    a("buffer_store_dword v16, v6, s[24:27], s38 offen")
    a.label(f"L_{name}_end")
    a("s_endpgm")
    return a.text(), kdesc(name,128)
```

```python
from common import *
K2_NWG=256; K2_THREADS=512
KB=0; VB=24576
K2_LDS=49152
NEG=f32bits(-1e30)
def gen_k2(name="k2_kernel"):
    a=Asm(); kstart(a,name)
    a(f"s_cmp_ge_u32 s2, {K2_NWG}")
    a(f"s_cbranch_scc1 L_{name}_end")
    a(f"s_load_dwordx2 s[8:9], s[0:1], {KA_WS}")
    a("v_and_b32 v1, 63, v0")
    a("v_lshrrev_b32 v2, 6, v0")
    a("s_nop 0")
    a("v_readfirstlane_b32 s28, v2")
    a("s_and_b32 s31, s2, 7")
    a("s_lshr_b32 s32, s2, 3")
    a("s_lshr_b32 s33, s32, 4")
    a("s_lshl_b32 s29, s31, 1")
    a("s_add_u32 s29, s29, s33")
    a("s_and_b32 s30, s32, 15")
    a("s_mul_i32 s34, s29, 7")
    a("s_lshr_b32 s34, s34, 1")
    a("s_and_b32 s35, s29, 1")
    a("v_and_b32 v3, 15, v1")
    a("v_lshrrev_b32 v4, 4, v1")
    a("v_lshlrev_b32 v5, 9, v4")
    a("v_lshl_add_u32 v6, v3, 4, v5")
    a("v_and_b32 v7, 1, v4")
    a("v_lshlrev_b32 v7, 3, v7")
    a("v_xor_b32 v7, v7, v3")
    a("v_lshl_add_u32 v7, v7, 4, v5")
    a("s_waitcnt lgkmcnt(0)")
    srd(a,16,8,9,SZ_QKV,WS_QKV)
    srd(a,20,8,9,SZ_O,WS_O)
    a("s_lshl_b32 s36, s30, 3")
    a("s_add_u32 s36, s36, s28")
    a("s_lshr_b32 s37, s36, 1")
    a(f"s_mul_i32 s37, s37, {168*512}")
    a("s_and_b32 s38, s36, 1")
    a("s_lshl_b32 s38, s38, 8")
    a("s_add_u32 s37, s37, s38")
    a("s_lshl_b32 s39, s34, 9")
    a("s_add_u32 s40, s37, s39")
    QF=12
    a(f"buffer_load_dwordx4 {v(QF,4)}, v6, s[16:19], s40 offen")
    for u in range(3):
        a(f"s_mul_i32 s41, s28, 3")
        a(f"s_add_u32 s41, s41, {u}")
        a("s_lshl_b32 s42, s30, 3")
        a("s_add_u32 s42, s42, s41")
        a("s_sub_u32 s42, s42, 16")
        a("s_lshr_b32 s43, s42, 1")
        a(f"s_mul_i32 s43, s43, {168*512}")
        a("s_and_b32 s44, s42, 1")
        a("s_lshl_b32 s44, s44, 8")
        a("s_add_u32 s43, s43, s44")
        a("s_add_u32 s43, s43, s39")
        a("s_cmp_lt_i32 s42, 0")
        a("s_cselect_b32 s43, 0x40000000, s43")
        a("s_lshl_b32 s45, s41, 10")
        a(f"s_add_u32 m0, s45, {KB}")
        a(f"s_add_u32 s46, s43, {56*512}")
        a("buffer_load_dwordx4 v6, s[16:19], s46 offen lds")
        a(f"s_add_u32 m0, s45, {VB}")
        a(f"s_add_u32 s46, s43, {112*512}")
        a("buffer_load_dwordx4 v7, s[16:19], s46 offen lds")
    M0R=16; M16=20
    a("v_lshlrev_b32 v8, 2, v4")
    a(f"v_mov_b32 v9, {NEG}")
    for r in range(4):
        a(f"v_add_u32 v10, {r}, v8")
        a("v_cmp_lt_u32 vcc, v3, v10")
        a("s_nop 1")
        a(f"v_cndmask_b32_e64 v{M0R+r}, v9, 0, vcc")
        a(f"v_cndmask_b32_e64 v{M16+r}, 0, v9, vcc")
    a("s_lshl_b32 s47, s28, 10")
    a("v_lshlrev_b32 v10, 4, v1")
    a(f"v_add_u32 v10, s47, v10")
    a("v_bfe_u32 v24, v1, 2, 2")
    a("v_add_u32 v24, v24, v8")
    a("v_bfe_u32 v25, v1, 1, 1")
    a("v_lshlrev_b32 v26, 3, v25")
    a("v_xor_b32 v24, v24, v26")
    a("v_lshlrev_b32 v24, 4, v24")
    a("v_lshl_add_u32 v24, v25, 8, v24")
    a("v_and_b32 v25, 1, v1")
    a("v_lshl_add_u32 v24, v25, 3, v24")
    a(f"v_add_u32 v24, {VB}, v24")
    a("v_add_u32 v11, s47, v24")
    a("s_waitcnt vmcnt(6)")
    a("s_cmp_eq_u32 s35, 0")
    a(f"s_cbranch_scc0 L_{name}_odd")
    a("v_cmp_gt_u32 vcc, 48, v1")
    a("s_nop 1")
    a(f"v_cndmask_b32 v{QF+2}, 0, v{QF+2}, vcc")
    a(f"v_cndmask_b32 v{QF+3}, 0, v{QF+3}, vcc")
    a(f"s_branch L_{name}_qdone")
    a.label(f"L_{name}_odd")
    a("v_cmp_le_u32 vcc, 16, v1")
    a("s_nop 1")
    a(f"v_cndmask_b32 v{QF+0}, 0, v{QF+0}, vcc")
    a(f"v_cndmask_b32 v{QF+1}, 0, v{QF+1}, vcc")
    a.label(f"L_{name}_qdone")
    a("s_waitcnt vmcnt(0)")
    a("s_barrier")
    SR=32
    KF=100
    NB=6
    for t in range(min(NB,17)):
        a(f"ds_read_b128 {v(KF+4*(t%NB),4)}, v10 offset:{KB+1024*t}")
    for t in range(17):
        outstanding=min(17,t+NB)-t-1
        a(f"s_waitcnt lgkmcnt({outstanding})")
        cin = v(M0R,4) if t==0 else (v(M16,4) if t==16 else "0")
        a(f"v_mfma_f32_16x16x32_bf16 {v(SR+4*t,4)}, {v(KF+4*(t%NB),4)}, {v(QF,4)}, {cin}")
        if t+NB<17:
            a(f"ds_read_b128 {v(KF+4*(t%NB),4)}, v10 offset:{KB+1024*(t+NB)}")
    a("s_nop 7")
    a("s_cmp_ge_u32 s36, 16")
    a(f"s_cbranch_scc1 L_{name}_nomask")
    a("s_sub_u32 s48, 16, s36")
    for t in range(16):
        a(f"s_cmp_le_u32 s48, {t}")
        a(f"s_cbranch_scc1 L_{name}_nomask")
        for r in range(4): a(f"v_mov_b32 v{SR+4*t+r}, v9")
    a.label(f"L_{name}_nomask")
    VF=100
    def vread(j):
        b=VF+8*(j%3)
        for dt in range(2):
            a(f"ds_read_b64_tr_b16 {v(b+4*dt,2)}, v11 offset:{1024*(2*j)+512*dt}")
            if 2*j+1<17:
                a(f"ds_read_b64_tr_b16 {v(b+4*dt+2,2)}, v11 offset:{1024*(2*j+1)+512*dt}")
    vread(0); vread(1); vread(2)
    a(f"v_max3_f32 v24, v{SR}, v{SR+1}, v{SR+2}")
    a(f"v_max3_f32 v25, v{SR+3}, v{SR+4}, v{SR+5}")
    i=6
    k=0
    while i+1<68:
        a(f"v_max3_f32 v{24+k}, v{24+k}, v{SR+i}, v{SR+i+1}")
        i+=2; k^=1
    a("v_max_f32 v24, v24, v25")
    a("v_mov_b32 v25, v24")
    a("s_nop 1")
    a("v_permlane32_swap_b32 v24, v25")
    a("v_max_f32 v24, v24, v25")
    a("v_mov_b32 v25, v24")
    a("s_nop 1")
    a("v_permlane16_swap_b32 v24, v25")
    a("v_max_f32 v24, v24, v25")
    a("v_mov_b32 v25, v24")
    a("v_mov_b32 v26, 0\nv_mov_b32 v27, 0")
    OA=28-0
    O0=124; O1=128
    PP=132
    for j in range(9):
        nt = 2 if 2*j+1<17 else 1
        pb=PP+4*(j%2)
        for tt in range(nt):
            t=2*j+tt
            for r in range(0,4,2):
                a(f"v_pk_add_f32 {v(SR+4*t+r,2)}, {v(SR+4*t+r,2)}, v[24:25] neg_lo:[0,1] neg_hi:[0,1]")
            for r in range(4):
                a(f"v_exp_f32 v{SR+4*t+r}, v{SR+4*t+r}")
            a("s_nop 0")
            for r in range(0,4,2):
                a(f"v_pk_add_f32 v[26:27], v[26:27], {v(SR+4*t+r,2)}")
                a(f"v_cvt_pk_bf16_f32 v{pb+2*tt+r//2}, v{SR+4*t+r}, v{SR+4*t+r+1}")
        rem=0
        for jj in range(j+1,min(9,j+3)):
            rem += 4 if 2*jj+1<17 else 2
        a(f"s_waitcnt lgkmcnt({rem})")
        b=VF+8*(j%3)
        c0 = "0" if j==0 else v(O0,4)
        c1 = "0" if j==0 else v(O1,4)
        a("s_nop 0")
        if nt==2:
            a(f"v_mfma_f32_16x16x32_bf16 {v(O0,4)}, {v(b,4)}, {v(pb,4)}, {c0}")
            a(f"v_mfma_f32_16x16x32_bf16 {v(O1,4)}, {v(b+4,4)}, {v(pb,4)}, {c1}")
        else:
            a("s_nop 7")
            a(f"v_mfma_f32_16x16x16_bf16 {v(O0,4)}, {v(b,2)}, {v(pb,2)}, {c0}")
            a(f"v_mfma_f32_16x16x16_bf16 {v(O1,4)}, {v(b+4,2)}, {v(pb,2)}, {c1}")
        if j+3<9: vread(j+3)
    a("v_add_f32 v26, v26, v27")
    a("v_mov_b32 v27, v26")
    a("s_nop 1")
    a("v_permlane32_swap_b32 v26, v27")
    a("v_add_f32 v26, v26, v27")
    a("v_mov_b32 v27, v26")
    a("s_nop 1")
    a("v_permlane16_swap_b32 v26, v27")
    a("v_add_f32 v26, v26, v27")
    a("v_rcp_f32 v26, v26")
    a("s_lshr_b32 s37, s36, 1")
    a(f"s_mul_i32 s37, s37, {56*512}")
    a("s_add_u32 s37, s37, s38")
    a("s_add_u32 s37, s37, s39")
    a("v_lshrrev_b32 v5, 1, v4")
    a("v_lshlrev_b32 v5, 9, v5")
    a("v_lshl_add_u32 v5, v3, 4, v5")
    a("v_and_b32 v6, 1, v4")
    a("v_lshl_add_u32 v5, v6, 3, v5")
    a("v_add_u32 v6, 1024, v5")
    a("v_mov_b32 v7, 0x40000000")
    a("s_cmp_eq_u32 s35, 0")
    a("s_cselect_b32 s40, 64, 0")
    a("s_cselect_b32 s41, 3, 64")
    a("v_cmp_eq_u32 vcc, s40, v4")
    a("s_nop 1")
    a("v_cndmask_b32 v5, v5, v7, vcc")
    a("v_cmp_eq_u32 vcc, s41, v4")
    a("s_nop 1")
    a("v_cndmask_b32 v6, v6, v7, vcc")
    a("s_nop 4")
    for r in range(8):
        a(f"v_mul_f32 v{O0+r}, v26, v{O0+r}")
    for r in range(4):
        a(f"v_cvt_pk_bf16_f32 v{PP+r}, v{O0+2*r}, v{O0+2*r+1}")
    a(f"buffer_store_dwordx2 {v(PP,2)}, v5, s[20:23], s37 offen")
    a(f"buffer_store_dwordx2 {v(PP+2,2)}, v6, s[20:23], s37 offen")
    a.label(f"L_{name}_end")
    a("s_endpgm")
    return a.text(), kdesc(name,144)
```

```python
from common import *
K35_NWG=224; K35_THREADS=256
STAGE=16384
NSLOT=7
K35_LDS=NSLOT*STAGE
def gen_k35(name, mode):
    k3 = (mode==3)
    KD = D if k3 else F
    NCH = KD//64
    a=Asm(); kstart(a,name)
    a(f"s_cmp_ge_u32 s2, {K35_NWG}")
    a(f"s_cbranch_scc1 L_{name}_end")
    a(f"s_load_dwordx2 s[4:5], s[0:1], {KA_WO if k3 else KA_WD}")
    a(f"s_load_dwordx2 s[6:7], s[0:1], {KA_X if k3 else KA_OUT}")
    a(f"s_load_dwordx2 s[8:9], s[0:1], {KA_WS}")
    a("v_and_b32 v1, 63, v0")
    a("v_lshrrev_b32 v2, 6, v0")
    a("s_nop 0")
    a("v_readfirstlane_b32 s28, v2")
    a("s_and_b32 s31, s2, 7")
    a("s_lshr_b32 s32, s2, 3")
    sdiv(a,33,30,32,7,34)
    a("s_lshl_b32 s29, s31, 2")
    a("s_add_u32 s29, s29, s33")
    a("s_and_b32 s35, s28, 1")
    a("s_lshr_b32 s36, s28, 1")
    a("v_lshrrev_b32 v3, 3, v1")
    a("v_mul_u32_u24 v3, 896, v3")
    a("v_bfe_u32 v4, v1, 2, 1")
    a("v_bfe_u32 v5, v1, 4, 1")
    a("v_xor_b32 v4, v4, v5")
    a("v_lshl_add_u32 v3, v4, 6, v3")
    a("v_and_b32 v4, 3, v1")
    a("v_lshl_add_u32 v6, v4, 4, v3")
    a("v_lshlrev_b32 v7, 4, v1")
    a("v_lshrrev_b32 v4, 5, v1")
    a("v_bfe_u32 v5, v1, 2, 2")
    a("v_lshl_add_u32 v8, v4, 3, v5")
    a("v_lshlrev_b32 v8, 7, v8")
    a("v_lshrrev_b32 v5, 1, v5")
    a("v_xor_b32 v5, s36, v5")
    a("v_lshl_add_u32 v8, v5, 6, v8")
    a("v_bfe_u32 v5, v1, 4, 1")
    a("v_lshl_add_u32 v8, v5, 5, v8")
    a("v_and_b32 v5, 1, v1")
    a("v_lshl_add_u32 v8, v5, 4, v8")
    a("v_bfe_u32 v5, v1, 1, 1")
    a("v_lshl_add_u32 v8, v5, 3, v8")
    a(f"v_add_u32 v9, {4*STAGE}, v8")
    a("s_lshl_b32 s37, s35, 12")
    a("s_add_u32 s37, s37, 8192")
    a("v_add_u32 v10, s37, v7")
    a(f"v_add_u32 v11, {4*STAGE}, v10")
    a("s_waitcnt lgkmcnt(0)")
    srd(a,16,4,5,KD*D*2)
    if k3:
        srd(a,20,8,9,SZ_O,WS_O)
        srd(a,24,6,7,S*D*2)
        srd(a,40,8,9,SZ_H,WS_H)
        srd(a,44,8,9,SZ_ST,WS_ST)
    else:
        srd(a,20,8,9,SZ_ACT,WS_ACT)
        srd(a,24,8,9,SZ_H,WS_H)
        srd(a,40,6,7,S*D*2)
    a("s_lshl_b32 s48, s29, 1")
    a("s_add_u32 s48, s48, s35")
    a("s_lshl_b32 s49, s30, 6")
    a("s_lshl_b32 s50, s36, 5")
    a("s_add_u32 s49, s49, s50")
    a("v_and_b32 v5, 31, v1")
    a("v_mul_u32_u24 v12, 896, v5")
    a("v_lshl_add_u32 v12, v4, 4, v12")
    a(f"s_mul_i32 s51, s48, {32*896}")
    a("s_lshl_b32 s50, s49, 1")
    a("s_add_u32 s51, s51, s50")
    a(f"s_mul_i32 s52, s48, {56*512}")
    a("s_lshl_b32 s50, s49, 6")
    a("s_add_u32 s52, s52, s50")
    RES=16
    if k3:
        a(f"buffer_load_dwordx4 {v(RES,4)}, v12, s[24:27], s51 offen")
        a(f"buffer_load_dwordx4 {v(RES+4,4)}, v12, s[24:27], s51 offen offset:32")
    else:
        a(f"buffer_load_dwordx4 {v(RES,4)}, v7, s[24:27], s52 offen")
        a(f"buffer_load_dwordx4 {v(RES+4,4)}, v7, s[24:27], s52 offen offset:1024")
    a(f"s_mul_i32 s53, s28, {16*896}")
    a("s_lshl_b32 s50, s30, 7")
    a("s_add_u32 s53, s53, s50")
    a("s_lshl_b32 s54, s29, 1")
    a("s_add_u32 s54, s54, s36")
    a(f"s_mul_i32 s54, s54, {KD//16*1024}")
    a("s_lshl_b32 s50, s35, 11")
    a("s_add_u32 s54, s54, s50")
    a("s_lshl_b32 s55, s28, 11")
    def issue(slot):
        a(f"s_add_u32 m0, s55, {slot*STAGE}")
        a(f"s_add_u32 s56, s53, {8*896}")
        a("buffer_load_dwordx4 v6, s[16:19], s53 offen lds")
        a(f"s_add_u32 m0, s55, {slot*STAGE+1024}")
        a(f"s_add_u32 s53, s53, {64*896}")
        a("buffer_load_dwordx4 v6, s[16:19], s56 offen lds")
        a(f"s_add_u32 m0, s55, {slot*STAGE+8192}")
        a("s_nop 0")
        a("buffer_load_dwordx4 v7, s[20:23], s54 offen lds")
        a("buffer_load_dwordx4 v7, s[20:23], s54 offen offset:1024 lds")
        a("s_add_u32 s54, s54, 4096")
    ACC=32; BF=48; AF=64
    def compute(slot, first):
        ab = 8 if slot<4 else 9
        bb = 10 if slot<4 else 11
        so=(slot%4)*STAGE
        for s_ in range(4):
            a(f"ds_read_b128 {v(BF+4*s_,4)}, v{bb} offset:{so+1024*s_}")
            a(f"ds_read_b64_tr_b16 {v(AF+4*s_,2)}, v{ab} offset:{so+s_*2048}")
            a(f"ds_read_b64_tr_b16 {v(AF+4*s_+2,2)}, v{ab} offset:{so+s_*2048+512}")
        for s_ in range(4):
            a(f"s_waitcnt lgkmcnt({3*(3-s_)})")
            cin="0" if (first and s_==0) else v(ACC,16)
            a(f"v_mfma_f32_32x32x16_bf16 {v(ACC,16)}, {v(AF+4*s_,4)}, {v(BF+4*s_,4)}, {cin}")
    if k3:
        for c in range(7): issue(c)
        for c in range(7):
            a(f"s_waitcnt vmcnt({4*(6-c)})")
            a("s_barrier")
            compute(c, c==0)
    else:
        for r in range(16): a(f"v_mov_b32 v{ACC+r}, 0")
        for c in range(6): issue(c)
        a("s_mov_b32 s57, 0")
        a.label(f"L_{name}_loop")
        for u in range(7):
            a("s_waitcnt vmcnt(20)")
            a("s_barrier")
            issue((u+6)%7)
            compute(u, False)
        a("s_add_u32 s57, s57, 1")
        a(f"s_cmp_lt_u32 s57, {NCH//7}")
        a(f"s_cbranch_scc1 L_{name}_loop")
    a("s_waitcnt vmcnt(0)" if not k3 else "s_nop 0")
    a("s_nop 7\ns_nop 3")
    for d_ in range(8):
        a(f"v_lshlrev_b32 v{BF+2*d_}, 16, v{RES+d_}")
        a(f"v_and_b32 v{BF+2*d_+1}, 0xffff0000, v{RES+d_}")
    for d_ in range(8):
        a(f"v_pk_add_f32 {v(ACC+2*d_,2)}, {v(ACC+2*d_,2)}, {v(BF+2*d_,2)}")
    for d_ in range(8):
        a(f"v_cvt_pk_bf16_f32 v{AF+d_}, v{ACC+2*d_}, v{ACC+2*d_+1}")
    if k3:
        a(f"buffer_store_dwordx4 {v(AF,4)}, v7, s[40:43], s52 offen")
        a(f"buffer_store_dwordx4 {v(AF+4,4)}, v7, s[40:43], s52 offen offset:1024")
        for d_ in range(8):
            a(f"v_lshlrev_b32 v{BF+2*d_}, 16, v{AF+d_}")
            a(f"v_and_b32 v{BF+2*d_+1}, 0xffff0000, v{AF+d_}")
        a(f"v_pk_add_f32 v[24:25], {v(BF,2)}, {v(BF+2,2)}")
        a(f"v_pk_mul_f32 v[26:27], {v(BF,2)}, {v(BF,2)}")
        a(f"v_pk_fma_f32 v[26:27], {v(BF+2,2)}, {v(BF+2,2)}, v[26:27]")
        for d_ in range(2,8):
            a(f"v_pk_add_f32 v[24:25], v[24:25], {v(BF+2*d_,2)}")
            a(f"v_pk_fma_f32 v[26:27], {v(BF+2*d_,2)}, {v(BF+2*d_,2)}, v[26:27]")
        a("v_add_f32 v24, v24, v25")
        a("v_add_f32 v26, v26, v27")
        a("s_nop 1")
        a("v_permlane32_swap_b32 v24, v26")
        a("v_add_f32 v24, v24, v26")
        a("v_lshlrev_b32 v25, 13, v4")
        a("v_lshl_add_u32 v25, v5, 2, v25")
        a("s_lshl_b32 s50, s30, 1")
        a("s_add_u32 s50, s50, s36")
        a("s_lshl_b32 s50, s50, 14")
        a("s_lshl_b32 s56, s48, 7")
        a("s_add_u32 s50, s50, s56")
        a("buffer_store_dword v24, v25, s[44:47], s50 offen")
    else:
        a(f"buffer_store_dwordx4 {v(AF,4)}, v12, s[40:43], s51 offen")
        a(f"buffer_store_dwordx4 {v(AF+4,4)}, v12, s[40:43], s51 offen offset:32")
    a.label(f"L_{name}_end")
    a("s_endpgm")
    return a.text(), kdesc(name,80)
```

```python
from common import *
K4_NWG=224; K4_THREADS=512
GB=0; UB=57344; CSB=114688
K4_LDS=CSB+1024
def gen_k4(name="k4_kernel", DEPTH=3):
    a=Asm(); kstart(a,name)
    a(f"s_cmp_ge_u32 s2, {K4_NWG}")
    a(f"s_cbranch_scc1 L_{name}_end")
    a(f"s_load_dwordx4 s[4:7], s[0:1], {KA_WG}")
    a(f"s_load_dwordx2 s[8:9], s[0:1], {KA_WS}")
    a("v_and_b32 v1, 63, v0")
    a("v_lshrrev_b32 v2, 6, v0")
    a("s_nop 0")
    a("v_readfirstlane_b32 s28, v2")
    a("s_and_b32 s31, s2, 7")
    a("s_lshr_b32 s32, s2, 3")
    sdiv(a,33,34,32,7,35)
    a("s_and_b32 s29, s31, 1")
    a("s_lshl_b32 s29, s29, 2")
    a("s_add_u32 s29, s29, s33")
    a("s_lshr_b32 s30, s31, 1")
    a("s_mul_i32 s30, s30, 7")
    a("s_add_u32 s30, s30, s34")
    a("v_lshrrev_b32 v3, 3, v1")
    a("v_mul_u32_u24 v3, 3584, v3")
    a("v_bfe_u32 v4, v1, 1, 2")
    a("v_bfe_u32 v5, v1, 4, 1")
    a("v_xor_b32 v4, v4, v5")
    a("v_and_b32 v5, 1, v1")
    a("v_lshl_add_u32 v3, v5, 4, v3")
    a("v_lshl_add_u32 v6, v4, 5, v3")
    a("v_xor_b32 v4, 2, v4")
    a("v_lshl_add_u32 v7, v4, 5, v3")
    a("v_lshlrev_b32 v8, 4, v1")
    a("v_lshrrev_b32 v4, 5, v1")
    a("v_bfe_u32 v5, v1, 2, 2")
    a("v_lshl_add_u32 v9, v4, 3, v5")
    a("v_lshlrev_b32 v9, 7, v9")
    a("v_bfe_u32 v10, v1, 4, 1")
    a(f"v_mul_u32_u24 v11, {UB}, v10")
    a("v_add_u32 v9, v9, v11")
    a("v_and_b32 v11, 1, v1")
    a("v_lshl_add_u32 v9, v11, 4, v9")
    a("v_bfe_u32 v11, v1, 1, 1")
    a("v_lshl_add_u32 v9, v11, 3, v9")
    a("v_lshrrev_b32 v5, 1, v5")
    a("v_lshl_add_u32 v5, v10, 1, v5")
    a("v_lshl_add_u32 v12, v5, 5, v9")
    for t in range(1,4):
        a(f"v_xor_b32 v{12+t}, {32*t}, v12")
    a("s_waitcnt lgkmcnt(0)")
    srd(a,16,4,5,D*F*2)
    srd(a,20,6,7,D*F*2)
    srd(a,24,8,9,SZ_H,WS_H)
    srd(a,36,8,9,SZ_ACT,WS_ACT)
    srd(a,40,8,9,SZ_ST,WS_ST)
    srd(a,44,8,9,SZ_CS,WS_CS)
    a("s_lshl_b32 s48, s29, 3")
    a("s_add_u32 s48, s48, s28")
    a(f"s_mul_i32 s49, s48, {28*1024}")
    a(f"s_mul_i32 s50, s28, {8*3584}")
    a("s_lshl_b32 s51, s30, 7")
    a("s_add_u32 s50, s50, s51")
    a("s_lshl_b32 s52, s28, 10")
    BFR=64
    ACC=176
    AF=32
    def issue(c):
        a(f"s_add_u32 m0, s52, {GB+c*8192}")
        a(f"s_add_u32 s53, s50, {64*c*3584}")
        a("buffer_load_dwordx4 v6, s[16:19], s53 offen lds")
        a(f"s_add_u32 m0, s52, {UB+c*8192}")
        a(f"s_add_u32 s54, s49, {4096*c}")
        a("buffer_load_dwordx4 v7, s[20:23], s53 offen lds")
        for s_ in range(4):
            a(f"buffer_load_dwordx4 {v(BFR+16*c+4*s_,4)}, v8, s[24:27], s54 offen offset:{1024*s_}")
    a("v_lshlrev_b32 v16, 2, v1")
    a("s_cmp_ge_u32 s28, 2")
    a(f"s_cbranch_scc1 L_{name}_nocs")
    a(f"s_mul_i32 s53, s28, {F*4}")
    a("s_lshl_b32 s54, s30, 8")
    a("s_add_u32 s53, s53, s54")
    a("s_lshl_b32 s54, s28, 8")
    a(f"s_add_u32 m0, s54, {CSB}")
    a("s_nop 0")
    a("buffer_load_dword v16, s[44:47], s53 offen lds")
    a.label(f"L_{name}_nocs")
    a("v_and_b32 v17, 31, v1")
    a("v_lshlrev_b32 v17, 2, v17")
    a("v_lshl_add_u32 v17, v4, 13, v17")
    a("s_lshl_b32 s55, s48, 7")
    STR=240
    for sl in range(14):
        a(f"s_add_u32 s53, s55, {sl*16384}")
        a(f"buffer_load_dword v{STR+sl}, v17, s[40:43], s53 offen")
    for c in range(DEPTH): issue(c)
    for c in range(7):
        issued=min(7,c+DEPTH)
        a(f"s_waitcnt vmcnt({6*(issued-c-1)})")
        a("s_barrier")
        if c+DEPTH<7: issue(c+DEPTH)
        steps=[(s_,t) for s_ in range(4) for t in range(4)]
        def rd(i):
            s_,t=steps[i]
            b=AF+4*(i%8)
            o=c*8192+s_*2048
            a(f"ds_read_b64_tr_b16 {v(b,2)}, v{12+t} offset:{o}")
            a(f"ds_read_b64_tr_b16 {v(b+2,2)}, v{12+t} offset:{o+512}")
        PF=6
        for i in range(PF): rd(i)
        for i in range(16):
            s_,t=steps[i]
            out=min(16,i+PF)-i-1
            a(f"s_waitcnt lgkmcnt({2*out})")
            cin="0" if (c==0 and s_==0) else v(ACC+16*t,16)
            a(f"v_mfma_f32_32x32x16_bf16 {v(ACC+16*t,16)}, {v(AF+4*(i%8),4)}, {v(BFR+16*c+4*s_,4)}, {cin}")
            if i+PF<16: rd(i+PF)
    for sl in range(0,14,2):
        if sl==0: continue
        a(f"v_pk_add_f32 {v(STR,2)}, {v(STR,2)}, {v(STR+sl,2)}")
    a(f"v_add_f32 v18, v{STR}, v{STR+1}")
    a("v_mov_b32 v19, v18")
    a("s_nop 1")
    a("v_permlane32_swap_b32 v18, v19")
    a(f"v_mul_f32 v18, {f32bits(1.0/D)}, v18")
    a(f"v_mul_f32 v19, {f32bits(1.0/D)}, v19")
    a("v_fma_f32 v19, -v18, v18, v19")
    a("v_max_f32 v19, 0, v19")
    a(f"v_add_f32 v19, {f32bits(1e-5)}, v19")
    a("v_rsq_f32 v20, v19")
    a("s_nop 0")
    a("v_mul_f32 v22, v18, v20")
    a("v_sub_f32 v22, 0, v22")
    a(f"v_mov_b32 v24, {f32bits(-LOG2E)}")
    a("v_mov_b32 v26, 1.0")
    a("v_lshlrev_b32 v17, 5, v4")
    a(f"v_add_u32 v17, {CSB}, v17")
    a(f"s_mul_i32 s53, s48, {112*1024}")
    a("s_lshl_b32 s54, s30, 12")
    a("s_add_u32 s53, s53, s54")
    CS=32; T0=64
    for t in range(4):
        a(f"ds_read_b128 {v(CS,4)}, v17 offset:{64*t}")
        a(f"ds_read_b128 {v(CS+4,4)}, v17 offset:{64*t+16}")
        a(f"ds_read_b128 {v(CS+8,4)}, v17 offset:{256+64*t}")
        a(f"ds_read_b128 {v(CS+12,4)}, v17 offset:{256+64*t+16}")
        a("s_waitcnt lgkmcnt(0)")
        A0=ACC+16*t
        for p in range(8):
            a(f"v_pk_mul_f32 {v(CS+2*p,2)}, {v(CS+2*p,2)}, v[22:23] op_sel_hi:[1,0]")
        for p in range(8):
            a(f"v_pk_fma_f32 {v(A0+2*p,2)}, {v(A0+2*p,2)}, v[20:21], {v(CS+2*p,2)} op_sel_hi:[1,0,1]")
        for p in range(4):
            a(f"v_pk_mul_f32 {v(T0+2*p,2)}, {v(A0+2*p,2)}, v[24:25] op_sel_hi:[1,0]")
        for r in range(8):
            a(f"v_exp_f32 v{T0+r}, v{T0+r}")
        for p in range(4):
            a(f"v_pk_mul_f32 {v(A0+2*p,2)}, {v(A0+2*p,2)}, {v(A0+8+2*p,2)}")
        for p in range(4):
            a(f"v_pk_add_f32 {v(T0+2*p,2)}, {v(T0+2*p,2)}, v[26:27] op_sel_hi:[1,0]")
        for r in range(8):
            a(f"v_rcp_f32 v{T0+r}, v{T0+r}")
        a("s_nop 0")
        for p in range(4):
            a(f"v_pk_mul_f32 {v(A0+2*p,2)}, {v(A0+2*p,2)}, {v(T0+2*p,2)}")
        OB=80+4*t
        for p in range(4):
            a(f"v_cvt_pk_bf16_f32 v{OB+p}, v{A0+2*p}, v{A0+2*p+1}")
        a(f"buffer_store_dwordx4 {v(OB,4)}, v8, s[36:39], s53 offen offset:{1024*t}")
    a.label(f"L_{name}_end")
    a("s_endpgm")
    return a.text(), kdesc(name,256)
```

```python
import sys
from common import *
import k1,k2,k35,k4
def build(path):
    hdr=open("sequential_preLN__sliding_block__swiglu_ffn__prompt.s.ref").read().split("; Override launch")[0]
    L=[hdr.rstrip()]
    ks=[("k1_kernel",k1.K1_NWG,k1.K1_THREADS,k1.K1_LDS,k1.gen_k1("k1_kernel")),
        ("k2_kernel",k2.K2_NWG,k2.K2_THREADS,k2.K2_LDS,k2.gen_k2("k2_kernel")),
        ("k3_kernel",k35.K35_NWG,k35.K35_THREADS,k35.K35_LDS,k35.gen_k35("k3_kernel",3)),
        ("k4_kernel",k4.K4_NWG,k4.K4_THREADS,k4.K4_LDS,k4.gen_k4("k4_kernel")),
        ("k5_kernel",k35.K35_NWG,k35.K35_THREADS,k35.K35_LDS,k35.gen_k35("k5_kernel",5))]
    for n,g,b,l,_ in ks: L.append(f"; @launch kernel={n} grid=({g},1,1) block=({b},1,1) lds={l}")
    L.append('.amdgcn_target "amdgcn-amd-amdhsa--gfx950"\n.text')
    for k in ks: L.append(k[4][0])
    L.append('.section .rodata,"a"')
    for k in ks: L.append(k[4][1])
    open(path,"w").write("\n".join(L)+"\n")
if __name__=="__main__":
    build(sys.argv[1] if len(sys.argv)>1 else "sequential_preLN__sliding_block__swiglu_ffn__prompt.s")
```

```python
import math, struct
S=2048; D=448; F=1792; NQKV=1344; H=16; DH=28; WIN=256
KA_X=0; KA_WQKV=8; KA_WO=16; KA_BX=24; KA_WG=32; KA_WU=40; KA_WD=48; KA_OUT=56; KA_DBG=64; KA_WS=72
WS_QKV=0x000000; SZ_QKV=S*NQKV*2
WS_O  =0x600000; SZ_O=S*D*2
WS_H  =0x800000; SZ_H=S*D*2
WS_ACT=0xA00000; SZ_ACT=S*F*2
WS_CS =0x1200000; SZ_CS=2*F*4
WS_ST =0x1210000; SZ_ST=14*2*S*4
LOG2E=1.4426950408889634

def f32bits(x): return struct.unpack("<I",struct.pack("<f",x))[0]

class Asm:
    def __init__(s): s.L=[]
    def __call__(s,t):
        for l in t.split("\n"):
            l=l.strip()
            if l: s.L.append("    "+l)
    def label(s,l): s.L.append(l+":")
    def c(s,t): s.L.append("    ; "+t)
    def text(s): return "\n".join(s.L)

def kstart(a,name):
    a.L.append(f".globl {name}\n.p2align 8\n.type {name},@function\n{name}:")

def srd(a, d, lo, hi, size, off=0):
    if off:
        a(f"s_add_u32 s{d}, s{lo}, {off}")
        a(f"s_addc_u32 s{d+1}, s{hi}, 0")
    else:
        a(f"s_mov_b32 s{d}, s{lo}")
        a(f"s_mov_b32 s{d+1}, s{hi}")
    a(f"s_and_b32 s{d+1}, s{d+1}, 0xffff")
    a(f"s_mov_b32 s{d+2}, {size}")
    a(f"s_mov_b32 s{d+3}, 0x00020000")

def kdesc(name, vgpr, sgpr=102, accum=None):
    if accum is None: accum=(vgpr+3)//4*4
    return f""".p2align 6
.amdhsa_kernel {name}
  .amdhsa_next_free_vgpr {vgpr}
  .amdhsa_next_free_sgpr {sgpr}
  .amdhsa_accum_offset {accum}
  .amdhsa_group_segment_fixed_size 0
  .amdhsa_kernarg_size 80
  .amdhsa_user_sgpr_count 2
  .amdhsa_user_sgpr_kernarg_segment_ptr 1
  .amdhsa_system_sgpr_workgroup_id_x 1
  .amdhsa_float_denorm_mode_32 3
  .amdhsa_float_denorm_mode_16_64 3
.end_amdhsa_kernel"""

def sdiv(a, q, r, n, d, tmp):
    magic=-(-(1<<32)//d)
    a(f"s_mul_hi_u32 s{q}, s{n}, {magic}")
    a(f"s_mul_i32 s{tmp}, s{q}, {d}")
    a(f"s_sub_u32 s{r}, s{n}, s{tmp}")

def v(r,n=1):
    return f"v{r}" if n==1 else f"v[{r}:{r+n-1}]"

import os
STAMP=int(os.environ.get("STAMP","0"))
def stamp(a,i):
    if not STAMP: return
    a(f"s_memtime s[{64+2*i}:{65+2*i}]")
    a("s_waitcnt lgkmcnt(0)")
def stamp_rt(a,i):
    if not STAMP: return
    a(f"s_memrealtime s[{64+2*i}:{65+2*i}]")
    a("s_waitcnt lgkmcnt(0)")
def stamp_dump(a,n,name,wavereg=28):
    if not STAMP: return
    a(f"s_cmp_lg_u32 s{wavereg}, 0")
    a(f"s_cbranch_scc1 L_{name}_nodump")
    a("s_mov_b32 s98, 99")
    for k,w in enumerate((0,1,100,223)):
        a(f"s_cmp_eq_u32 s2, {w}")
        a(f"s_cselect_b32 s98, {k}, s98")
    a("s_cmp_eq_u32 s98, 99")
    a(f"s_cbranch_scc1 L_{name}_nodump")
    a(f"s_load_dwordx2 s[92:93], s[0:1], {KA_DBG}")
    a("s_waitcnt lgkmcnt(0)")
    a("s_and_b32 s93, s93, 0xffff")
    a("s_mov_b32 s94, 256")
    a("s_mov_b32 s95, 0x00020000")
    a("s_lshl_b32 s98, s98, 6")
    a("v_mov_b32 v0, 0")
    for i in range(n):
        a(f"v_mov_b32 v1, s{64+2*i}")
        a(f"buffer_store_dword v1, v0, s[92:95], s98 offen offset:{4*i}")
        a("s_nop 1")
    a.label(f"L_{name}_nodump")

class Cnt:
    def __init__(s,a,kind):
        s.a=a; s.kind=kind; s.ops=[]; s.max=63 if kind=="vmcnt" else 15
    def issue(s,tag): s.ops.append(tag)
    def wait(s,tag):
        if tag not in s.ops: return
        i=len(s.ops)-1-s.ops[::-1].index(tag)
        n=len(s.ops)-1-i
        n=min(n,s.max)
        s.a(f"s_waitcnt {s.kind}({n})")
        s.ops=s.ops[len(s.ops)-n:] if n>0 else []
    def waitall(s):
        if s.ops: s.a(f"s_waitcnt {s.kind}(0)")
        s.ops=[]
```

```python
from common import *
import sys
NWG=256; THREADS=512; LDS=163840
WS_FLAG=0x1300000; SZ_FLAG=8192
FID=0; F2=1024; F3=2048; F4=3072
WS_ST2=0x1210000; SZ_ST2=7*S*8
PX,PWQKV,PWO,PBX,PWG,PWU,PWD,POUT,PDBG,PWS=4,6,8,10,12,14,16,18,20,22
SW,SX,SI=24,25,26
SMODE=27; SXC=3
SRD_FLAG=28
UB=57344; KVB=114688
SPIN_MAX=200000
NEG=f32bits(-1e30)
E=lambda k,d: int(os.environ.get(k,str(d)))
FORCE_SLOW=E('FORCE_SLOW',0); P1_ROT=E('P1_ROT',3); CS_DEPTH=E('CS_DEPTH',4); SLEEP2=E('SLEEP2',1); NOW=E('NOW',0)
SP_TOUCH=E('SP_TOUCH',1); ROT4=E('ROT4',1); ROTB=E('ROTB',1)
KN=["ka"]
def P(name): return f"L_{KN[0]}_{name}"
WS_DBG=0x1400000
STN=[]
def st(a,name,rt=False):
    if not STAMP: return
    name=KN[0]+"."+name
    if name not in STN: STN.append(name)
    i=[n for n in STN if n.startswith(KN[0])].index(name)
    a(f"s_mem{'real' if rt else ''}time s[64:65]")
    a("s_waitcnt lgkmcnt(0)")
    a(f"v_writelane_b32 v255, s64, {i}")
def dump(a):
    if not STAMP: return
    a("s_waitcnt vmcnt(0)")
    st(a,"end"); st(a,"rt1",True)
    srd(a,48,PWS,PWS+1,2*256*8*256,WS_DBG)
    a("v_lshlrev_b32 v2, 2, v0")
    a("s_lshl_b32 s36, s2, 11")
    if KN[0]=="kb": a(f"s_add_u32 s36, s36, {256*2048}")
    a("buffer_store_dword v255, v2, s[48:51], s36 offen")
_uid=[0]
def hstore(a, instrs):
    _uid[0]+=1; u=_uid[0]
    a(f"s_cmp_eq_u32 s{SMODE}, 0")
    a(f"s_cbranch_scc1 L_hs{u}a")
    for i in instrs: a(i)
    a(f"s_branch L_hs{u}b")
    a.label(f"L_hs{u}a")
    for i in instrs: a(i+" sc1")
    a.label(f"L_hs{u}b")
def signal(a, off_sgpr, tag):
    st(a,tag+"_pre")
    a("s_waitcnt vmcnt(0)")
    a("s_barrier")
    st(a,tag+"_bar")
    a(f"s_cmp_lg_u32 s{SW}, 1")
    a(f"s_cbranch_scc1 {P(tag+'_nosig')}")
    a("v_mov_b32 v2, 1")
    a("v_mov_b32 v3, 0")
    a("s_mov_b64 exec, 1")
    hstore(a,[f"buffer_store_dword v2, v3, s[{SRD_FLAG}:{SRD_FLAG+3}], s{off_sgpr} offen"])
    a("s_mov_b64 exec, -1")
    a.label(P(tag+'_nosig'))
def spin(a, voff, soff, mask_lo, mask_hi, tag, vd=2):
    a(f"s_mov_b32 exec_lo, {mask_lo}")
    a(f"s_mov_b32 exec_hi, {mask_hi}")
    a("s_mov_b32 s101, 0")
    a.label(P(tag+'_pl'))
    a(f"buffer_load_dword v{vd}, v{voff}, s[{SRD_FLAG}:{SRD_FLAG+3}], {soff} offen sc1")
    a("s_add_u32 s101, s101, 1")
    a("s_waitcnt vmcnt(0)")
    a(f"v_cmp_eq_u32 vcc, 0, v{vd}")
    a(f"s_cmp_gt_u32 s101, {SPIN_MAX}")
    a(f"s_cbranch_scc1 {P(tag+'_pd')}")
    a("s_nop 3")
    a(f"s_cbranch_vccz {P(tag+'_pd')}")
    a(f"s_sleep {SLEEP2}")
    a(f"s_branch {P(tag+'_pl')}")
    a.label(P(tag+'_pd'))
    a("s_mov_b64 exec, -1")
def poll(a, voff, soff, mask_lo, mask_hi, tag):
    st(a,tag+"_pre")
    a(f"s_cmp_lg_u32 s{SW}, 0")
    a(f"s_cbranch_scc1 {P(tag+'_pw')}")
    spin(a,voff,soff,mask_lo,mask_hi,tag)
    a.label(P(tag+'_pw'))
    a("s_barrier")
    st(a,tag)
def rot_idx(a, sd, n, srot, mod):
    a(f"s_add_u32 s{sd}, s{srot}, {n}")
    a(f"s_sub_u32 s100, s{sd}, {mod}")
    a(f"s_cmp_ge_u32 s{sd}, {mod}")
    a(f"s_cselect_b32 s{sd}, s100, s{sd}")
def prologue(a,name):
    kstart(a,name)
    a(f"s_cmp_ge_u32 s2, {NWG}")
    a(f"s_cbranch_scc1 {P('end')}")
    if STAMP: a("v_mov_b32 v255, 0")
    st(a,"rt0",True); st(a,"start")
    a("s_load_dwordx16 s[4:19], s[0:1], 0")
    a("s_load_dwordx4 s[20:23], s[0:1], 64")
    a("v_and_b32 v1, 63, v0")
    a("v_lshrrev_b32 v2, 6, v0")
    a(f"s_and_b32 s{SX}, s2, 7")
    a(f"v_readfirstlane_b32 s{SW}, v2")
    a(f"s_lshr_b32 s{SI}, s2, 3")
    sdiv(a,92,89,SI,7,93)
    a(f"s_lshl_b32 s88, s{SX}, 2")
    a("s_add_u32 s88, s88, s92")

def gen_ka(name):
    KN[0]="ka"
    a=Asm(); prologue(a,name)
    a(f"s_cmp_ge_u32 s{SI}, 28")
    a(f"s_cbranch_scc1 {P('spare')}")
    XB=0; WB=57344; WSLOT=24576
    RB,CB=88,89
    if P1_ROT==0: a("s_mov_b32 s76, 0")
    else:
        a("s_lshr_b32 s76, s92, 1")
        a(f"s_mul_i32 s76, s76, {P1_ROT}")
    for u in range(3):
        a(f"v_add_u32 v9, {64*u}, v1")
        a("v_mul_u32_u24 v10, 2731, v9")
        a("v_lshrrev_b32 v10, 16, v10")
        a("v_mul_u32_u24 v11, 24, v10")
        a("v_sub_u32 v11, v9, v11")
        a("v_lshrrev_b32 v12, 2, v11")
        a("v_bfe_u32 v13, v10, 1, 1")
        a("v_xor_b32 v12, v12, v13")
        a("v_and_b32 v11, 3, v11")
        a("v_lshlrev_b32 v11, 4, v11")
        a("v_lshl_add_u32 v11, v12, 6, v11")
        a("v_mul_u32_u24 v10, 2688, v10")
        a(f"v_add_u32 v{16+u}, v10, v11")
    a(f"s_mul_i32 s40, s{CB}, 384")
    a(f"s_and_b32 s43, s{SW}, 3")
    a(f"s_mul_i32 s44, s43, {16*2688}")
    a("s_add_u32 s44, s44, s40")
    a(f"s_mul_i32 s45, s43, 6144")
    a(f"s_add_u32 s45, s45, {WB}")
    for c in range(7): rot_idx(a,66+c,c,76,7)
    def w_ops(c,vm):
        slot=c%4
        a(f"s_mul_i32 s47, s{66+c}, {64*2688}")
        a("s_add_u32 s47, s47, s44")
        a(f"s_add_u32 s46, s47, {8*2688}")
        for u in range(6):
            a(f"s_add_u32 m0, s45, {slot*WSLOT+u*1024}")
            a("s_nop 0")
            a(f"buffer_load_dwordx4 v{16+u%3}, s[52:55], s{47 if u<3 else 46} offen lds"); vm.issue(("W",c))
    a(f"s_cmp_ge_u32 s{SW}, 4")
    a(f"s_cbranch_scc1 {P('C')}")
    a("v_lshrrev_b32 v5, 3, v1")
    a(f"s_lshl_b32 s38, s{SW}, 4")
    a("v_add_u32 v5, s38, v5")
    a("v_mul_u32_u24 v6, 896, v5")
    a("v_and_b32 v7, 7, v1")
    a("v_lshl_add_u32 v6, v7, 4, v6")
    a(f"v_add_u32 v15, {8*896}, v6")
    a(f"s_mul_i32 s38, s{RB}, {64*896}")
    a("v_bfe_u32 v8, v5, 1, 3")
    a("v_xor_b32 v8, v8, v7")
    a("v_lshlrev_b32 v8, 4, v8")
    a("v_lshl_add_u32 v8, v5, 7, v8")
    a("v_xor_b32 v14, 64, v8")
    a("v_add_u32 v14, 1024, v14")
    for i in range(7):
        a(f"s_lshl_b32 s{78+i}, s{66+i}, 7")
        a(f"s_add_u32 s{78+i}, s{78+i}, s38")
    a("v_mov_b32 v19, 0x3f803f80")
    a("s_mov_b32 s39, 0xffff0000")
    for r in range(20,28): a(f"v_mov_b32 v{r}, 0")
    a("s_waitcnt lgkmcnt(0)")
    st(a,"kernarg")
    srd(a,48,PX,PX+1,S*D*2)
    vm=Cnt(a,"vmcnt")
    XR=32; FR=96
    for i in range(7):
        for u in range(2):
            a(f"buffer_load_dwordx4 {v(XR+28*u+4*i,4)}, v{6 if u==0 else 15}, s[48:51], s{78+i} offen"); vm.issue(("x",u,i))
    srd(a,52,PWQKV,PWQKV+1,D*NQKV*2)
    for i in range(7):
        for u in range(2):
            vm.wait(("x",u,i))
            for d_ in range(4):
                x=XR+28*u+4*i+d_
                a(f"v_dot2c_f32_bf16 v{20+4*u+(d_&1)}, v{x}, v19")
                a(f"v_dot2c_f32_bf16 v{22+4*u+(d_&1)}, v{x}, v{x}")
    st(a,"x")
    a("s_nop 2")
    for u in range(2):
        a(f"v_add_f32 v{20+4*u}, v{20+4*u}, v{21+4*u}")
        a(f"v_add_f32 v{22+4*u}, v{22+4*u}, v{23+4*u}")
    for dpp in ("quad_perm:[1,0,3,2]","quad_perm:[2,3,0,1]","row_half_mirror"):
        a("s_nop 0")
        for r in (20,22,24,26):
            a(f"v_add_f32_dpp v{r}, v{r}, v{r} {dpp} row_mask:0xf bank_mask:0xf")
    for u in range(2):
        m=20+4*u; q=22+4*u
        a(f"v_mul_f32 v{m}, {f32bits(1.0/D)}, v{m}")
        a(f"v_mul_f32 v{q}, {f32bits(1.0/D)}, v{q}")
    for u in range(2):
        m=20+4*u; q=22+4*u
        a(f"v_fma_f32 v{q}, -v{m}, v{m}, v{q}")
        a(f"v_max_f32 v{q}, 0, v{q}")
        a(f"v_add_f32 v{q}, {f32bits(1e-5)}, v{q}")
        a(f"v_rsq_f32 v{q}, v{q}")
    a("s_nop 0")
    for u in range(2):
        m=20+4*u; q=22+4*u
        a(f"v_mul_f32 v{m}, v{m}, v{q}")
        a(f"v_sub_f32 v{m}, 0, v{m}")
    def norm(i):
        for u in range(2):
            for d_ in range(4):
                x=XR+28*u+4*i+d_; f=FR+2*d_+8*u
                a(f"v_lshlrev_b32 v{f}, 16, v{x}")
                a(f"v_and_b32 v{f+1}, s39, v{x}")
        for u in range(2):
            m=20+4*u; q=22+4*u
            for d_ in range(4):
                f=FR+2*d_+8*u
                a(f"v_pk_fma_f32 {v(f,2)}, {v(f,2)}, {v(q,2)}, {v(m,2)} op_sel_hi:[1,0,0]")
        for u in range(2):
            for d_ in range(4):
                x=XR+28*u+4*i+d_; f=FR+2*d_+8*u
                a(f"v_cvt_pk_bf16_f32 v{x}, v{f}, v{f+1}")
            a(f"ds_write_b128 v{8 if u==0 else 14}, {v(XR+28*u+4*i,4)} offset:{XB+8192*i}")
    sched=eval(os.environ.get('P1_SCHED','{0:[0,1],1:[2,3],2:[4,5],3:[6],4:[],5:[],6:[]}'))
    for c in range(7):
        for i in sched[c]: norm(i)
        if sched[c]: a("s_waitcnt lgkmcnt(0)")
        vm.wait(("W",c))
        st(a,f"L{c}")
        a("s_barrier")
        if c>=2 and c+2<7: w_ops(c+2,vm)
    dump(a)
    a("s_endpgm")
    a.label(P('C'))
    vm=Cnt(a,"vmcnt"); lg=Cnt(a,"lgkmcnt")
    a("s_and_b32 s36, s43, 1")
    a("s_lshr_b32 s37, s43, 1")
    a("s_waitcnt lgkmcnt(0)")
    srd(a,52,PWQKV,PWQKV+1,D*NQKV*2)
    w_ops(0,vm); w_ops(1,vm)
    srd(a,56,PWS,PWS+1,SZ_QKV,WS_QKV)
    a("v_and_b32 v3, 31, v1")
    a("s_lshl_b32 s60, s36, 5")
    a("v_add_u32 v3, s60, v3")
    a("v_lshrrev_b32 v4, 5, v1")
    a("v_bfe_u32 v5, v3, 1, 3")
    a("v_xor_b32 v5, v5, v4")
    a("v_lshlrev_b32 v5, 4, v5")
    a("v_lshl_add_u32 v10, v3, 7, v5")
    for s_ in range(1,4): a(f"v_xor_b32 v{10+s_}, {32*s_}, v10")
    a("v_bfe_u32 v5, v1, 2, 2")
    a("v_lshl_add_u32 v6, v4, 3, v5")
    a("v_mul_u32_u24 v6, 384, v6")
    a("v_bfe_u32 v7, v1, 4, 1")
    a("v_lshl_add_u32 v6, v7, 5, v6")
    a("v_and_b32 v7, 1, v1")
    a("v_lshl_add_u32 v6, v7, 4, v6")
    a("v_bfe_u32 v7, v1, 1, 1")
    a("v_lshl_add_u32 v6, v7, 3, v6")
    a(f"v_add_u32 v6, {WB}, v6")
    a("v_lshrrev_b32 v5, 1, v5")
    a("s_mul_i32 s60, s37, 3")
    for jj in range(3):
        a(f"s_add_u32 s61, s60, {jj}")
        a("v_xor_b32 v7, s61, v5")
        a(f"v_lshl_add_u32 v{20+jj}, v7, 6, v6")
        a(f"v_add_u32 v{24+jj}, {2*WSLOT}, v{20+jj}")
    a(f"s_mul_i32 s60, s{CB}, 192")
    a("s_mul_i32 s61, s37, 96")
    a("s_add_u32 s60, s60, s61")
    a(f"s_lshl_b32 s62, s{RB}, 1")
    a("s_add_u32 s62, s62, s36")
    a(f"s_mul_i32 s62, s62, {168*512}")
    a("s_lshl_b32 s61, s60, 6")
    a("s_add_u32 s62, s62, s61")
    a("s_add_u32 s63, s62, 4096")
    for jj in range(3):
        a(f"s_add_u32 s61, s60, {32*jj}")
        a("s_cmp_lt_u32 s61, 448")
        a(f"s_cselect_b32 s{78+2*jj}, {f32bits(DH**-0.5*LOG2E)}, {f32bits(1.0)}")
        a(f"s_mov_b32 s{79+2*jj}, s{78+2*jj}")
    a("v_lshlrev_b32 v5, 4, v1")
    ACC=32; BFq=96; AFq=112
    NK=28
    def rdB(k):
        c=k//4; s_=k%4; b=k%3
        a(f"ds_read_b128 {v(BFq+4*b,4)}, v{10+s_} offset:{XB+c*8192}"); lg.issue(("f",k,0))
    def rdA(k,jj):
        c=k//4; s_=k%4; slot=c%4; b=k%3
        ab=(20 if slot<2 else 24)+jj
        o=(slot&1)*WSLOT+s_*16*384
        a(f"ds_read_b64_tr_b16 {v(AFq+12*b+4*jj,2)}, v{ab} offset:{o}"); lg.issue(("f",k,jj))
        a(f"ds_read_b64_tr_b16 {v(AFq+12*b+4*jj+2,2)}, v{ab} offset:{o+4*384}"); lg.issue(("f",k,jj))
    vm.wait(("W",0))
    st(a,"C0")
    w_ops(2,vm)
    a("s_barrier")
    st(a,"B0")
    for k in (0,1):
        rdB(k)
        for jj in range(3): rdA(k,jj)
    for k in range(NK):
        b=k%3
        for jj in range(3):
            lg.wait(("f",k,jj))
            cin="0" if k==0 else v(ACC+16*jj,16)
            a(f"v_mfma_f32_32x32x16_bf16 {v(ACC+16*jj,16)}, {v(AFq+12*b+4*jj,4)}, {v(BFq+4*b,4)}, {cin}")
            if k+2<NK:
                if jj==0:
                    if (k+2)%4==0:
                        vm.wait(("W",(k+2)//4))
                        a("s_barrier")
                        if k+2==4: w_ops(3,vm)
                    rdB(k+2)
                rdA(k+2,jj)
    st(a,"mfma")
    a("s_nop 7")
    a("s_nop 1")
    OB=160
    for jj in range(3):
        for r in range(8): a(f"v_pk_mul_f32 {v(ACC+16*jj+2*r,2)}, {v(ACC+16*jj+2*r,2)}, s[{78+2*jj}:{79+2*jj}]")
        for r in range(8): a(f"v_cvt_pk_bf16_f32 v{OB+8*jj+r}, v{ACC+16*jj+2*r}, v{ACC+16*jj+2*r+1}")
        sb=62 if jj<2 else 63; o=2048*(jj%2)
        a(f"buffer_store_dwordx4 {v(OB+8*jj,4)}, v5, s[56:59], s{sb} offen offset:{o}")
        a(f"buffer_store_dwordx4 {v(OB+8*jj+4,4)}, v5, s[56:59], s{sb} offen offset:{o+1024}")
    st(a,"epi")
    dump(a)
    a("s_endpgm")
    a.label(P('spare'))
    a(f"s_sub_u32 s36, s{SI}, 28")
    a("s_lshl_b32 s36, s36, 3")
    a(f"s_add_u32 s36, s36, s{SX}")
    sdiv(a,37,38,36,14,39)
    a("v_lshrrev_b32 v3, 4, v1")
    a(f"s_lshl_b32 s39, s{SW}, 2")
    a("v_add_u32 v3, s39, v3")
    a("v_mul_u32_u24 v4, 3584, v3")
    a("v_and_b32 v5, 15, v1")
    a("v_lshl_add_u32 v4, v5, 4, v4")
    a("s_waitcnt lgkmcnt(0)")
    a("s_cmp_lt_u32 s36, 28")
    a(f"s_cbranch_scc1 {P('cs')}")
    a("s_cmp_lg_u32 s36, 31")
    a(f"s_cbranch_scc1 {P('end')}")
    srd(a,SRD_FLAG,PWS,PWS+1,SZ_FLAG,WS_FLAG)
    a("v_lshlrev_b32 v3, 4, v0")
    for r in range(4,8): a(f"v_mov_b32 v{r}, 0")
    a(f"buffer_store_dwordx4 v[4:7], v3, s[{SRD_FLAG}:{SRD_FLAG+3}], 0 offen")
    a("s_endpgm")
    a.label(P('cs'))
    a("s_cmp_eq_u32 s37, 0")
    a(f"s_cselect_b32 s40, s{PWG}, s{PWU}")
    a(f"s_cselect_b32 s41, s{PWG+1}, s{PWU+1}")
    srd(a,48,40,41,D*F*2)
    srd(a,52,PWS,PWS+1,SZ_CS,WS_CS)
    a("s_lshl_b32 s42, s38, 8")
    def csl(i):
        a(f"s_add_u32 s43, s42, {i*32*3584}")
        a(f"buffer_load_dwordx4 {v(32+4*i,4)}, v4, s[48:51], s43 offen")
    for i in range(CS_DEPTH): csl(i)
    for r in range(8): a(f"v_mov_b32 v{16+r}, 0")
    for i in range(14):
        a(f"s_waitcnt vmcnt({min(13-i,CS_DEPTH-1)})")
        if i+CS_DEPTH<14: csl(i+CS_DEPTH)
        for d_ in range(4):
            a(f"v_lshlrev_b32 v{24+2*d_}, 16, v{32+4*i+d_}")
            a(f"v_and_b32 v{25+2*d_}, 0xffff0000, v{32+4*i+d_}")
        for d_ in range(4):
            a(f"v_pk_add_f32 {v(16+2*d_,2)}, {v(16+2*d_,2)}, {v(24+2*d_,2)}")
    a("v_lshlrev_b32 v6, 9, v3")
    a("v_lshl_add_u32 v6, v5, 5, v6")
    a("ds_write_b128 v6, v[16:19]")
    a("ds_write_b128 v6, v[20:23] offset:16")
    a("s_waitcnt lgkmcnt(0)")
    a("s_barrier")
    a(f"s_cmp_ge_u32 s{SW}, 2")
    a(f"s_cbranch_scc1 {P('end')}")
    a("v_lshlrev_b32 v6, 2, v0")
    for i in range(32):
        a(f"ds_read_b32 v{32+i}, v6 offset:{512*i}")
        if i%8==7: a("s_waitcnt lgkmcnt(0)")
    a("v_mov_b32 v16, 0")
    a("v_mov_b32 v17, 0")
    for i in range(0,32,2):
        a(f"v_pk_add_f32 v[16:17], v[16:17], {v(32+i,2)}")
    a("v_add_f32 v16, v16, v17")
    a(f"s_mul_i32 s42, s37, {F*4}")
    a("s_lshl_b32 s43, s38, 9")
    a("s_add_u32 s42, s42, s43")
    a("buffer_store_dword v16, v6, s[52:55], s42 offen")
    dump(a)
    a.label(P('end'))
    a("s_endpgm")
    return a.text(), kdesc(name,256 if STAMP else 192)

def CH(c): return 16384*c if c<3 else (KVB+16384*(c-3) if c<6 else UB)
MISC=49152
NEARLY=5; NRES=19
def p5_group_addr(n):
    if n<5: return UB+16384+8192*n
    if n<19:
        k=n-5; return CH(k//2)+8192*(k%2)
    return p5_group_addr(n-19)
VW=254; VG=252; VU=253; VL16=251; VL4=250; VRES=240
S_GU=94; S_W1K=95; S_WD=78; S_WDROT=93; S_WOROT=77
SRD_G=80; SRD_U=84; SRD_WD=96
def gu_dma(a, c, m, vm=None):
    a(f"s_add_u32 m0, s{S_W1K}, {CH(c)+8192*m}")
    if m==1: a(f"s_add_u32 s92, s90, {64*3584}")
    else: a("s_nop 0")
    if not NOW:
        a(f"buffer_load_dwordx4 v{VG+m}, s[{SRD_G+4*m}:{SRD_G+3+4*m}], s90 offen lds")
        if vm: vm.issue(("W",c))
    if m==1:
        a("s_cmp_eq_u32 s92, s91")
        a(f"s_cselect_b32 s90, s{S_GU}, s92")
def wd_dma(a, n, vm=None):
    a(f"s_add_u32 m0, s{S_W1K}, {p5_group_addr(n)}")
    a(f"s_add_u32 s92, s79, {64*896}")
    if not NOW:
        a(f"buffer_load_dwordx4 v{VW}, s[{SRD_WD}:{SRD_WD+3}], s79 offen lds")
        if vm: vm.issue(("wd",n))
    a("s_cmp_eq_u32 s92, s75")
    a(f"s_cselect_b32 s79, s{S_WD}, s92")

def kb_phase2(a):
    KB=KVB; VB=KVB+24576
    HD,QB=36,37
    a(f"s_getreg_b32 s{SXC}, hwreg(HW_REG_XCC_ID)")
    a(f"s_lshr_b32 s{HD}, s{SI}, 1")
    a(f"s_and_b32 s38, s{SI}, 1")
    a(f"s_lshl_b32 s{QB}, s{SX}, 1")
    a(f"s_add_u32 s{QB}, s{QB}, s38")
    a(f"s_mul_i32 s40, s{HD}, 7")
    a("s_lshr_b32 s40, s40, 1")
    a(f"s_and_b32 s41, s{HD}, 1")
    a("v_and_b32 v3, 15, v1")
    a("v_lshrrev_b32 v4, 4, v1")
    a("v_lshlrev_b32 v5, 9, v4")
    a("v_lshl_add_u32 v6, v3, 4, v5")
    a("v_and_b32 v7, 1, v4")
    a("v_lshlrev_b32 v7, 3, v7")
    a("v_xor_b32 v7, v7, v3")
    a("v_lshl_add_u32 v7, v7, 4, v5")
    a(f"s_lshl_b32 s42, s{QB}, 3")
    a(f"s_add_u32 s42, s42, s{SW}")
    a("s_lshr_b32 s43, s42, 1")
    a(f"s_mul_i32 s43, s43, {168*512}")
    a("s_and_b32 s44, s42, 1")
    a("s_lshl_b32 s44, s44, 8")
    a("s_add_u32 s43, s43, s44")
    a("s_lshl_b32 s45, s40, 9")
    a("s_add_u32 s46, s43, s45")
    for u in range(3):
        a(f"s_mul_i32 s56, s{SW}, 3")
        a(f"s_add_u32 s56, s56, {u}")
        a(f"s_lshl_b32 s57, s{QB}, 3")
        a("s_add_u32 s57, s57, s56")
        a("s_sub_u32 s57, s57, 16")
        a("s_lshr_b32 s58, s57, 1")
        a(f"s_mul_i32 s58, s58, {168*512}")
        a("s_and_b32 s59, s57, 1")
        a("s_lshl_b32 s59, s59, 8")
        a("s_add_u32 s58, s58, s59")
        a("s_add_u32 s58, s58, s45")
        a("s_cmp_lt_i32 s57, 0")
        a("s_cselect_b32 s58, 0x40000000, s58")
        a(f"s_add_u32 s{66+2*u}, s58, {56*512}")
        a(f"s_add_u32 s{67+2*u}, s58, {112*512}")
    a(f"s_mul_i32 s60, s{SW}, 3072")
    a(f"s_add_u32 s60, s60, {KB}")
    a(f"s_and_b32 s{SXC}, s{SXC}, 15")
    a(f"s_add_u32 s{SXC}, s{SXC}, 1")
    QF=12
    a("s_waitcnt lgkmcnt(0)")
    st(a,"kernarg")
    srd(a,48,PWS,PWS+1,SZ_QKV,WS_QKV)
    a(f"buffer_load_dwordx4 {v(QF,4)}, v6, s[48:51], s46 offen")
    for u in range(3):
        a(f"s_add_u32 m0, s60, {1024*u}")
        a("s_nop 0")
        a(f"buffer_load_dwordx4 v6, s[48:51], s{66+2*u} offen lds")
    for u in range(3):
        a(f"s_add_u32 m0, s60, {VB-KB+1024*u}")
        a("s_nop 0")
        a(f"buffer_load_dwordx4 v7, s[48:51], s{67+2*u} offen lds")
    srd(a,SRD_FLAG,PWS,PWS+1,SZ_FLAG,WS_FLAG)
    a(f"s_lshl_b32 s74, s{SX}, 7")
    a(f"s_lshl_b32 s56, s{SI}, 2")
    a("s_add_u32 s56, s56, s74")
    a(f"s_cmp_eq_u32 s{SW}, 7")
    a("s_cselect_b32 s56, s56, 0x40000000")
    a(f"v_mov_b32 v2, s{SXC}")
    a("v_mov_b32 v8, 0")
    a("s_mov_b64 exec, 1")
    a(f"buffer_store_dword v2, v8, s[{SRD_FLAG}:{SRD_FLAG+3}], s56 offen sc1")
    a("s_mov_b64 exec, -1")
    srd(a,52,PWS,PWS+1,SZ_O,WS_O)
    M0R=16; M16=20
    a("v_lshlrev_b32 v8, 2, v4")
    a(f"v_mov_b32 v9, {NEG}")
    for r in range(4):
        a(f"v_add_u32 v10, {r}, v8")
        a("v_cmp_lt_u32 vcc, v3, v10")
        a("s_nop 1")
        a(f"v_cndmask_b32_e64 v{M0R+r}, v9, 0, vcc")
        a(f"v_cndmask_b32_e64 v{M16+r}, 0, v9, vcc")
    a(f"v_lshlrev_b32 v{VL16}, 4, v1")
    a(f"v_lshlrev_b32 v{VL4}, 2, v1")
    a(f"s_lshl_b32 s{S_W1K}, s{SW}, 10")
    a(f"s_add_u32 s47, s{S_W1K}, {KB}")
    a(f"v_add_u32 v10, s47, v{VL16}")
    a("v_bfe_u32 v24, v1, 2, 2")
    a("v_add_u32 v24, v24, v8")
    a("v_bfe_u32 v25, v1, 1, 1")
    a("v_lshlrev_b32 v26, 3, v25")
    a("v_xor_b32 v24, v24, v26")
    a("v_lshlrev_b32 v24, 4, v24")
    a("v_lshl_add_u32 v24, v25, 8, v24")
    a("v_and_b32 v25, 1, v1")
    a("v_lshl_add_u32 v24, v25, 3, v24")
    a(f"v_add_u32 v24, {VB-KB}, v24")
    a("v_add_u32 v11, s47, v24")
    a("s_lshr_b32 s43, s42, 1")
    a(f"s_mul_i32 s43, s43, {56*512}")
    a("s_add_u32 s43, s43, s44")
    a("s_add_u32 s43, s43, s45")
    a("v_lshrrev_b32 v28, 1, v4")
    a("v_lshlrev_b32 v28, 9, v28")
    a("v_lshl_add_u32 v28, v3, 4, v28")
    a("v_and_b32 v29, 1, v4")
    a("v_lshl_add_u32 v28, v29, 3, v28")
    a("v_add_u32 v29, 1024, v28")
    a("v_mov_b32 v30, 0x40000000")
    a("s_cmp_eq_u32 s41, 0")
    a("s_cselect_b32 s62, 64, 0")
    a("s_cselect_b32 s63, 3, 64")
    a("v_cmp_eq_u32 vcc, s62, v4")
    a("s_nop 1")
    a("v_cndmask_b32 v28, v28, v30, vcc")
    a("v_cmp_eq_u32 vcc, s63, v4")
    a("s_nop 1")
    a("v_cndmask_b32 v29, v29, v30, vcc")
    a(f"s_lshl_b32 s61, s{QB}, 4")
    a(f"s_add_u32 s61, s61, s{HD}")
    a("s_lshl_b32 s61, s61, 2")
    a(f"s_add_u32 s61, s61, {F2}")
    a(f"v_lshrrev_b32 v{VW}, 3, v1")
    a(f"v_mul_u32_u24 v150, 3584, v{VW}")
    a(f"v_mul_u32_u24 v{VW}, 896, v{VW}")
    a("v_bfe_u32 v151, v1, 2, 1")
    a("v_bfe_u32 v152, v1, 4, 1")
    a("v_xor_b32 v151, v151, v152")
    a(f"v_lshl_add_u32 v{VW}, v151, 6, v{VW}")
    a("v_and_b32 v151, 3, v1")
    a(f"v_lshl_add_u32 v{VW}, v151, 4, v{VW}")
    a("v_bfe_u32 v151, v1, 1, 2")
    a("v_xor_b32 v151, v151, v152")
    a("v_and_b32 v152, 1, v1")
    a("v_lshl_add_u32 v150, v152, 4, v150")
    a(f"v_lshl_add_u32 v{VG}, v151, 5, v150")
    a("v_xor_b32 v151, 2, v151")
    a(f"v_lshl_add_u32 v{VU}, v151, 5, v150")
    srd(a,SRD_G,PWG,PWG+1,D*F*2)
    srd(a,SRD_U,PWU,PWU+1,D*F*2)
    srd(a,SRD_WD,PWO,PWO+1,D*D*2)
    a(f"s_mul_i32 s{S_GU}, s{SW}, {8*3584}")
    a(f"s_lshl_b32 s56, s{SI}, 7")
    a(f"s_add_u32 s{S_GU}, s{S_GU}, s56")
    a(f"s_mul_i32 s{S_WD}, s{SW}, {8*896}")
    a("s_lshl_b32 s56, s89, 7")
    a(f"s_add_u32 s{S_WD}, s{S_WD}, s56")
    a(f"s_lshl_b32 s56, s92, 1")
    if ROTB: rot_idx(a,S_WOROT,"s56",89,7)
    else: a(f"s_mov_b32 s{S_WOROT}, s56")
    a("s_mul_i32 s56, s92, 7")
    a("s_lshl_b32 s57, s89, 2")
    if ROTB: rot_idx(a,S_WDROT,"s56",57,28)
    else: a(f"s_mov_b32 s{S_WDROT}, s56")
    a(f"s_cmp_ge_u32 s{SI}, 28")
    a(f"s_cselect_b32 s{S_GU}, 0x40000000, s{S_GU}")
    a(f"s_cselect_b32 s{S_WD}, 0x40000000, s{S_WD}")
    a(f"s_mul_i32 s90, s89, {64*3584 if ROT4 else 0}")
    a(f"s_add_u32 s90, s90, s{S_GU}")
    a(f"s_add_u32 s91, s{S_GU}, {7*64*3584}")
    a(f"s_mul_i32 s79, s{S_WOROT}, {64*896}")
    a(f"s_add_u32 s79, s79, s{S_WD}")
    a(f"s_add_u32 s75, s{S_WD}, {7*64*896}")
    a(f"s_and_b32 s56, s{SW}, 3")
    a(f"s_lshr_b32 s57, s{SW}, 2")
    a("s_lshl_b32 s58, s88, 1")
    a("s_add_u32 s58, s58, s57")
    a(f"s_mul_i32 s58, s58, {32*896}")
    a("s_lshl_b32 s59, s89, 7")
    a("s_add_u32 s58, s58, s59")
    a("s_lshl_b32 s59, s56, 5")
    a("s_add_u32 s73, s58, s59")
    a(f"s_cmp_ge_u32 s{SI}, 28")
    a("s_cselect_b32 s73, 0x40000000, s73")
    a("v_and_b32 v150, 31, v1")
    a("v_mul_u32_u24 v150, 896, v150")
    a("v_lshrrev_b32 v151, 5, v1")
    a("v_lshl_add_u32 v249, v151, 4, v150")
    srd(a,56,PX,PX+1,S*D*2)
    a("s_waitcnt vmcnt(7)")
    a("s_cmp_eq_u32 s41, 0")
    a(f"s_cbranch_scc0 {P('p2_odd')}")
    a("v_cmp_gt_u32 vcc, 48, v1")
    a("s_nop 1")
    a(f"v_cndmask_b32 v{QF+2}, 0, v{QF+2}, vcc")
    a(f"v_cndmask_b32 v{QF+3}, 0, v{QF+3}, vcc")
    a(f"s_branch {P('p2_qd')}")
    a.label(P('p2_odd'))
    a("v_cmp_le_u32 vcc, 16, v1")
    a("s_nop 1")
    a(f"v_cndmask_b32 v{QF+0}, 0, v{QF+0}, vcc")
    a(f"v_cndmask_b32 v{QF+1}, 0, v{QF+1}, vcc")
    a.label(P('p2_qd'))
    st(a,"setup")
    a("s_waitcnt vmcnt(1)")
    a("s_barrier")
    st(a,"kv")
    def wo_dma(n):
        a(f"s_add_u32 m0, s{S_W1K}, {UB+8192*n}")
        a(f"s_add_u32 s92, s79, {64*896}")
        if not NOW: a(f"buffer_load_dwordx4 v{VW}, s[{SRD_WD}:{SRD_WD+3}], s79 offen lds")
        a("s_cmp_eq_u32 s92, s75")
        a(f"s_cselect_b32 s79, s{S_WD}, s92")
    pf=[lambda n=n: wo_dma(n) for n in range(7)]
    pf+=[lambda: a(f"buffer_load_dwordx4 {v(VRES,4)}, v249, s[56:59], s73 offen")]
    pf+=[lambda k=k: gu_dma(a,k//2,k%2) for k in range(6)]
    def csdma():
        srd(a,68,PWS,PWS+1,SZ_CS,WS_CS)
        a(f"s_mul_i32 s66, s{SW}, {F*4}")
        a(f"s_lshl_b32 s67, s{SI}, 8")
        a("s_add_u32 s66, s66, s67")
        a(f"s_min_u32 s67, s{SW}, 2")
        a("s_lshl_b32 s67, s67, 8")
        a(f"s_add_u32 m0, s67, {MISC}")
        a("s_nop 0")
        a(f"buffer_load_dword v{VL4}, s[68:71], s66 offen lds")
    csdma()
    SR=32; KF=100; NB=6
    for t in range(NB):
        a(f"ds_read_b128 {v(KF+4*(t%NB),4)}, v10 offset:{1024*t}")
    for t in range(17):
        outstanding=min(17,t+NB)-t-1
        a(f"s_waitcnt lgkmcnt({outstanding})")
        cin = v(M0R,4) if t==0 else (v(M16,4) if t==16 else "0")
        a(f"v_mfma_f32_16x16x32_bf16 {v(SR+4*t,4)}, {v(KF+4*(t%NB),4)}, {v(QF,4)}, {cin}")
        if t+NB<17:
            a(f"ds_read_b128 {v(KF+4*(t%NB),4)}, v10 offset:{1024*(t+NB)}")
        if t%4==3: pf.pop(0)()
    VF=100
    def vread(j):
        b=VF+8*(j%3)
        for dt in range(2):
            a(f"ds_read_b64_tr_b16 {v(b+4*dt,2)}, v11 offset:{1024*(2*j)+512*dt}")
            if 2*j+1<17:
                a(f"ds_read_b64_tr_b16 {v(b+4*dt+2,2)}, v11 offset:{1024*(2*j+1)+512*dt}")
    vread(0); vread(1); vread(2)
    a("s_cmp_ge_u32 s42, 16")
    a(f"s_cbranch_scc1 {P('p2_nomask')}")
    a("s_sub_u32 s63, 16, s42")
    for t in range(16):
        a(f"s_cmp_le_u32 s63, {t}")
        a(f"s_cbranch_scc1 {P('p2_nomask')}")
        for r in range(4): a(f"v_mov_b32 v{SR+4*t+r}, v9")
    a.label(P('p2_nomask'))
    st(a,"qk")
    a(f"v_max3_f32 v24, v{SR}, v{SR+1}, v{SR+2}")
    a(f"v_max3_f32 v25, v{SR+3}, v{SR+4}, v{SR+5}")
    i=6; k=0
    while i+1<68:
        a(f"v_max3_f32 v{24+k}, v{24+k}, v{SR+i}, v{SR+i+1}")
        i+=2; k^=1
    a("v_max_f32 v24, v24, v25")
    a("v_mov_b32 v25, v24")
    a("s_nop 1")
    a("v_permlane32_swap_b32 v24, v25")
    a("v_max_f32 v24, v24, v25")
    a("v_mov_b32 v25, v24")
    a("s_nop 1")
    a("v_permlane16_swap_b32 v24, v25")
    a("v_max_f32 v24, v24, v25")
    a("v_mov_b32 v25, v24")
    a("v_mov_b32 v26, 0\nv_mov_b32 v27, 0")
    O0=124; O1=128; PP=132
    for j in range(9):
        nt = 2 if 2*j+1<17 else 1
        pb=PP+4*(j%2)
        regs=[SR+8*j+r for r in range(4*nt)]
        for r in regs[::2]: a(f"v_pk_add_f32 {v(r,2)}, {v(r,2)}, v[24:25] neg_lo:[0,1] neg_hi:[0,1]")
        for r in regs: a(f"v_exp_f32 v{r}, v{r}")
        if pf: pf.pop(0)()
        else: a("s_nop 0")
        for q,r in enumerate(regs[::2]):
            a(f"v_cvt_pk_bf16_f32 v{pb+q}, v{r}, v{r+1}")
        for r in regs[::2]: a(f"v_pk_add_f32 v[26:27], v[26:27], {v(r,2)}")
        rem=0
        for jj in range(j+1,min(9,j+3)):
            rem += 4 if 2*jj+1<17 else 2
        a(f"s_waitcnt lgkmcnt({rem})")
        b=VF+8*(j%3)
        c0 = "0" if j==0 else v(O0,4)
        c1 = "0" if j==0 else v(O1,4)
        if nt==2:
            a(f"v_mfma_f32_16x16x32_bf16 {v(O0,4)}, {v(b,4)}, {v(pb,4)}, {c0}")
            a(f"v_mfma_f32_16x16x32_bf16 {v(O1,4)}, {v(b+4,4)}, {v(pb,4)}, {c1}")
        else:
            a(f"v_mfma_f32_16x16x16_bf16 {v(O0,4)}, {v(b,2)}, {v(pb,2)}, {c0}")
            a(f"v_mfma_f32_16x16x16_bf16 {v(O1,4)}, {v(b+4,2)}, {v(pb,2)}, {c1}")
        if j+3<9: vread(j+3)
        if j==4:
            a(f"buffer_load_dword v31, v{VL4}, s[{SRD_FLAG}:{SRD_FLAG+3}], s74 offen sc1")
    npend=len(pf)
    while pf: pf.pop(0)()
    a("v_add_f32 v26, v26, v27")
    a("v_mov_b32 v27, v26")
    a("s_nop 1")
    a("v_permlane32_swap_b32 v26, v27")
    a("v_add_f32 v26, v26, v27")
    a("v_mov_b32 v27, v26")
    a("s_nop 1")
    a("v_permlane16_swap_b32 v26, v27")
    a("v_add_f32 v26, v26, v27")
    a("v_rcp_f32 v26, v26")
    a("s_nop 0")
    for r in range(8): a(f"v_mul_f32 v{O0+r}, v26, v{O0+r}")
    for r in range(4): a(f"v_cvt_pk_bf16_f32 v{PP+r}, v{O0+2*r}, v{O0+2*r+1}")
    a(f"s_waitcnt vmcnt({0 if NOW else 5})")
    a("v_cmp_eq_u32 vcc, 0, v31")
    a("s_nop 3")
    a("s_cmp_eq_u32 vcc_lo, 0")
    a(f"s_cbranch_scc1 {P('idok')}")
    spin(a,VL4,"s74",-1,0,"wid",vd=31)
    a.label(P('idok'))
    a(f"v_cmp_ne_u32 vcc, s{SXC}, v31")
    a("s_nop 3")
    a("s_cmp_eq_u32 vcc_lo, 0")
    a(f"s_cselect_b32 s{SMODE}, {0 if FORCE_SLOW else 1}, 0")
    hstore(a,[f"buffer_store_dwordx2 {v(PP,2)}, v28, s[52:55], s43 offen",
              f"buffer_store_dwordx2 {v(PP+2,2)}, v29, s[52:55], s43 offen"])
    signal(a,61,"s2")
    a(f"s_cmp_ge_u32 s{SI}, 28")
    a(f"s_cbranch_scc1 {P('spare2')}")

def kb_phase35(a, mode):
    k3=(mode==3); tag=f"p{mode}"
    KD=D if k3 else F
    NST=KD//64
    vm=Cnt(a,"vmcnt"); lg=Cnt(a,"lgkmcnt")
    KS,TG=36,37
    a(f"s_and_b32 s{KS}, s{SW}, 3")
    a(f"s_lshr_b32 s{TG}, s{SW}, 2")
    a(f"s_lshr_b32 s38, s{KS}, 1")
    a(f"s_and_b32 s39, s{KS}, 1")
    a("v_lshrrev_b32 v4, 5, v1")
    a("v_bfe_u32 v5, v1, 2, 2")
    a("v_lshl_add_u32 v8, v4, 3, v5")
    a("v_lshlrev_b32 v8, 7, v8")
    a("v_lshrrev_b32 v5, 1, v5")
    a("v_xor_b32 v5, s38, v5")
    a("v_lshl_add_u32 v8, v5, 6, v8")
    a("v_bfe_u32 v5, v1, 4, 1")
    a("v_xor_b32 v5, s39, v5")
    a("v_lshl_add_u32 v8, v5, 5, v8")
    a("v_and_b32 v5, 1, v1")
    a("v_lshl_add_u32 v8, v5, 4, v8")
    a("v_bfe_u32 v5, v1, 1, 1")
    a("v_lshl_add_u32 v8, v5, 3, v8")
    a(f"s_lshl_b32 s40, s{KS}, 11")
    a("v_add_u32 v8, s40, v8")
    a("v_xor_b32 v9, 64, v8")
    a("v_add_u32 v10, 0x10000, v8")
    a("v_add_u32 v11, 0x10000, v9")
    if not k3:
        a("v_add_u32 v12, 0x20000, v8")
        a("v_add_u32 v13, 0x20000, v9")
    if k3:
        srd(a,48,PWS,PWS+1,SZ_O,WS_O)
        srd(a,56,PWS,PWS+1,SZ_H,WS_H)
        srd(a,60,PWS,PWS+1,SZ_ST2,WS_ST2)
    else:
        srd(a,48,PWS,PWS+1,SZ_ACT,WS_ACT)
        srd(a,52,PWS,PWS+1,SZ_H,WS_H)
        srd(a,56,POUT,POUT+1,S*D*2)
    a("s_lshl_b32 s40, s88, 1")
    a(f"s_add_u32 s40, s40, s{TG}")
    a(f"s_mul_i32 s41, s40, {KD//16*1024}")
    a(f"s_lshl_b32 s42, s{KS}, 10")
    a("s_add_u32 s41, s41, s42")
    a(f"s_add_u32 s43, s41, {NST*4096}")
    a(f"s_lshl_b32 s42, s{S_WOROT if k3 else S_WDROT}, 12")
    a("s_add_u32 s42, s42, s41")
    a(f"s_mul_i32 s45, s40, {56*512}")
    a("s_lshl_b32 s46, s89, 12")
    a("s_add_u32 s45, s45, s46")
    a(f"s_lshl_b32 s46, s{KS}, 10")
    a("s_add_u32 s45, s45, s46")
    if k3: b0,b1=KVB,KVB+24576
    else: b0,b1=KVB,KVB+24576
    a(f"s_mul_i32 s46, s{TG}, {b1-b0}")
    a(f"s_add_u32 s46, s46, {b0}")
    a(f"s_mul_i32 s47, s{KS}, 6144")
    a("s_add_u32 s47, s47, s46")
    a(f"v_add_u32 v24, s47, v{VL16}")
    for j in (1,2,3):
        a(f"s_xor_b32 s47, s{KS}, {j}")
        a("s_mul_i32 s47, s47, 6144")
        a("s_add_u32 s47, s47, s46")
        a(f"v_add_u32 v{24+j}, s47, v{VL16}")
    RES=VRES if k3 else 16; ACC=32; AF=64; BF=96
    RB_=28 if not k3 else 7
    if k3:
        a(f"s_mul_i32 s44, s89, {S*8}")
        a(f"s_lshl_b32 s47, s{SW}, 9")
        a(f"s_add_u32 s47, s47, {MISC+1024}")
        a("v_lshlrev_b32 v28, 3, v1")
        a("v_add_u32 v28, s47, v28")
        a(f"s_lshl_b32 s47, s{TG}, 11")
        a(f"s_add_u32 s47, s47, {MISC+1024}")
        a("v_and_b32 v29, 31, v1")
        a("v_lshlrev_b32 v29, 3, v29")
        a("v_add_u32 v29, s47, v29")
        a("s_lshl_b32 s47, s40, 8")
        a("s_add_u32 s44, s44, s47")
        a("v_lshlrev_b32 v14, 3, v1")
        a("v_mov_b32 v15, 0x40000000")
        a("v_cmp_gt_u32 vcc, 32, v1")
        a("s_nop 1")
        a("v_cndmask_b32 v14, v15, v14, vcc")
        a("s_lshr_b32 s72, s88, 2")
        a("s_lshl_b32 s72, s72, 7")
        a(f"s_lshl_b32 s47, s{SI}, 2")
        a("s_add_u32 s72, s72, s47")
        a(f"s_add_u32 s72, s72, {F3}")
        a("s_lshr_b32 s46, s88, 1")
        a("s_lshl_b32 s46, s46, 6")
        a(f"s_add_u32 s46, s46, {F2}")
        a("s_mov_b32 s47, 0xffff0000")
        poll(a,VL4,"s46",0xffff,0,"w2")
    else:
        a(f"buffer_load_dwordx4 {v(RES,4)}, v{VL16}, s[52:55], s45 offen"); vm.issue("res")
        a(f"s_add_u32 s46, s74, {F4}")
        a("s_mov_b32 s47, 0xffff0000")
        poll(a,VL4,"s46",0x0fffffff,0,"w4")
    def bload(n):
        a("s_add_u32 s46, s42, 4096")
        a(f"buffer_load_dwordx4 {v(BF+4*(n%RB_),4)}, v{VL16}, s[48:51], s42 offen"); vm.issue(("B",n))
        a("s_cmp_eq_u32 s46, s43")
        a("s_cselect_b32 s42, s41, s46")
    def aread(n):
        ga = UB+8192*n if k3 else p5_group_addr(n)
        hi=ga>>16; o=ga&0xffff
        r0=8+2*hi
        b=AF+8*(n%2)
        for sl in range(2):
            a(f"ds_read_b64_tr_b16 {v(b+4*sl,2)}, v{r0+sl} offset:{o}"); lg.issue(("A",n))
            a(f"ds_read_b64_tr_b16 {v(b+4*sl+2,2)}, v{r0+sl} offset:{o+512}"); lg.issue(("A",n))
    LA0=7 if k3 else E('P5_LA0',4)
    for n in range(LA0): bload(n)
    nb=LA0
    aread(0)
    pend=[]
    NB1=15; NB2=NRES
    for n in range(NST):
        if n+1<NST:
            if not k3 and n+1==NB1:
                vm.wait(("wd",NRES-1)); a("s_barrier")
            if not k3 and n+1==NB2:
                vm.wait(("wd",27)); a("s_barrier")
            aread(n+1)
        vm.wait(("B",n)); lg.wait(("A",n))
        for sl in range(2):
            cin="0" if n==0 else v(ACC+16*sl,16)
            a(f"v_mfma_f32_32x32x16_bf16 {v(ACC+16*sl,16)}, {v(AF+8*(n%2)+4*sl,4)}, {v(BF+4*(n%RB_),4)}, {cin}")
        for _ in range(E('P5_BPS',2)):
            if nb<NST and nb-n<=E('P5_LAM',10): bload(nb); nb+=1
        if STAMP and n in (0,8,18): lg.waitall(); st(a,f"{tag}_n{n}")
        if not k3:
            if n==3: pend=list(range(NB1,NRES))
            if n==8:
                a("s_barrier")
                pend+=list(range(NRES,28))
            for _ in range(1 if n<8 else 2):
                if pend: wd_dma(a,pend.pop(0),vm)
    st(a,tag+"_mfma")
    a("s_nop 7")
    a("s_nop 3")
    for j in (1,2,3):
        for q in range(2): a(f"ds_write_b128 v24, {v(ACC+8*j+4*q,4)} offset:{(j-1)*2048+q*1024}")
    vm.wait("res")
    UBr=AF
    for d_ in range(4):
        a(f"v_lshlrev_b32 v{UBr+2*d_}, 16, v{RES+d_}")
        a(f"v_and_b32 v{UBr+2*d_+1}, s47, v{RES+d_}")
    for d_ in range(4):
        a(f"v_pk_add_f32 {v(ACC+2*d_,2)}, {v(ACC+2*d_,2)}, {v(UBr+2*d_,2)}")
    a("s_waitcnt lgkmcnt(0)")
    a("s_barrier")
    st(a,tag+"_red")
    PR=BF
    for j in (1,2,3):
        for q in range(2): a(f"ds_read_b128 {v(PR+8*j+4*q,4)}, v{24+j} offset:{(j-1)*2048+q*1024}")
    for j in (1,2,3):
        a(f"s_waitcnt lgkmcnt({2*(3-j)})")
        for d_ in range(4):
            a(f"v_pk_add_f32 {v(ACC+2*d_,2)}, {v(ACC+2*d_,2)}, {v(PR+8*j+2*d_,2)}")
    OB=16
    for d_ in range(4): a(f"v_cvt_pk_bf16_f32 v{OB+d_}, v{ACC+2*d_}, v{ACC+2*d_+1}")
    if k3:
        hstore(a,[f"buffer_store_dwordx4 {v(OB,4)}, v{VL16}, s[56:59], s45 offen"])
        a("v_mov_b32 v22, 0x3f803f80")
        a("v_mov_b32 v20, 0")
        a("v_mov_b32 v21, 0")
        for d_ in range(4):
            a(f"v_dot2c_f32_bf16 v20, v{OB+d_}, v22")
            a(f"v_dot2c_f32_bf16 v21, v{OB+d_}, v{OB+d_}")
        a("s_nop 2")
        a("ds_write_b64 v28, v[20:21]")
        a("s_waitcnt lgkmcnt(0)")
        a("s_barrier")
        a(f"s_cmp_lg_u32 s{KS}, 0")
        a(f"s_cbranch_scc1 {P('p3_nost')}")
        for q in range(8): a(f"ds_read_b64 {v(32+2*q,2)}, v29 offset:{256*q}")
        a("s_waitcnt lgkmcnt(0)")
        for q in (0,2,4,6): a(f"v_pk_add_f32 {v(32+2*q,2)}, {v(32+2*q,2)}, {v(34+2*q,2)}")
        a("v_pk_add_f32 v[32:33], v[32:33], v[36:37]")
        a("v_pk_add_f32 v[40:41], v[40:41], v[44:45]")
        a("v_pk_add_f32 v[32:33], v[32:33], v[40:41]")
        hstore(a,[f"buffer_store_dwordx2 v[32:33], v14, s[60:63], s44 offen"])
        a.label(P('p3_nost'))
        signal(a,72,"s3")
    else:
        a(f"buffer_store_dwordx4 {v(OB,4)}, v249, s[56:59], s73 offen")

def kb_phase4(a):
    vm=Cnt(a,"vmcnt"); lg=Cnt(a,"lgkmcnt")
    for m in range(2): gu_dma(a,3,m)
    srd(a,SRD_WD,PWD,PWD+1,F*D*2)
    a(f"s_mul_i32 s79, s{S_WDROT}, {64*896}")
    a(f"s_add_u32 s79, s79, s{S_WD}")
    a(f"s_add_u32 s75, s{S_WD}, {28*64*896}")
    a("v_lshrrev_b32 v4, 5, v1")
    a("v_bfe_u32 v5, v1, 2, 2")
    a("v_lshl_add_u32 v9, v4, 3, v5")
    a("v_lshlrev_b32 v9, 7, v9")
    a("v_bfe_u32 v10, v1, 4, 1")
    a("v_and_b32 v11, 1, v1")
    a("v_lshl_add_u32 v9, v11, 4, v9")
    a("v_bfe_u32 v11, v1, 1, 1")
    a("v_lshl_add_u32 v9, v11, 3, v9")
    a("v_lshrrev_b32 v5, 1, v5")
    a("v_lshl_add_u32 v5, v10, 1, v5")
    a("v_lshl_add_u32 v9, v5, 5, v9")
    a("v_lshl_add_u32 v12, v10, 13, v9")
    for t in range(1,4): a(f"v_xor_b32 v{12+t}, {32*t}, v12")
    a(f"v_add_u32 v25, {KVB}, v12")
    a("v_xor_b32 v26, 32, v25")
    a("v_xor_b32 v27, 64, v25")
    a("v_xor_b32 v29, 96, v25")
    a("v_and_b32 v17, 31, v1")
    a("v_lshlrev_b32 v17, 3, v17")
    a(f"v_mul_u32_u24 v16, {S*8}, v4")
    a("v_add_u32 v17, v17, v16")
    a("v_lshlrev_b32 v28, 5, v4")
    a(f"s_lshl_b32 s56, s{SX}, 3")
    a(f"s_add_u32 s56, s56, s{SW}")
    a(f"s_mul_i32 s57, s56, {28*1024}")
    a(f"s_add_u32 s54, s57, {7*4096}")
    a(f"s_mul_i32 s55, s89, {4096 if ROT4 else 0}")
    a("s_add_u32 s55, s55, s57")
    a("s_lshl_b32 s58, s56, 8")
    a(f"s_mul_i32 s59, s56, {112*1024}")
    a(f"s_lshl_b32 s60, s{SI}, 12")
    a("s_add_u32 s59, s59, s60")
    a(f"s_lshl_b32 s60, s{SI}, 8")
    a(f"s_add_u32 s61, s60, {F*4}")
    srd(a,36,PWS,PWS+1,SZ_H,WS_H)
    srd(a,40,PWS,PWS+1,SZ_ACT,WS_ACT)
    srd(a,44,PWS,PWS+1,SZ_ST2,WS_ST2)
    srd(a,48,PWS,PWS+1,SZ_CS,WS_CS)
    a(f"s_lshl_b32 s72, s{SI}, 2")
    a("s_add_u32 s72, s72, s74")
    a(f"s_add_u32 s72, s72, {F4}")
    a(f"s_add_u32 s62, s74, {F3}")
    poll(a,VL4,"s62",0x0fffffff,0,"w3")
    BFR=64; ACC=176; AF=32; STR=240
    def hb(c,s_):
        def f():
            if s_==0 and c>0:
                a("s_add_u32 s55, s55, 4096")
                a("s_cmp_eq_u32 s55, s54")
                a("s_cselect_b32 s55, s57, s55")
            a(f"buffer_load_dwordx4 {v(BFR+16*c+4*s_,4)}, v{VL16}, s[36:39], s55 offen offset:{1024*s_}"); vm.issue(("h",c,s_))
        return f
    hq=[hb(c,s_) for c in range(7) for s_ in range(4)]
    NPRE=E('P4_NPRE',6)
    for f in hq[:NPRE]: f()
    steps=[(c,s_,t) for c in range(5) for s_ in range(4) for t in range(4)]
    steps+=[(c,s_,t) for t in range(4) for c in (5,6) for s_ in range(4)]
    NS=len(steps); PF=6
    def rd(i):
        c,s_,t=steps[i]
        b=AF+4*(i%8); o=CH(c)+s_*2048
        ar=12+t
        if o>=KVB: o-=KVB; ar=(25,26,27,29)[t]
        a(f"ds_read_b64_tr_b16 {v(b,2)}, v{ar} offset:{o}"); lg.issue(("A",i))
        a(f"ds_read_b64_tr_b16 {v(b+2,2)}, v{ar} offset:{o+512}"); lg.issue(("A",i))
    fill={i:[] for i in range(NS)}
    HSP=float(os.environ.get('P4_HSP','3'))
    for k,f in enumerate(hq[NPRE:]): fill[int(1+HSP*k)].append(f)
    for sl in range(4):
        def f(sl=sl):
            a(f"s_add_u32 s62, s58, {sl*2*S*8}")
            a(f"buffer_load_dwordx2 {v(STR+2*sl,2)}, v17, s[44:47], s62 offen"); vm.issue("st")
        fill[2+3*sl].append(f)
    for k in range(6): fill[3+6*k].append(lambda k=k: gu_dma(a,4+k//2,k%2,vm))
    def stats_math():
        vm.wait("st")
        for sl in range(1,4):
            a(f"v_add_f32 v{STR}, v{STR}, v{STR+2*sl}")
            a(f"v_add_f32 v{STR+1}, v{STR+1}, v{STR+2*sl+1}")
        a(f"v_mov_b32 v18, v{STR}")
        a(f"v_mov_b32 v19, v{STR+1}")
        a("s_nop 1")
        a(f"v_permlane32_swap_b32 v18, v{STR}")
        a(f"v_permlane32_swap_b32 v19, v{STR+1}")
        a(f"v_add_f32 v18, v18, v{STR}")
        a(f"v_add_f32 v19, v19, v{STR+1}")
        a(f"v_mul_f32 v18, {f32bits(1.0/D)}, v18")
        a(f"v_mul_f32 v19, {f32bits(1.0/D)}, v19")
        a("v_fma_f32 v19, -v18, v18, v19")
        a("v_max_f32 v19, 0, v19")
        a(f"v_add_f32 v24, {f32bits(1e-5)}, v19")
        a("v_rsq_f32 v20, v24")
        a("v_sub_f32 v22, 0, v18")
        a(f"v_mul_f32 v20, {f32bits(-LOG2E)}, v20")
    fill[40].append(stats_math)
    def rdcs(t):
        CS=64+16*t
        for q,o in enumerate((64*t,64*t+16,256+64*t,256+64*t+16)):
            a(f"ds_read_b128 {v(CS+4*q,4)}, v28 offset:{MISC+o}"); lg.issue(("cs",t))
    for t in range(4): fill[70+2*t].append(lambda t=t: rdcs(t))
    for n in range(NEARLY): fill[42+6*n].append(lambda n=n: wd_dma(a,n,vm))
    def epi_ops(t):
        CS=64+16*t; T0=CS; OB=CS+8
        A0=ACC+16*t
        ops=[]
        ops.append(lambda: a("s_nop 3"))
        for r in range(8): ops.append(lambda r=r: a(f"v_fmac_f32 v{A0+r}, v22, v{CS+r}"))
        for r in range(8): ops.append(lambda r=r: a(f"v_mul_f32 v{T0+r}, v20, v{A0+r}"))
        for r in range(8):
            ops.append(lambda r=r: a(f"v_exp_f32 v{T0+r}, v{T0+r}"))
            ops.append(lambda r=r: a(f"v_fmac_f32 v{A0+8+r}, v22, v{CS+8+r}"))
        for r in range(8): ops.append(lambda r=r: a(f"v_fma_f32 v{T0+r}, v{T0+r}, v24, v24"))
        for r in range(8):
            ops.append(lambda r=r: a(f"v_rcp_f32 v{T0+r}, v{T0+r}"))
            ops.append(lambda r=r: a(f"v_mul_f32 v{A0+r}, v{A0+r}, v{A0+8+r}"))
        for r in range(8): ops.append(lambda r=r: a(f"v_mul_f32 v{A0+r}, v{A0+r}, v{T0+r}"))
        for p in range(4): ops.append(lambda p=p: a(f"v_cvt_pk_bf16_f32 v{OB+p}, v{A0+2*p}, v{A0+2*p+1}"))
        def stv():
            hstore(a,[f"buffer_store_dwordx4 {v(OB,4)}, v{VL16}, s[40:43], s59 offen offset:{1024*t}"]); vm.issue("out")
        ops.append(stv)
        return ops
    tail_ops=[]
    for t in range(4):
        ops=epi_ops(t)
        base=80+8*t
        if t<3:
            nb=base+8
            per=-(-len(ops)//7)
            for k,f in enumerate(ops): fill[nb+1+k//per].append(f)
        else: tail_ops=ops
    fill[80].insert(0,lambda: a("s_barrier"))
    for n in range(NEARLY,15): fill[81+(n-NEARLY)].append(lambda n=n: wd_dma(a,n,vm))
    for i in range(PF): rd(i)
    landed=2
    for i in range(NS):
        c,s_,t=steps[i]
        vm.wait(("h",c,s_))
        lg.wait(("A",i))
        cin="0" if (c==0 and s_==0) else v(ACC+16*t,16)
        a(f"v_mfma_f32_32x32x16_bf16 {v(ACC+16*t,16)}, {v(AF+4*(i%8),4)}, {v(BFR+16*c+4*s_,4)}, {cin}")
        for f in fill[i]: f()
        if i+PF<NS:
            nc=steps[i+PF][0]
            if nc>landed:
                tgt = nc if nc<5 else 6
                vm.wait(("W",tgt)); a("s_barrier"); landed=tgt
            rd(i+PF)
        if STAMP and i in (0,15,31,47,63,79,95,111): lg.waitall(); st(a,f"p4_i{i}")
    a("s_nop 7")
    a("s_nop 1")
    for f in tail_ops: f()
    signal(a,72,"s4")

def gen_kb(name):
    KN[0]="kb"
    a=Asm(); prologue(a,name)
    kb_phase2(a)
    kb_phase35(a,3)
    kb_phase4(a)
    kb_phase35(a,5)
    dump(a)
    a.label(P('end'))
    a("s_endpgm")
    a.label(P('spare2'))
    if SP_TOUCH:
        a("v_lshlrev_b32 v9, 7, v1")
        a(f"s_sub_u32 s36, s{SI}, 28")
        a("s_lshl_b32 s36, s36, 3")
        a(f"s_add_u32 s36, s36, s{SW}")
        a("s_bitcmp1_b32 s36, 0")
        a(f"s_cselect_b32 s{SRD_G}, s{SRD_U}, s{SRD_G}")
        a(f"s_cselect_b32 s{SRD_G+1}, s{SRD_U+1}, s{SRD_G+1}")
        a("s_lshr_b32 s37, s36, 1")
        a("s_lshl_b32 s37, s37, 13")
        q0=256*3584//8192
        for i in range(6):
            a(f"s_add_u32 s38, s37, {(q0+16*i)*8192}")
            a(f"buffer_load_dword v{30+i}, v9, s[{SRD_G}:{SRD_G+3}], s38 offen")
        srd(a,SRD_WD,PWD,PWD+1,F*D*2)
        a("s_lshl_b32 s37, s36, 13")
        for i in range(7):
            a(f"s_add_u32 s38, s37, {i*32*8192}")
            a(f"buffer_load_dword v{40+i}, v9, s[{SRD_WD}:{SRD_WD+3}], s38 offen")
    dump(a)
    a("s_endpgm")
    return a.text(), kdesc(name,256)

def build(path):
    hdr=open("sequential_preLN__sliding_block__swiglu_ffn__prompt.s.ref").read().split("; Override launch")[0]
    ta,da=gen_ka("ka_kernel"); tb,db=gen_kb("kb_kernel")
    L=[hdr.rstrip(), f"; @launch kernel=ka_kernel grid=({NWG},1,1) block=({THREADS},1,1) lds=155648",
       f"; @launch kernel=kb_kernel grid=({NWG},1,1) block=({THREADS},1,1) lds={LDS}",
       '.amdgcn_target "amdgcn-amd-amdhsa--gfx950"\n.text', ta, tb, '.section .rodata,"a"', da, db]
    open(path,"w").write("\n".join(L)+"\n")
    if STAMP: open(path+".names","w").write(" ".join(STN))
if __name__=="__main__":
    build(sys.argv[1])
```

```python
from common import *
import sys
NWG=256; THREADS=512; LDS=163840
WS_FLAG=0x1300000; SZ_FLAG=8192
FID=0; F2=1024; F3=2048; F4=3072
WS_ST2=0x1210000; SZ_ST2=7*S*8
PX,PWQKV,PWO,PBX,PWG,PWU,PWD,POUT,PDBG,PWS=4,6,8,10,12,14,16,18,20,22
SW,SX,SI=24,25,26
SMODE=27; SXC=3
SRD_FLAG=28
UB=57344; KVB=114688
SPIN_MAX=200000
NEG=f32bits(-1e30)
E=lambda k,d: int(os.environ.get(k,str(d)))
FORCE_SLOW=E('FORCE_SLOW',0); P1_ROT=E('P1_ROT',3); CS_DEPTH=E('CS_DEPTH',4); SLEEP2=E('SLEEP2',1); NOW=E('NOW',0)
KA_TOUCH_AT=E('KA_TOUCH_AT',4); TOUCH=E('TOUCH',1); P2_CH=E('P2_CH',2); SP_TOUCH=E('SP_TOUCH',1); ROT4=E('ROT4',1); ROTB=E('ROTB',1)
TBS=114688; SZ_QA=64*TBS; WS_QA=WS_ACT
FN=4096
KN=["ka"]
def P(name): return f"L_{KN[0]}_{name}"
WS_DBG=0x1400000
STN=[]
def st(a,name,rt=False):
    if not STAMP: return
    name=KN[0]+"."+name
    if name not in STN: STN.append(name)
    i=[n for n in STN if n.startswith(KN[0])].index(name)
    a(f"s_mem{'real' if rt else ''}time s[64:65]")
    a("s_waitcnt lgkmcnt(0)")
    a(f"v_writelane_b32 v255, s64, {i}")
def dump(a):
    if not STAMP: return
    a("s_waitcnt vmcnt(0)")
    st(a,"end"); st(a,"rt1",True)
    srd(a,48,PWS,PWS+1,2*256*8*256,WS_DBG)
    a("v_lshlrev_b32 v2, 2, v0")
    a("s_lshl_b32 s36, s2, 11")
    if KN[0]=="kb": a(f"s_add_u32 s36, s36, {256*2048}")
    a("buffer_store_dword v255, v2, s[48:51], s36 offen")
_uid=[0]
def hstore(a, instrs):
    _uid[0]+=1; u=_uid[0]
    a(f"s_cmp_eq_u32 s{SMODE}, 0")
    a(f"s_cbranch_scc1 L_hs{u}a")
    for i in instrs: a(i)
    a(f"s_branch L_hs{u}b")
    a.label(f"L_hs{u}a")
    for i in instrs: a(i+" sc1")
    a.label(f"L_hs{u}b")
def signal(a, off_sgpr, tag):
    st(a,tag+"_pre")
    a("s_waitcnt vmcnt(0)")
    a("s_barrier")
    st(a,tag+"_bar")
    a(f"s_cmp_lg_u32 s{SW}, 1")
    a(f"s_cbranch_scc1 {P(tag+'_nosig')}")
    a("v_mov_b32 v2, 1")
    a("v_mov_b32 v3, 0")
    a("s_mov_b64 exec, 1")
    hstore(a,[f"buffer_store_dword v2, v3, s[{SRD_FLAG}:{SRD_FLAG+3}], s{off_sgpr} offen"])
    a("s_mov_b64 exec, -1")
    a.label(P(tag+'_nosig'))
def spin(a, voff, soff, mask_lo, mask_hi, tag, vd=2):
    a(f"s_mov_b32 exec_lo, {mask_lo}")
    a(f"s_mov_b32 exec_hi, {mask_hi}")
    a("s_mov_b32 s101, 0")
    a.label(P(tag+'_pl'))
    a(f"buffer_load_dword v{vd}, v{voff}, s[{SRD_FLAG}:{SRD_FLAG+3}], {soff} offen sc1")
    a("s_add_u32 s101, s101, 1")
    a("s_waitcnt vmcnt(0)")
    a(f"v_cmp_eq_u32 vcc, 0, v{vd}")
    a(f"s_cmp_gt_u32 s101, {SPIN_MAX}")
    a(f"s_cbranch_scc1 {P(tag+'_pd')}")
    a("s_nop 3")
    a(f"s_cbranch_vccz {P(tag+'_pd')}")
    a(f"s_sleep {SLEEP2}")
    a(f"s_branch {P(tag+'_pl')}")
    a.label(P(tag+'_pd'))
    a("s_mov_b64 exec, -1")
def poll(a, voff, soff, mask_lo, mask_hi, tag):
    st(a,tag+"_pre")
    a(f"s_cmp_lg_u32 s{SW}, 0")
    a(f"s_cbranch_scc1 {P(tag+'_pw')}")
    spin(a,voff,soff,mask_lo,mask_hi,tag)
    a.label(P(tag+'_pw'))
    a("s_barrier")
    st(a,tag)
def rot_idx(a, sd, n, srot, mod):
    a(f"s_add_u32 s{sd}, s{srot}, {n}")
    a(f"s_sub_u32 s100, s{sd}, {mod}")
    a(f"s_cmp_ge_u32 s{sd}, {mod}")
    a(f"s_cselect_b32 s{sd}, s100, s{sd}")
def prologue(a,name):
    kstart(a,name)
    a(f"s_cmp_ge_u32 s2, {NWG}")
    a(f"s_cbranch_scc1 {P('end')}")
    if STAMP: a("v_mov_b32 v255, 0")
    st(a,"rt0",True); st(a,"start")
    a("s_load_dwordx16 s[4:19], s[0:1], 0")
    a("s_load_dwordx4 s[20:23], s[0:1], 64")
    a("v_and_b32 v1, 63, v0")
    a("v_lshrrev_b32 v2, 6, v0")
    a(f"s_and_b32 s{SX}, s2, 7")
    a(f"v_readfirstlane_b32 s{SW}, v2")
    a(f"s_lshr_b32 s{SI}, s2, 3")
    sdiv(a,92,89,SI,7,93)
    a(f"s_lshl_b32 s88, s{SX}, 2")
    a("s_add_u32 s88, s88, s92")

def gen_ka(name):
    KN[0]="ka"
    a=Asm(); prologue(a,name)
    a(f"s_cmp_ge_u32 s{SI}, 28")
    a(f"s_cbranch_scc1 {P('spare')}")
    XB=0; WB=57344; WSLOT=24576
    RB,CB=88,89
    if P1_ROT==0: a("s_mov_b32 s76, 0")
    else:
        a("s_lshr_b32 s76, s92, 1")
        a(f"s_mul_i32 s76, s76, {P1_ROT}")
    for u in range(3):
        a(f"v_add_u32 v9, {64*u}, v1")
        a("v_mul_u32_u24 v10, 2731, v9")
        a("v_lshrrev_b32 v10, 16, v10")
        a("v_mul_u32_u24 v11, 24, v10")
        a("v_sub_u32 v11, v9, v11")
        a("v_lshrrev_b32 v12, 2, v11")
        a("v_bfe_u32 v13, v10, 1, 1")
        a("v_xor_b32 v12, v12, v13")
        a("v_and_b32 v11, 3, v11")
        a("v_lshlrev_b32 v11, 4, v11")
        a("v_lshl_add_u32 v11, v12, 6, v11")
        a("v_mul_u32_u24 v10, 2688, v10")
        a(f"v_add_u32 v{16+u}, v10, v11")
    a(f"s_mul_i32 s40, s{CB}, 384")
    a(f"s_and_b32 s43, s{SW}, 3")
    a(f"s_mul_i32 s44, s43, {16*2688}")
    a("s_add_u32 s44, s44, s40")
    a(f"s_mul_i32 s45, s43, 6144")
    a(f"s_add_u32 s45, s45, {WB}")
    for c in range(7): rot_idx(a,66+c,c,76,7)
    def w_ops(c,vm):
        slot=c%4
        a(f"s_mul_i32 s47, s{66+c}, {64*2688}")
        a("s_add_u32 s47, s47, s44")
        a(f"s_add_u32 s46, s47, {8*2688}")
        for u in range(6):
            a(f"s_add_u32 m0, s45, {slot*WSLOT+u*1024}")
            a("s_nop 0")
            a(f"buffer_load_dwordx4 v{16+u%3}, s[52:55], s{47 if u<3 else 46} offen lds"); vm.issue(("W",c))
    a(f"s_cmp_ge_u32 s{SW}, 4")
    a(f"s_cbranch_scc1 {P('C')}")
    a("v_lshrrev_b32 v5, 3, v1")
    a(f"s_lshl_b32 s38, s{SW}, 4")
    a("v_add_u32 v5, s38, v5")
    a("v_mul_u32_u24 v6, 896, v5")
    a("v_and_b32 v7, 7, v1")
    a("v_lshl_add_u32 v6, v7, 4, v6")
    a(f"v_add_u32 v15, {8*896}, v6")
    a(f"s_mul_i32 s38, s{RB}, {64*896}")
    a("v_bfe_u32 v8, v5, 1, 3")
    a("v_xor_b32 v8, v8, v7")
    a("v_lshlrev_b32 v8, 4, v8")
    a("v_lshl_add_u32 v8, v5, 7, v8")
    a("v_xor_b32 v14, 64, v8")
    a("v_add_u32 v14, 1024, v14")
    for i in range(7):
        a(f"s_lshl_b32 s{78+i}, s{66+i}, 7")
        a(f"s_add_u32 s{78+i}, s{78+i}, s38")
    a("v_mov_b32 v19, 0x3f803f80")
    a("s_mov_b32 s39, 0xffff0000")
    for r in range(20,28): a(f"v_mov_b32 v{r}, 0")
    a("s_waitcnt lgkmcnt(0)")
    st(a,"kernarg")
    srd(a,48,PX,PX+1,S*D*2)
    vm=Cnt(a,"vmcnt")
    XR=32; FR=96
    for i in range(7):
        for u in range(2):
            a(f"buffer_load_dwordx4 {v(XR+28*u+4*i,4)}, v{6 if u==0 else 15}, s[48:51], s{78+i} offen"); vm.issue(("x",u,i))
    srd(a,52,PWQKV,PWQKV+1,D*NQKV*2)
    for i in range(7):
        for u in range(2):
            vm.wait(("x",u,i))
            for d_ in range(4):
                x=XR+28*u+4*i+d_
                a(f"v_dot2c_f32_bf16 v{20+4*u+(d_&1)}, v{x}, v19")
                a(f"v_dot2c_f32_bf16 v{22+4*u+(d_&1)}, v{x}, v{x}")
    st(a,"x")
    a("s_nop 2")
    for u in range(2):
        a(f"v_add_f32 v{20+4*u}, v{20+4*u}, v{21+4*u}")
        a(f"v_add_f32 v{22+4*u}, v{22+4*u}, v{23+4*u}")
    for dpp in ("quad_perm:[1,0,3,2]","quad_perm:[2,3,0,1]","row_half_mirror"):
        a("s_nop 0")
        for r in (20,22,24,26):
            a(f"v_add_f32_dpp v{r}, v{r}, v{r} {dpp} row_mask:0xf bank_mask:0xf")
    for u in range(2):
        m=20+4*u; q=22+4*u
        a(f"v_mul_f32 v{m}, {f32bits(1.0/D)}, v{m}")
        a(f"v_mul_f32 v{q}, {f32bits(1.0/D)}, v{q}")
    for u in range(2):
        m=20+4*u; q=22+4*u
        a(f"v_fma_f32 v{q}, -v{m}, v{m}, v{q}")
        a(f"v_max_f32 v{q}, 0, v{q}")
        a(f"v_add_f32 v{q}, {f32bits(1e-5)}, v{q}")
        a(f"v_rsq_f32 v{q}, v{q}")
    a("s_nop 0")
    for u in range(2):
        m=20+4*u; q=22+4*u
        a(f"v_mul_f32 v{m}, v{m}, v{q}")
        a(f"v_sub_f32 v{m}, 0, v{m}")
    def norm(i):
        for u in range(2):
            for d_ in range(4):
                x=XR+28*u+4*i+d_; f=FR+2*d_+8*u
                a(f"v_lshlrev_b32 v{f}, 16, v{x}")
                a(f"v_and_b32 v{f+1}, s39, v{x}")
        for u in range(2):
            m=20+4*u; q=22+4*u
            for d_ in range(4):
                f=FR+2*d_+8*u
                a(f"v_pk_fma_f32 {v(f,2)}, {v(f,2)}, {v(q,2)}, {v(m,2)} op_sel_hi:[1,0,0]")
        for u in range(2):
            for d_ in range(4):
                x=XR+28*u+4*i+d_; f=FR+2*d_+8*u
                a(f"v_cvt_pk_bf16_f32 v{x}, v{f}, v{f+1}")
            a(f"ds_write_b128 v{8 if u==0 else 14}, {v(XR+28*u+4*i,4)} offset:{XB+8192*i}")
    sched=eval(os.environ.get('P1_SCHED','{0:[0,1],1:[2,3],2:[4,5],3:[6],4:[],5:[],6:[]}'))
    for c in range(7):
        for i in sched[c]: norm(i)
        if sched[c]: a("s_waitcnt lgkmcnt(0)")
        vm.wait(("W",c))
        st(a,f"L{c}")
        a("s_barrier")
        if c>=2 and c+2<7: w_ops(c+2,vm)
        if c==KA_TOUCH_AT:
            srd(a,56,PWS,PWS+1,SZ_QA,WS_QA)
            a("v_lshlrev_b32 v9, 7, v1")
            a("v_mov_b32 v10, 0x40000000")
            a("v_cmp_gt_u32 vcc, 48, v1")
            a(f"s_lshl_b32 s60, s{RB}, 1")
            a("s_lshr_b32 s61, s43, 1")
            a("v_cndmask_b32 v9, v10, v9, vcc")
            a("s_add_u32 s60, s60, s61")
            a(f"s_mul_i32 s60, s60, {TBS}")
            a(f"s_mul_i32 s61, s{CB}, 12288")
            a("s_add_u32 s60, s60, s61")
            a("s_and_b32 s61, s43, 1")
            a("s_mul_i32 s61, s61, 6144")
            a("s_add_u32 s60, s60, s61")
            a("buffer_load_dword v30, v9, s[56:59], s60 offen sc1"); vm.issue("t")
    dump(a)
    a("s_endpgm")
    a.label(P('C'))
    vm=Cnt(a,"vmcnt"); lg=Cnt(a,"lgkmcnt")
    a("s_and_b32 s36, s43, 1")
    a("s_lshr_b32 s37, s43, 1")
    a("s_waitcnt lgkmcnt(0)")
    srd(a,52,PWQKV,PWQKV+1,D*NQKV*2)
    w_ops(0,vm); w_ops(1,vm)
    srd(a,56,PWS,PWS+1,SZ_QA,WS_QA)
    a("v_and_b32 v3, 31, v1")
    a("s_lshl_b32 s60, s36, 5")
    a("v_add_u32 v3, s60, v3")
    a("v_lshrrev_b32 v4, 5, v1")
    a("v_bfe_u32 v5, v3, 1, 3")
    a("v_xor_b32 v5, v5, v4")
    a("v_lshlrev_b32 v5, 4, v5")
    a("v_lshl_add_u32 v10, v3, 7, v5")
    for s_ in range(1,4): a(f"v_xor_b32 v{10+s_}, {32*s_}, v10")
    a("v_bfe_u32 v5, v1, 2, 2")
    a("v_lshl_add_u32 v6, v4, 3, v5")
    a("v_mul_u32_u24 v6, 384, v6")
    a("v_bfe_u32 v7, v1, 4, 1")
    a("v_lshl_add_u32 v6, v7, 5, v6")
    a("v_and_b32 v7, 1, v1")
    a("v_lshl_add_u32 v6, v7, 4, v6")
    a("v_bfe_u32 v7, v1, 1, 1")
    a("v_lshl_add_u32 v6, v7, 3, v6")
    a(f"v_add_u32 v6, {WB}, v6")
    a("v_lshrrev_b32 v5, 1, v5")
    a("s_mul_i32 s60, s37, 3")
    for jj in range(3):
        a(f"s_add_u32 s61, s60, {jj}")
        a("v_xor_b32 v7, s61, v5")
        a(f"v_lshl_add_u32 v{20+jj}, v7, 6, v6")
        a(f"v_add_u32 v{24+jj}, {2*WSLOT}, v{20+jj}")
    a(f"s_mul_i32 s60, s{CB}, 192")
    a("s_mul_i32 s61, s37, 96")
    a("s_add_u32 s60, s60, s61")
    a(f"s_lshl_b32 s62, s{RB}, 1")
    a("s_add_u32 s62, s62, s36")
    a(f"s_mul_i32 s62, s62, {TBS}")
    a("s_lshl_b32 s61, s60, 6")
    a("s_add_u32 s62, s62, s61")
    a("s_add_u32 s63, s62, 4096")
    for jj in range(3):
        a(f"s_add_u32 s61, s60, {32*jj}")
        a("s_cmp_lt_u32 s61, 448")
        a(f"s_cselect_b32 s{78+2*jj}, {f32bits(DH**-0.5*LOG2E)}, {f32bits(1.0)}")
        a(f"s_mov_b32 s{79+2*jj}, s{78+2*jj}")
    a("v_lshlrev_b32 v5, 4, v1")
    ACC=32; BFq=96; AFq=112
    NK=28
    def rdB(k):
        c=k//4; s_=k%4; b=k%3
        a(f"ds_read_b128 {v(BFq+4*b,4)}, v{10+s_} offset:{XB+c*8192}"); lg.issue(("f",k,0))
    def rdA(k,jj):
        c=k//4; s_=k%4; slot=c%4; b=k%3
        ab=(20 if slot<2 else 24)+jj
        o=(slot&1)*WSLOT+s_*16*384
        a(f"ds_read_b64_tr_b16 {v(AFq+12*b+4*jj,2)}, v{ab} offset:{o}"); lg.issue(("f",k,jj))
        a(f"ds_read_b64_tr_b16 {v(AFq+12*b+4*jj+2,2)}, v{ab} offset:{o+4*384}"); lg.issue(("f",k,jj))
    vm.wait(("W",0))
    st(a,"C0")
    w_ops(2,vm)
    a("s_barrier")
    st(a,"B0")
    for k in (0,1):
        rdB(k)
        for jj in range(3): rdA(k,jj)
    for k in range(NK):
        b=k%3
        for jj in range(3):
            lg.wait(("f",k,jj))
            cin="0" if k==0 else v(ACC+16*jj,16)
            a(f"v_mfma_f32_32x32x16_bf16 {v(ACC+16*jj,16)}, {v(AFq+12*b+4*jj,4)}, {v(BFq+4*b,4)}, {cin}")
            if k+2<NK:
                if jj==0:
                    if (k+2)%4==0:
                        vm.wait(("W",(k+2)//4))
                        a("s_barrier")
                        if k+2==4: w_ops(3,vm)
                    rdB(k+2)
                rdA(k+2,jj)
    st(a,"mfma")
    a("s_nop 7")
    a("s_nop 1")
    OB=160
    for jj in range(3):
        for r in range(8): a(f"v_pk_mul_f32 {v(ACC+16*jj+2*r,2)}, {v(ACC+16*jj+2*r,2)}, s[{78+2*jj}:{79+2*jj}]")
        for r in range(8): a(f"v_cvt_pk_bf16_f32 v{OB+8*jj+r}, v{ACC+16*jj+2*r}, v{ACC+16*jj+2*r+1}")
        sb=62 if jj<2 else 63; o=2048*(jj%2)
        a(f"buffer_store_dwordx4 {v(OB+8*jj,4)}, v5, s[56:59], s{sb} offen offset:{o}")
        a(f"buffer_store_dwordx4 {v(OB+8*jj+4,4)}, v5, s[56:59], s{sb} offen offset:{o+1024}")
    st(a,"epi")
    dump(a)
    a("s_endpgm")
    a.label(P('spare'))
    a(f"s_sub_u32 s36, s{SI}, 28")
    a("s_lshl_b32 s36, s36, 3")
    a(f"s_add_u32 s36, s36, s{SX}")
    sdiv(a,37,38,36,14,39)
    a("v_lshrrev_b32 v3, 4, v1")
    a(f"s_lshl_b32 s39, s{SW}, 2")
    a("v_add_u32 v3, s39, v3")
    a("v_mul_u32_u24 v4, 3584, v3")
    a("v_and_b32 v5, 15, v1")
    a("v_lshl_add_u32 v4, v5, 4, v4")
    a("s_waitcnt lgkmcnt(0)")
    a("s_cmp_lt_u32 s36, 28")
    a(f"s_cbranch_scc1 {P('cs')}")
    a("s_cmp_lg_u32 s36, 31")
    a(f"s_cbranch_scc1 {P('end')}")
    srd(a,SRD_FLAG,PWS,PWS+1,SZ_FLAG,WS_FLAG)
    a("v_lshlrev_b32 v3, 4, v0")
    for r in range(4,8): a(f"v_mov_b32 v{r}, 0")
    a(f"buffer_store_dwordx4 v[4:7], v3, s[{SRD_FLAG}:{SRD_FLAG+3}], 0 offen")
    a("s_endpgm")
    a.label(P('cs'))
    a("s_cmp_eq_u32 s37, 0")
    a(f"s_cselect_b32 s40, s{PWG}, s{PWU}")
    a(f"s_cselect_b32 s41, s{PWG+1}, s{PWU+1}")
    srd(a,48,40,41,D*F*2)
    srd(a,52,PWS,PWS+1,SZ_CS,WS_CS)
    a("s_lshl_b32 s42, s38, 8")
    def csl(i):
        a(f"s_add_u32 s43, s42, {i*32*3584}")
        a(f"buffer_load_dwordx4 {v(32+4*i,4)}, v4, s[48:51], s43 offen")
    for i in range(CS_DEPTH): csl(i)
    for r in range(8): a(f"v_mov_b32 v{16+r}, 0")
    for i in range(14):
        a(f"s_waitcnt vmcnt({min(13-i,CS_DEPTH-1)})")
        if i+CS_DEPTH<14: csl(i+CS_DEPTH)
        for d_ in range(4):
            a(f"v_lshlrev_b32 v{24+2*d_}, 16, v{32+4*i+d_}")
            a(f"v_and_b32 v{25+2*d_}, 0xffff0000, v{32+4*i+d_}")
        for d_ in range(4):
            a(f"v_pk_add_f32 {v(16+2*d_,2)}, {v(16+2*d_,2)}, {v(24+2*d_,2)}")
    a("v_lshlrev_b32 v6, 9, v3")
    a("v_lshl_add_u32 v6, v5, 5, v6")
    a("ds_write_b128 v6, v[16:19]")
    a("ds_write_b128 v6, v[20:23] offset:16")
    a("s_waitcnt lgkmcnt(0)")
    a("s_barrier")
    a(f"s_cmp_ge_u32 s{SW}, 2")
    a(f"s_cbranch_scc1 {P('end')}")
    a("v_lshlrev_b32 v6, 2, v0")
    for i in range(32):
        a(f"ds_read_b32 v{32+i}, v6 offset:{512*i}")
        if i%8==7: a("s_waitcnt lgkmcnt(0)")
    a("v_mov_b32 v16, 0")
    a("v_mov_b32 v17, 0")
    for i in range(0,32,2):
        a(f"v_pk_add_f32 v[16:17], v[16:17], {v(32+i,2)}")
    a("v_add_f32 v16, v16, v17")
    a(f"s_mul_i32 s42, s37, {F*4}")
    a("s_lshl_b32 s43, s38, 9")
    a("s_add_u32 s42, s42, s43")
    a("buffer_store_dword v16, v6, s[52:55], s42 offen")
    dump(a)
    a.label(P('end'))
    a("s_endpgm")
    return a.text(), kdesc(name,256 if STAMP else 192)

def CH(c): return 16384*c if c<3 else (KVB+16384*(c-3) if c<6 else UB)
MISC=49152
NEARLY=5; NRES=19
def p5_group_addr(n):
    if n<5: return UB+16384+8192*n
    if n<19:
        k=n-5; return CH(k//2)+8192*(k%2)
    return p5_group_addr(n-19)
VW=254; VG=252; VU=253; VL16=251; VL4=250; VRES=240
S_GU=94; S_W1K=95; S_WD=78; S_WDROT=93; S_WOROT=77
SRD_G=80; SRD_U=84; SRD_WD=96
def gu_dma(a, c, m, vm=None):
    a(f"s_add_u32 m0, s{S_W1K}, {CH(c)+8192*m}")
    if m==1: a(f"s_add_u32 s92, s90, {64*3584}")
    else: a("s_nop 0")
    if not NOW:
        a(f"buffer_load_dwordx4 v{VG+m}, s[{SRD_G+4*m}:{SRD_G+3+4*m}], s90 offen lds")
        if vm: vm.issue(("W",c))
    if m==1:
        a("s_cmp_eq_u32 s92, s91")
        a(f"s_cselect_b32 s90, s{S_GU}, s92")
def wd_dma(a, n, vm=None):
    a(f"s_add_u32 m0, s{S_W1K}, {p5_group_addr(n)}")
    a(f"s_add_u32 s92, s79, {64*896}")
    if not NOW:
        a(f"buffer_load_dwordx4 v{VW}, s[{SRD_WD}:{SRD_WD+3}], s79 offen lds")
        if vm: vm.issue(("wd",n))
    a("s_cmp_eq_u32 s92, s75")
    a(f"s_cselect_b32 s79, s{S_WD}, s92")

def kb_phase2(a):
    KB=KVB; VB=KVB+24576
    HD,QB=36,37
    a(f"s_getreg_b32 s{SXC}, hwreg(HW_REG_XCC_ID)")
    a(f"s_lshr_b32 s{HD}, s{SI}, 1")
    a(f"s_and_b32 s38, s{SI}, 1")
    a(f"s_lshl_b32 s{QB}, s{SX}, 1")
    a(f"s_add_u32 s{QB}, s{QB}, s38")
    a(f"s_mul_i32 s40, s{HD}, 7")
    a("s_lshr_b32 s40, s40, 1")
    a(f"s_and_b32 s41, s{HD}, 1")
    a("v_and_b32 v3, 15, v1")
    a("v_lshrrev_b32 v4, 4, v1")
    a("v_lshlrev_b32 v5, 9, v4")
    a("v_lshl_add_u32 v6, v3, 4, v5")
    a("v_and_b32 v7, 1, v4")
    a("v_lshlrev_b32 v7, 3, v7")
    a("v_xor_b32 v7, v7, v3")
    a("v_lshl_add_u32 v7, v7, 4, v5")
    a(f"s_lshl_b32 s42, s{QB}, 3")
    a(f"s_add_u32 s42, s42, s{SW}")
    a("s_lshr_b32 s43, s42, 1")
    a(f"s_mul_i32 s43, s43, {TBS}")
    a("s_and_b32 s44, s42, 1")
    a("s_lshl_b32 s44, s44, 8")
    a("s_add_u32 s43, s43, s44")
    a("s_lshl_b32 s45, s40, 9")
    a("s_add_u32 s46, s43, s45")
    for u in range(3):
        a(f"s_mul_i32 s56, s{SW}, 3")
        a(f"s_add_u32 s56, s56, {u}")
        a(f"s_lshl_b32 s57, s{QB}, 3")
        a("s_add_u32 s57, s57, s56")
        a("s_sub_u32 s57, s57, 16")
        a("s_lshr_b32 s58, s57, 1")
        a(f"s_mul_i32 s58, s58, {TBS}")
        a("s_and_b32 s59, s57, 1")
        a("s_lshl_b32 s59, s59, 8")
        a("s_add_u32 s58, s58, s59")
        a("s_add_u32 s58, s58, s45")
        a("s_cmp_lt_i32 s57, 0")
        a("s_cselect_b32 s58, 0x40000000, s58")
        a(f"s_add_u32 s{66+2*u}, s58, {56*512}")
        a(f"s_add_u32 s{67+2*u}, s58, {112*512}")
    a(f"s_mul_i32 s60, s{SW}, 3072")
    a(f"s_add_u32 s60, s60, {KB}")
    a(f"s_and_b32 s{SXC}, s{SXC}, 15")
    a(f"s_add_u32 s{SXC}, s{SXC}, 1")
    QF=12
    a("s_waitcnt lgkmcnt(0)")
    st(a,"kernarg")
    srd(a,48,PWS,PWS+1,SZ_QA,WS_QA)
    a(f"buffer_load_dwordx4 {v(QF,4)}, v6, s[48:51], s46 offen sc1")
    for u in range(3):
        a(f"s_add_u32 m0, s60, {1024*u}")
        a("s_nop 0")
        a(f"buffer_load_dwordx4 v6, s[48:51], s{66+2*u} offen sc1 lds")
    for u in range(3):
        a(f"s_add_u32 m0, s60, {VB-KB+1024*u}")
        a("s_nop 0")
        a(f"buffer_load_dwordx4 v7, s[48:51], s{67+2*u} offen sc1 lds")
    srd(a,SRD_FLAG,PWS,PWS+1,SZ_FLAG,WS_FLAG)
    a(f"s_lshl_b32 s74, s{SX}, 7")
    a(f"s_lshl_b32 s56, s{SI}, 2")
    a("s_add_u32 s56, s56, s74")
    a(f"s_cmp_eq_u32 s{SW}, 7")
    a("s_cselect_b32 s56, s56, 0x40000000")
    a(f"v_mov_b32 v2, s{SXC}")
    a("v_mov_b32 v8, 0")
    a("s_mov_b64 exec, 1")
    a(f"buffer_store_dword v2, v8, s[{SRD_FLAG}:{SRD_FLAG+3}], s56 offen sc1")
    a("s_mov_b64 exec, -1")
    M0R=16; M16=20
    a("v_lshlrev_b32 v8, 2, v4")
    a(f"v_mov_b32 v9, {NEG}")
    for r in range(4):
        a(f"v_add_u32 v10, {r}, v8")
        a("v_cmp_lt_u32 vcc, v3, v10")
        a("s_nop 1")
        a(f"v_cndmask_b32_e64 v{M0R+r}, v9, 0, vcc")
        a(f"v_cndmask_b32_e64 v{M16+r}, 0, v9, vcc")
    a(f"v_lshlrev_b32 v{VL16}, 4, v1")
    a(f"v_lshlrev_b32 v{VL4}, 2, v1")
    a(f"s_lshl_b32 s{S_W1K}, s{SW}, 10")
    a(f"s_add_u32 s47, s{S_W1K}, {KB}")
    a(f"v_add_u32 v10, s47, v{VL16}")
    a("v_bfe_u32 v24, v1, 2, 2")
    a("v_add_u32 v24, v24, v8")
    a("v_bfe_u32 v25, v1, 1, 1")
    a("v_lshlrev_b32 v26, 3, v25")
    a("v_xor_b32 v24, v24, v26")
    a("v_lshlrev_b32 v24, 4, v24")
    a("v_lshl_add_u32 v24, v25, 8, v24")
    a("v_and_b32 v25, 1, v1")
    a("v_lshl_add_u32 v24, v25, 3, v24")
    a(f"v_add_u32 v24, {VB-KB}, v24")
    a("v_add_u32 v11, s47, v24")
    a("v_lshrrev_b32 v28, 1, v4")
    a("v_lshlrev_b32 v28, 9, v28")
    a("v_lshl_add_u32 v28, v3, 4, v28")
    a("v_and_b32 v29, 1, v4")
    a("v_lshl_add_u32 v28, v29, 3, v28")
    a("v_add_u32 v29, 1024, v28")
    a("v_mov_b32 v30, 0x40000000")
    a("s_cmp_eq_u32 s41, 0")
    a("s_cselect_b32 s62, 64, 0")
    a("s_cselect_b32 s63, 3, 64")
    a("v_cmp_eq_u32 vcc, s62, v4")
    a("s_nop 1")
    a("v_cndmask_b32 v28, v28, v30, vcc")
    a("v_cmp_eq_u32 vcc, s63, v4")
    a("s_nop 1")
    a("v_cndmask_b32 v29, v29, v30, vcc")
    a(f"s_lshl_b32 s61, s{QB}, 4")
    a(f"s_add_u32 s61, s61, s{HD}")
    a("s_lshl_b32 s61, s61, 2")
    a(f"s_add_u32 s61, s61, {F2}")
    a(f"v_lshrrev_b32 v{VW}, 3, v1")
    a(f"v_mul_u32_u24 v150, 3584, v{VW}")
    a(f"v_mul_u32_u24 v{VW}, 896, v{VW}")
    a("v_bfe_u32 v151, v1, 2, 1")
    a("v_bfe_u32 v152, v1, 4, 1")
    a("v_xor_b32 v151, v151, v152")
    a(f"v_lshl_add_u32 v{VW}, v151, 6, v{VW}")
    a("v_and_b32 v151, 3, v1")
    a(f"v_lshl_add_u32 v{VW}, v151, 4, v{VW}")
    a("v_bfe_u32 v151, v1, 1, 2")
    a("v_xor_b32 v151, v151, v152")
    a("v_and_b32 v152, 1, v1")
    a("v_lshl_add_u32 v150, v152, 4, v150")
    a(f"v_lshl_add_u32 v{VG}, v151, 5, v150")
    a("v_xor_b32 v151, 2, v151")
    a(f"v_lshl_add_u32 v{VU}, v151, 5, v150")
    srd(a,SRD_G,PWG,PWG+1,D*F*2)
    srd(a,SRD_U,PWU,PWU+1,D*F*2)
    srd(a,SRD_WD,PWO,PWO+1,D*D*2)
    a(f"s_mul_i32 s{S_GU}, s{SW}, {8*3584}")
    a(f"s_lshl_b32 s56, s{SI}, 7")
    a(f"s_add_u32 s{S_GU}, s{S_GU}, s56")
    a(f"s_mul_i32 s{S_WD}, s{SW}, {8*896}")
    a("s_lshl_b32 s56, s89, 7")
    a(f"s_add_u32 s{S_WD}, s{S_WD}, s56")
    a(f"s_lshl_b32 s56, s92, 1")
    if ROTB: rot_idx(a,S_WOROT,"s56",89,7)
    else: a(f"s_mov_b32 s{S_WOROT}, s56")
    a("s_mul_i32 s56, s92, 7")
    a("s_lshl_b32 s57, s89, 2")
    if ROTB: rot_idx(a,S_WDROT,"s56",57,28)
    else: a(f"s_mov_b32 s{S_WDROT}, s56")
    a(f"s_cmp_ge_u32 s{SI}, 28")
    a(f"s_cselect_b32 s{S_GU}, 0x40000000, s{S_GU}")
    a(f"s_cselect_b32 s{S_WD}, 0x40000000, s{S_WD}")
    a(f"s_mul_i32 s90, s89, {64*3584 if ROT4 else 0}")
    a(f"s_add_u32 s90, s90, s{S_GU}")
    a(f"s_add_u32 s91, s{S_GU}, {7*64*3584}")
    a(f"s_mul_i32 s79, s{S_WOROT}, {64*896}")
    a(f"s_add_u32 s79, s79, s{S_WD}")
    a(f"s_add_u32 s75, s{S_WD}, {7*64*896}")
    a(f"s_and_b32 s56, s{SW}, 3")
    a(f"s_lshr_b32 s57, s{SW}, 2")
    a("s_lshl_b32 s58, s88, 1")
    a("s_add_u32 s58, s58, s57")
    a(f"s_mul_i32 s58, s58, {32*896}")
    a("s_lshl_b32 s59, s89, 7")
    a("s_add_u32 s58, s58, s59")
    a("s_lshl_b32 s59, s56, 5")
    a("s_add_u32 s73, s58, s59")
    a(f"s_cmp_ge_u32 s{SI}, 28")
    a("s_cselect_b32 s73, 0x40000000, s73")
    a("v_and_b32 v150, 31, v1")
    a("v_mul_u32_u24 v150, 896, v150")
    a("v_lshrrev_b32 v151, 5, v1")
    a("v_lshl_add_u32 v249, v151, 4, v150")
    srd(a,56,PX,PX+1,S*D*2)
    a("s_waitcnt vmcnt(7)")
    a("s_cmp_eq_u32 s41, 0")
    a(f"s_cbranch_scc0 {P('p2_odd')}")
    a("v_cmp_gt_u32 vcc, 48, v1")
    a("s_nop 1")
    a(f"v_cndmask_b32 v{QF+2}, 0, v{QF+2}, vcc")
    a(f"v_cndmask_b32 v{QF+3}, 0, v{QF+3}, vcc")
    a(f"s_branch {P('p2_qd')}")
    a.label(P('p2_odd'))
    a("v_cmp_le_u32 vcc, 16, v1")
    a("s_nop 1")
    a(f"v_cndmask_b32 v{QF+0}, 0, v{QF+0}, vcc")
    a(f"v_cndmask_b32 v{QF+1}, 0, v{QF+1}, vcc")
    a.label(P('p2_qd'))
    st(a,"setup")
    a("s_waitcnt vmcnt(1)")
    a("s_barrier")
    st(a,"kv")
    def wo_dma(n):
        a(f"s_add_u32 m0, s{S_W1K}, {UB+8192*n}")
        a(f"s_add_u32 s92, s79, {64*896}")
        if not NOW: a(f"buffer_load_dwordx4 v{VW}, s[{SRD_WD}:{SRD_WD+3}], s79 offen lds")
        a("s_cmp_eq_u32 s92, s75")
        a(f"s_cselect_b32 s79, s{S_WD}, s92")
    pf=[lambda n=n: wo_dma(n) for n in range(7)]
    pf+=[lambda: a(f"buffer_load_dwordx4 {v(VRES,4)}, v249, s[56:59], s73 offen")]
    pf+=[lambda k=k: gu_dma(a,k//2,k%2) for k in range(2*P2_CH)]
    def htouch():
        srd(a,68,PWS,PWS+1,SZ_H,WS_H)
        a(f"s_lshr_b32 s66, s{SW}, 2")
        a("s_lshl_b32 s67, s88, 1")
        a("s_add_u32 s66, s66, s67")
        a(f"s_mul_i32 s67, s66, {56*512}")
        a("s_lshl_b32 s72, s89, 12")
        a("s_add_u32 s67, s67, s72")
        a(f"s_and_b32 s72, s{SW}, 3")
        a("s_lshl_b32 s72, s72, 10")
        a("s_add_u32 s67, s67, s72")
        a(f"s_cmp_ge_u32 s{SI}, 28")
        a("s_cselect_b32 s67, 0x40000000, s67")
        a(f"buffer_load_dwordx4 v[144:147], v{VL16}, s[68:71], s67 offen sc1")
        srd(a,68,PWS,PWS+1,SZ_ST2,WS_ST2)
        a(f"s_mul_i32 s67, s89, {S*8}")
        a("s_lshl_b32 s66, s66, 8")
        a("s_add_u32 s67, s67, s66")
        a(f"buffer_load_dword v148, v{VL4}, s[68:71], s67 offen sc1")
    if TOUCH: htouch()
    def csdma():
        srd(a,68,PWS,PWS+1,SZ_CS,WS_CS)
        a(f"s_mul_i32 s66, s{SW}, {F*4}")
        a(f"s_lshl_b32 s67, s{SI}, 8")
        a("s_add_u32 s66, s66, s67")
        a(f"s_min_u32 s67, s{SW}, 2")
        a("s_lshl_b32 s67, s67, 8")
        a(f"s_add_u32 m0, s67, {MISC}")
        a("s_nop 0")
        a(f"buffer_load_dword v{VL4}, s[68:71], s66 offen lds")
    csdma()
    SR=32; KF=100; NB=6
    for t in range(NB):
        a(f"ds_read_b128 {v(KF+4*(t%NB),4)}, v10 offset:{1024*t}")
    for t in range(17):
        outstanding=min(17,t+NB)-t-1
        a(f"s_waitcnt lgkmcnt({outstanding})")
        cin = v(M0R,4) if t==0 else (v(M16,4) if t==16 else "0")
        a(f"v_mfma_f32_16x16x32_bf16 {v(SR+4*t,4)}, {v(KF+4*(t%NB),4)}, {v(QF,4)}, {cin}")
        if t+NB<17:
            a(f"ds_read_b128 {v(KF+4*(t%NB),4)}, v10 offset:{1024*(t+NB)}")
        if t%3==2 and pf: pf.pop(0)()
    VF=100
    def vread(j):
        b=VF+8*(j%3)
        for dt in range(2):
            a(f"ds_read_b64_tr_b16 {v(b+4*dt,2)}, v11 offset:{1024*(2*j)+512*dt}")
            if 2*j+1<17:
                a(f"ds_read_b64_tr_b16 {v(b+4*dt+2,2)}, v11 offset:{1024*(2*j+1)+512*dt}")
    vread(0); vread(1); vread(2)
    a("s_cmp_ge_u32 s42, 16")
    a(f"s_cbranch_scc1 {P('p2_nomask')}")
    a("s_sub_u32 s63, 16, s42")
    for t in range(16):
        a(f"s_cmp_le_u32 s63, {t}")
        a(f"s_cbranch_scc1 {P('p2_nomask')}")
        for r in range(4): a(f"v_mov_b32 v{SR+4*t+r}, v9")
    a.label(P('p2_nomask'))
    st(a,"qk")
    a(f"v_max3_f32 v24, v{SR}, v{SR+1}, v{SR+2}")
    a(f"v_max3_f32 v25, v{SR+3}, v{SR+4}, v{SR+5}")
    i=6; k=0
    while i+1<68:
        a(f"v_max3_f32 v{24+k}, v{24+k}, v{SR+i}, v{SR+i+1}")
        i+=2; k^=1
    a("v_max_f32 v24, v24, v25")
    a("v_mov_b32 v25, v24")
    a("s_nop 1")
    a("v_permlane32_swap_b32 v24, v25")
    a("v_max_f32 v24, v24, v25")
    a("v_mov_b32 v25, v24")
    a("s_nop 1")
    a("v_permlane16_swap_b32 v24, v25")
    a("v_max_f32 v24, v24, v25")
    a("v_mov_b32 v25, v24")
    a("v_mov_b32 v26, 0\nv_mov_b32 v27, 0")
    O0=124; O1=128; PP=132
    after_id=[0]
    for j in range(9):
        nt = 2 if 2*j+1<17 else 1
        pb=PP+4*(j%2)
        regs=[SR+8*j+r for r in range(4*nt)]
        for r in regs[::2]: a(f"v_pk_add_f32 {v(r,2)}, {v(r,2)}, v[24:25] neg_lo:[0,1] neg_hi:[0,1]")
        for r in regs: a(f"v_exp_f32 v{r}, v{r}")
        if pf:
            pf.pop(0)()
            if j>4: after_id[0]+=1
        else: a("s_nop 0")
        for q,r in enumerate(regs[::2]):
            a(f"v_cvt_pk_bf16_f32 v{pb+q}, v{r}, v{r+1}")
        for r in regs[::2]: a(f"v_pk_add_f32 v[26:27], v[26:27], {v(r,2)}")
        rem=0
        for jj in range(j+1,min(9,j+3)):
            rem += 4 if 2*jj+1<17 else 2
        a(f"s_waitcnt lgkmcnt({rem})")
        b=VF+8*(j%3)
        c0 = "0" if j==0 else v(O0,4)
        c1 = "0" if j==0 else v(O1,4)
        if nt==2:
            a(f"v_mfma_f32_16x16x32_bf16 {v(O0,4)}, {v(b,4)}, {v(pb,4)}, {c0}")
            a(f"v_mfma_f32_16x16x32_bf16 {v(O1,4)}, {v(b+4,4)}, {v(pb,4)}, {c1}")
        else:
            a(f"v_mfma_f32_16x16x16_bf16 {v(O0,4)}, {v(b,2)}, {v(pb,2)}, {c0}")
            a(f"v_mfma_f32_16x16x16_bf16 {v(O1,4)}, {v(b+4,2)}, {v(pb,2)}, {c1}")
        if j+3<9: vread(j+3)
        if j==4:
            a(f"buffer_load_dword v31, v{VL4}, s[{SRD_FLAG}:{SRD_FLAG+3}], s74 offen sc1")
    while pf: pf.pop(0)(); after_id[0]+=1
    a("v_add_f32 v26, v26, v27")
    a("v_mov_b32 v27, v26")
    a("s_nop 1")
    a("v_permlane32_swap_b32 v26, v27")
    a("v_add_f32 v26, v26, v27")
    a("v_mov_b32 v27, v26")
    a("s_nop 1")
    a("v_permlane16_swap_b32 v26, v27")
    a("v_add_f32 v26, v26, v27")
    a("v_rcp_f32 v26, v26")
    a("s_nop 0")
    for r in range(8): a(f"v_mul_f32 v{O0+r}, v26, v{O0+r}")
    for r in range(4): a(f"v_cvt_pk_bf16_f32 v{PP+r}, v{O0+2*r}, v{O0+2*r+1}")
    a(f"s_waitcnt vmcnt({0 if NOW else after_id[0]})")
    a("v_cmp_eq_u32 vcc, 0, v31")
    a("s_nop 3")
    a("s_cmp_eq_u32 vcc_lo, 0")
    a(f"s_cbranch_scc1 {P('idok')}")
    spin(a,VL4,"s74",-1,0,"wid",vd=31)
    a.label(P('idok'))
    a(f"v_cmp_ne_u32 vcc, s{SXC}, v31")
    a("s_nop 3")
    a("s_cmp_eq_u32 vcc_lo, 0")
    a(f"s_cselect_b32 s{SMODE}, {0 if FORCE_SLOW else 1}, 0")
    hstore(a,[f"buffer_store_dwordx2 {v(PP,2)}, v28, s[48:51], s46 offen",
              f"buffer_store_dwordx2 {v(PP+2,2)}, v29, s[48:51], s46 offen"])
    signal(a,61,"s2")
    a(f"s_cmp_lg_u32 s{SW}, 2")
    a(f"s_cbranch_scc1 {P('nofn')}")
    a(f"s_lshl_b32 s61, s{SI}, 2")
    a("s_add_u32 s61, s61, s74")
    a(f"s_add_u32 s61, s61, {FN}")
    a("v_mov_b32 v2, 1")
    a("v_mov_b32 v3, 0")
    a("s_mov_b64 exec, 1")
    a(f"buffer_store_dword v2, v3, s[{SRD_FLAG}:{SRD_FLAG+3}], s61 offen sc1")
    a("s_mov_b64 exec, -1")
    a.label(P('nofn'))
    a(f"s_cmp_ge_u32 s{SI}, 28")
    a(f"s_cbranch_scc1 {P('spare2')}")

def kb_phase35(a, mode):
    k3=(mode==3); tag=f"p{mode}"
    KD=D if k3 else F
    NST=KD//64
    vm=Cnt(a,"vmcnt"); lg=Cnt(a,"lgkmcnt")
    KS,TG=36,37
    a(f"s_and_b32 s{KS}, s{SW}, 3")
    a(f"s_lshr_b32 s{TG}, s{SW}, 2")
    a(f"s_lshr_b32 s38, s{KS}, 1")
    a(f"s_and_b32 s39, s{KS}, 1")
    a("v_lshrrev_b32 v4, 5, v1")
    a("v_bfe_u32 v5, v1, 2, 2")
    a("v_lshl_add_u32 v8, v4, 3, v5")
    a("v_lshlrev_b32 v8, 7, v8")
    a("v_lshrrev_b32 v5, 1, v5")
    a("v_xor_b32 v5, s38, v5")
    a("v_lshl_add_u32 v8, v5, 6, v8")
    a("v_bfe_u32 v5, v1, 4, 1")
    a("v_xor_b32 v5, s39, v5")
    a("v_lshl_add_u32 v8, v5, 5, v8")
    a("v_and_b32 v5, 1, v1")
    a("v_lshl_add_u32 v8, v5, 4, v8")
    a("v_bfe_u32 v5, v1, 1, 1")
    a("v_lshl_add_u32 v8, v5, 3, v8")
    a(f"s_lshl_b32 s40, s{KS}, 11")
    a("v_add_u32 v8, s40, v8")
    a("v_xor_b32 v9, 64, v8")
    a("v_add_u32 v10, 0x10000, v8")
    a("v_add_u32 v11, 0x10000, v9")
    if not k3:
        a("v_add_u32 v12, 0x20000, v8")
        a("v_add_u32 v13, 0x20000, v9")
    if k3:
        srd(a,56,PWS,PWS+1,SZ_H,WS_H)
        srd(a,60,PWS,PWS+1,SZ_ST2,WS_ST2)
    else:
        srd(a,48,PWS,PWS+1,SZ_QA,WS_QA)
        srd(a,52,PWS,PWS+1,SZ_H,WS_H)
        srd(a,56,POUT,POUT+1,S*D*2)
    a("s_lshl_b32 s40, s88, 1")
    a(f"s_add_u32 s40, s40, s{TG}")
    a(f"s_mul_i32 s41, s40, {TBS}")
    a(f"s_lshl_b32 s42, s{KS}, 10")
    a("s_add_u32 s41, s41, s42")
    a(f"s_add_u32 s43, s41, {NST*4096}")
    a(f"s_lshl_b32 s42, s{S_WOROT if k3 else S_WDROT}, 12")
    a("s_add_u32 s42, s42, s41")
    a(f"s_mul_i32 s45, s40, {56*512}")
    a("s_lshl_b32 s46, s89, 12")
    a("s_add_u32 s45, s45, s46")
    a(f"s_lshl_b32 s46, s{KS}, 10")
    a("s_add_u32 s45, s45, s46")
    if k3: b0,b1=KVB,KVB+24576
    else: b0,b1=KVB,KVB+24576
    a(f"s_mul_i32 s46, s{TG}, {b1-b0}")
    a(f"s_add_u32 s46, s46, {b0}")
    a(f"s_mul_i32 s47, s{KS}, 6144")
    a("s_add_u32 s47, s47, s46")
    a(f"v_add_u32 v24, s47, v{VL16}")
    for j in (1,2,3):
        a(f"s_xor_b32 s47, s{KS}, {j}")
        a("s_mul_i32 s47, s47, 6144")
        a("s_add_u32 s47, s47, s46")
        a(f"v_add_u32 v{24+j}, s47, v{VL16}")
    RES=VRES if k3 else 16; ACC=32; AF=64; BF=96
    RB_=28 if not k3 else 7
    if k3:
        a(f"s_mul_i32 s44, s89, {S*8}")
        a(f"s_lshl_b32 s47, s{SW}, 9")
        a(f"s_add_u32 s47, s47, {MISC+1024}")
        a("v_lshlrev_b32 v28, 3, v1")
        a("v_add_u32 v28, s47, v28")
        a(f"s_lshl_b32 s47, s{TG}, 11")
        a(f"s_add_u32 s47, s47, {MISC+1024}")
        a("v_and_b32 v29, 31, v1")
        a("v_lshlrev_b32 v29, 3, v29")
        a("v_add_u32 v29, s47, v29")
        a("s_lshl_b32 s47, s40, 8")
        a("s_add_u32 s44, s44, s47")
        a("v_lshlrev_b32 v14, 3, v1")
        a("v_mov_b32 v15, 0x40000000")
        a("v_cmp_gt_u32 vcc, 32, v1")
        a("s_nop 1")
        a("v_cndmask_b32 v14, v15, v14, vcc")
        a("s_lshr_b32 s72, s88, 2")
        a("s_lshl_b32 s72, s72, 7")
        a(f"s_lshl_b32 s47, s{SI}, 2")
        a("s_add_u32 s72, s72, s47")
        a(f"s_add_u32 s72, s72, {F3}")
        a("s_lshr_b32 s46, s88, 1")
        a("s_lshl_b32 s46, s46, 6")
        a(f"s_add_u32 s46, s46, {F2}")
        a("s_mov_b32 s47, 0xffff0000")
        poll(a,VL4,"s46",0xffff,0,"w2")
    else:
        a(f"buffer_load_dwordx4 {v(RES,4)}, v{VL16}, s[52:55], s45 offen"); vm.issue("res")
        a(f"s_add_u32 s46, s74, {F4}")
        a("s_mov_b32 s47, 0xffff0000")
        poll(a,VL4,"s46",0x0fffffff,0,"w4")
    def bload(n):
        a("s_add_u32 s46, s42, 4096")
        a(f"buffer_load_dwordx4 {v(BF+4*(n%RB_),4)}, v{VL16}, s[48:51], s42 offen sc1"); vm.issue(("B",n))
        a("s_cmp_eq_u32 s46, s43")
        a("s_cselect_b32 s42, s41, s46")
    def aread(n):
        ga = UB+8192*n if k3 else p5_group_addr(n)
        hi=ga>>16; o=ga&0xffff
        r0=8+2*hi
        b=AF+8*(n%2)
        for sl in range(2):
            a(f"ds_read_b64_tr_b16 {v(b+4*sl,2)}, v{r0+sl} offset:{o}"); lg.issue(("A",n))
            a(f"ds_read_b64_tr_b16 {v(b+4*sl+2,2)}, v{r0+sl} offset:{o+512}"); lg.issue(("A",n))
    LA0=7 if k3 else E('P5_LA0',4)
    for n in range(LA0): bload(n)
    nb=LA0
    if k3:
        for c in range(P2_CH,3):
            for m in range(2): gu_dma(a,c,m,vm)
    aread(0)
    pend=[]
    NB1=15; NB2=NRES
    for n in range(NST):
        if n+1<NST:
            if not k3 and n+1==NB1:
                vm.wait(("wd",NRES-1)); a("s_barrier")
            if not k3 and n+1==NB2:
                vm.wait(("wd",27)); a("s_barrier")
            aread(n+1)
        vm.wait(("B",n)); lg.wait(("A",n))
        for sl in range(2):
            cin="0" if n==0 else v(ACC+16*sl,16)
            a(f"v_mfma_f32_32x32x16_bf16 {v(ACC+16*sl,16)}, {v(AF+8*(n%2)+4*sl,4)}, {v(BF+4*(n%RB_),4)}, {cin}")
        for _ in range(E('P5_BPS',2)):
            if nb<NST and nb-n<=E('P5_LAM',10): bload(nb); nb+=1
        if STAMP and n in (0,8,18): lg.waitall(); st(a,f"{tag}_n{n}")
        if not k3:
            if n==3: pend=list(range(NB1,NRES))
            if n==8:
                a("s_barrier")
                pend+=list(range(NRES,28))
            for _ in range(1 if n<8 else 2):
                if pend: wd_dma(a,pend.pop(0),vm)
    st(a,tag+"_mfma")
    a("s_nop 7")
    a("s_nop 3")
    for j in (1,2,3):
        for q in range(2): a(f"ds_write_b128 v24, {v(ACC+8*j+4*q,4)} offset:{(j-1)*2048+q*1024}")
    vm.wait("res")
    UBr=AF
    for d_ in range(4):
        a(f"v_lshlrev_b32 v{UBr+2*d_}, 16, v{RES+d_}")
        a(f"v_and_b32 v{UBr+2*d_+1}, s47, v{RES+d_}")
    for d_ in range(4):
        a(f"v_pk_add_f32 {v(ACC+2*d_,2)}, {v(ACC+2*d_,2)}, {v(UBr+2*d_,2)}")
    a("s_waitcnt lgkmcnt(0)")
    a("s_barrier")
    st(a,tag+"_red")
    PR=BF
    for j in (1,2,3):
        for q in range(2): a(f"ds_read_b128 {v(PR+8*j+4*q,4)}, v{24+j} offset:{(j-1)*2048+q*1024}")
    for j in (1,2,3):
        a(f"s_waitcnt lgkmcnt({2*(3-j)})")
        for d_ in range(4):
            a(f"v_pk_add_f32 {v(ACC+2*d_,2)}, {v(ACC+2*d_,2)}, {v(PR+8*j+2*d_,2)}")
    OB=16
    for d_ in range(4): a(f"v_cvt_pk_bf16_f32 v{OB+d_}, v{ACC+2*d_}, v{ACC+2*d_+1}")
    if k3:
        hstore(a,[f"buffer_store_dwordx4 {v(OB,4)}, v{VL16}, s[56:59], s45 offen"])
        a("v_mov_b32 v22, 0x3f803f80")
        a("v_mov_b32 v20, 0")
        a("v_mov_b32 v21, 0")
        for d_ in range(4):
            a(f"v_dot2c_f32_bf16 v20, v{OB+d_}, v22")
            a(f"v_dot2c_f32_bf16 v21, v{OB+d_}, v{OB+d_}")
        a("s_nop 2")
        a("ds_write_b64 v28, v[20:21]")
        a("s_waitcnt lgkmcnt(0)")
        a("s_barrier")
        a(f"s_cmp_lg_u32 s{KS}, 0")
        a(f"s_cbranch_scc1 {P('p3_nost')}")
        for q in range(8): a(f"ds_read_b64 {v(32+2*q,2)}, v29 offset:{256*q}")
        a("s_waitcnt lgkmcnt(0)")
        for q in (0,2,4,6): a(f"v_pk_add_f32 {v(32+2*q,2)}, {v(32+2*q,2)}, {v(34+2*q,2)}")
        a("v_pk_add_f32 v[32:33], v[32:33], v[36:37]")
        a("v_pk_add_f32 v[40:41], v[40:41], v[44:45]")
        a("v_pk_add_f32 v[32:33], v[32:33], v[40:41]")
        hstore(a,[f"buffer_store_dwordx2 v[32:33], v14, s[60:63], s44 offen"])
        a.label(P('p3_nost'))
        signal(a,72,"s3")
    else:
        a(f"buffer_store_dwordx4 {v(OB,4)}, v249, s[56:59], s73 offen")

def kb_phase4(a):
    vm=Cnt(a,"vmcnt"); lg=Cnt(a,"lgkmcnt")
    for m in range(2): gu_dma(a,3,m)
    srd(a,SRD_WD,PWD,PWD+1,F*D*2)
    a(f"s_mul_i32 s79, s{S_WDROT}, {64*896}")
    a(f"s_add_u32 s79, s79, s{S_WD}")
    a(f"s_add_u32 s75, s{S_WD}, {28*64*896}")
    a("v_lshrrev_b32 v4, 5, v1")
    a("v_bfe_u32 v5, v1, 2, 2")
    a("v_lshl_add_u32 v9, v4, 3, v5")
    a("v_lshlrev_b32 v9, 7, v9")
    a("v_bfe_u32 v10, v1, 4, 1")
    a("v_and_b32 v11, 1, v1")
    a("v_lshl_add_u32 v9, v11, 4, v9")
    a("v_bfe_u32 v11, v1, 1, 1")
    a("v_lshl_add_u32 v9, v11, 3, v9")
    a("v_lshrrev_b32 v5, 1, v5")
    a("v_lshl_add_u32 v5, v10, 1, v5")
    a("v_lshl_add_u32 v9, v5, 5, v9")
    a("v_lshl_add_u32 v12, v10, 13, v9")
    for t in range(1,4): a(f"v_xor_b32 v{12+t}, {32*t}, v12")
    a(f"v_add_u32 v25, {KVB}, v12")
    a("v_xor_b32 v26, 32, v25")
    a("v_xor_b32 v27, 64, v25")
    a("v_xor_b32 v29, 96, v25")
    a("v_and_b32 v17, 31, v1")
    a("v_lshlrev_b32 v17, 3, v17")
    a(f"v_mul_u32_u24 v16, {S*8}, v4")
    a("v_add_u32 v17, v17, v16")
    a("v_lshlrev_b32 v28, 5, v4")
    a(f"s_lshl_b32 s56, s{SX}, 3")
    a(f"s_add_u32 s56, s56, s{SW}")
    a(f"s_mul_i32 s57, s56, {28*1024}")
    a(f"s_add_u32 s54, s57, {7*4096}")
    a(f"s_mul_i32 s55, s89, {4096 if ROT4 else 0}")
    a("s_add_u32 s55, s55, s57")
    a("s_lshl_b32 s58, s56, 8")
    a(f"s_mul_i32 s59, s56, {112*1024}")
    a(f"s_lshl_b32 s60, s{SI}, 12")
    a("s_add_u32 s59, s59, s60")
    a(f"s_lshl_b32 s60, s{SI}, 8")
    a(f"s_add_u32 s61, s60, {F*4}")
    srd(a,36,PWS,PWS+1,SZ_H,WS_H)
    srd(a,40,PWS,PWS+1,SZ_QA,WS_QA)
    srd(a,44,PWS,PWS+1,SZ_ST2,WS_ST2)
    srd(a,48,PWS,PWS+1,SZ_CS,WS_CS)
    a(f"s_lshl_b32 s72, s{SI}, 2")
    a("s_add_u32 s72, s72, s74")
    a(f"s_add_u32 s72, s72, {F4}")
    a(f"s_add_u32 s62, s74, {F3}")
    a(f"v_mul_u32_u24 v16, {FN-F3}, v4")
    a(f"v_add_u32 v16, v16, v{VL4}")
    a(f"s_cmp_eq_u32 s{SX}, 7")
    a("s_cselect_b32 s63, 0, -1")
    poll(a,16,"s62",0x0fffffff,"s63","w3")
    BFR=64; ACC=176; AF=32; STR=240
    def hb(c,s_):
        def f():
            if s_==0 and c>0:
                a("s_add_u32 s55, s55, 4096")
                a("s_cmp_eq_u32 s55, s54")
                a("s_cselect_b32 s55, s57, s55")
            a(f"buffer_load_dwordx4 {v(BFR+16*c+4*s_,4)}, v{VL16}, s[36:39], s55 offen offset:{1024*s_}"); vm.issue(("h",c,s_))
        return f
    hq=[hb(c,s_) for c in range(7) for s_ in range(4)]
    NPRE=E('P4_NPRE',6)
    for f in hq[:NPRE]: f()
    steps=[(c,s_,t) for c in range(5) for s_ in range(4) for t in range(4)]
    steps+=[(c,s_,t) for t in range(4) for c in (5,6) for s_ in range(4)]
    NS=len(steps); PF=6
    def rd(i):
        c,s_,t=steps[i]
        b=AF+4*(i%8); o=CH(c)+s_*2048
        ar=12+t
        if o>=KVB: o-=KVB; ar=(25,26,27,29)[t]
        a(f"ds_read_b64_tr_b16 {v(b,2)}, v{ar} offset:{o}"); lg.issue(("A",i))
        a(f"ds_read_b64_tr_b16 {v(b+2,2)}, v{ar} offset:{o+512}"); lg.issue(("A",i))
    fill={i:[] for i in range(NS)}
    HSP=float(os.environ.get('P4_HSP','3'))
    for k,f in enumerate(hq[NPRE:]): fill[int(1+HSP*k)].append(f)
    for sl in range(4):
        def f(sl=sl):
            a(f"s_add_u32 s62, s58, {sl*2*S*8}")
            a(f"buffer_load_dwordx2 {v(STR+2*sl,2)}, v17, s[44:47], s62 offen"); vm.issue("st")
        fill[2+3*sl].append(f)
    for k in range(6): fill[3+6*k].append(lambda k=k: gu_dma(a,4+k//2,k%2,vm))
    def atouch():
        a("v_and_b32 v30, 31, v1")
        a("v_lshlrev_b32 v30, 7, v30")
        a(f"s_cmp_ge_u32 s{SI}, 21")
        a("s_cselect_b32 s62, s59, 0x40000000")
        a("buffer_load_dword v31, v30, s[40:43], s62 offen sc1"); vm.issue("t")
    if TOUCH: fill[E('P4_AT',36)].append(atouch)
    def stats_math():
        vm.wait("st")
        for sl in range(1,4):
            a(f"v_add_f32 v{STR}, v{STR}, v{STR+2*sl}")
            a(f"v_add_f32 v{STR+1}, v{STR+1}, v{STR+2*sl+1}")
        a(f"v_mov_b32 v18, v{STR}")
        a(f"v_mov_b32 v19, v{STR+1}")
        a("s_nop 1")
        a(f"v_permlane32_swap_b32 v18, v{STR}")
        a(f"v_permlane32_swap_b32 v19, v{STR+1}")
        a(f"v_add_f32 v18, v18, v{STR}")
        a(f"v_add_f32 v19, v19, v{STR+1}")
        a(f"v_mul_f32 v18, {f32bits(1.0/D)}, v18")
        a(f"v_mul_f32 v19, {f32bits(1.0/D)}, v19")
        a("v_fma_f32 v19, -v18, v18, v19")
        a("v_max_f32 v19, 0, v19")
        a(f"v_add_f32 v24, {f32bits(1e-5)}, v19")
        a("v_rsq_f32 v20, v24")
        a("v_sub_f32 v22, 0, v18")
        a(f"v_mul_f32 v20, {f32bits(-LOG2E)}, v20")
    fill[40].append(stats_math)
    def rdcs(t):
        CS=64+16*t
        for q,o in enumerate((64*t,64*t+16,256+64*t,256+64*t+16)):
            a(f"ds_read_b128 {v(CS+4*q,4)}, v28 offset:{MISC+o}"); lg.issue(("cs",t))
    for t in range(4): fill[70+2*t].append(lambda t=t: rdcs(t))
    for n in range(NEARLY): fill[42+6*n].append(lambda n=n: wd_dma(a,n,vm))
    def epi_ops(t):
        CS=64+16*t; T0=CS; OB=CS+8
        A0=ACC+16*t
        ops=[]
        ops.append(lambda: a("s_nop 3"))
        for r in range(8): ops.append(lambda r=r: a(f"v_fmac_f32 v{A0+r}, v22, v{CS+r}"))
        for r in range(8): ops.append(lambda r=r: a(f"v_mul_f32 v{T0+r}, v20, v{A0+r}"))
        for r in range(8):
            ops.append(lambda r=r: a(f"v_exp_f32 v{T0+r}, v{T0+r}"))
            ops.append(lambda r=r: a(f"v_fmac_f32 v{A0+8+r}, v22, v{CS+8+r}"))
        for r in range(8): ops.append(lambda r=r: a(f"v_fma_f32 v{T0+r}, v{T0+r}, v24, v24"))
        for r in range(8):
            ops.append(lambda r=r: a(f"v_rcp_f32 v{T0+r}, v{T0+r}"))
            ops.append(lambda r=r: a(f"v_mul_f32 v{A0+r}, v{A0+r}, v{A0+8+r}"))
        for r in range(8): ops.append(lambda r=r: a(f"v_mul_f32 v{A0+r}, v{A0+r}, v{T0+r}"))
        for p in range(4): ops.append(lambda p=p: a(f"v_cvt_pk_bf16_f32 v{OB+p}, v{A0+2*p}, v{A0+2*p+1}"))
        def stv():
            hstore(a,[f"buffer_store_dwordx4 {v(OB,4)}, v{VL16}, s[40:43], s59 offen offset:{1024*t}"]); vm.issue("out")
        ops.append(stv)
        return ops
    tail_ops=[]
    for t in range(4):
        ops=epi_ops(t)
        base=80+8*t
        if t<3:
            nb=base+8
            per=-(-len(ops)//7)
            for k,f in enumerate(ops): fill[nb+1+k//per].append(f)
        else: tail_ops=ops
    fill[80].insert(0,lambda: a("s_barrier"))
    for n in range(NEARLY,15): fill[81+(n-NEARLY)].append(lambda n=n: wd_dma(a,n,vm))
    for i in range(PF): rd(i)
    landed=2
    for i in range(NS):
        c,s_,t=steps[i]
        vm.wait(("h",c,s_))
        lg.wait(("A",i))
        cin="0" if (c==0 and s_==0) else v(ACC+16*t,16)
        a(f"v_mfma_f32_32x32x16_bf16 {v(ACC+16*t,16)}, {v(AF+4*(i%8),4)}, {v(BFR+16*c+4*s_,4)}, {cin}")
        for f in fill[i]: f()
        if i+PF<NS:
            nc=steps[i+PF][0]
            if nc>landed:
                tgt = nc if nc<5 else 6
                vm.wait(("W",tgt)); a("s_barrier"); landed=tgt
            rd(i+PF)
        if STAMP and i in (0,15,31,47,63,79,95,111): lg.waitall(); st(a,f"p4_i{i}")
    a("s_nop 7")
    a("s_nop 1")
    for f in tail_ops: f()
    signal(a,72,"s4")

def gen_kb(name):
    KN[0]="kb"
    a=Asm(); prologue(a,name)
    kb_phase2(a)
    kb_phase35(a,3)
    kb_phase4(a)
    kb_phase35(a,5)
    dump(a)
    a.label(P('end'))
    a("s_endpgm")
    a.label(P('spare2'))
    if SP_TOUCH:
        a("v_lshlrev_b32 v9, 7, v1")
        a(f"s_sub_u32 s36, s{SI}, 28")
        a("s_lshl_b32 s36, s36, 3")
        a(f"s_add_u32 s36, s36, s{SW}")
        a("s_bitcmp1_b32 s36, 0")
        a(f"s_cselect_b32 s{SRD_G}, s{SRD_U}, s{SRD_G}")
        a(f"s_cselect_b32 s{SRD_G+1}, s{SRD_U+1}, s{SRD_G+1}")
        a("s_lshr_b32 s37, s36, 1")
        a("s_lshl_b32 s37, s37, 13")
        q0=256*3584//8192
        for i in range(6):
            a(f"s_add_u32 s38, s37, {(q0+16*i)*8192}")
            a(f"buffer_load_dword v{30+i}, v9, s[{SRD_G}:{SRD_G+3}], s38 offen")
        srd(a,SRD_WD,PWD,PWD+1,F*D*2)
        a("s_lshl_b32 s37, s36, 13")
        for i in range(7):
            a(f"s_add_u32 s38, s37, {i*32*8192}")
            a(f"buffer_load_dword v{40+i}, v9, s[{SRD_WD}:{SRD_WD+3}], s38 offen")
    dump(a)
    a("s_endpgm")
    return a.text(), kdesc(name,256)

def build(path):
    hdr=open("sequential_preLN__sliding_block__swiglu_ffn__prompt.s.ref").read().split("; Override launch")[0]
    ta,da=gen_ka("ka_kernel"); tb,db=gen_kb("kb_kernel")
    L=[hdr.rstrip(), f"; @launch kernel=ka_kernel grid=({NWG},1,1) block=({THREADS},1,1) lds=155648",
       f"; @launch kernel=kb_kernel grid=({NWG},1,1) block=({THREADS},1,1) lds={LDS}",
       '.amdgcn_target "amdgcn-amd-amdhsa--gfx950"\n.text', ta, tb, '.section .rodata,"a"', da, db]
    open(path,"w").write("\n".join(L)+"\n")
    if STAMP: open(path+".names","w").write(" ".join(STN))
if __name__=="__main__":
    build(sys.argv[1])
```

```python
from common import *
import sys
NWG=256; THREADS=512; LDS=163840
WS_FLAG=0x1300000; SZ_FLAG=16384
FID=0; F2=1024; F3=2048; F4=3072
WS_ST2=0x1210000; SZ_ST2=7*S*8
PX,PWQKV,PWO,PBX,PWG,PWU,PWD,POUT,PDBG,PWS=4,6,8,10,12,14,16,18,20,22
SW,SX,SI=24,25,26
SMODE=27; SXC=3
SRD_FLAG=28
UB=57344; KVB=114688
SPIN_MAX=200000
NEG=f32bits(-1e30)
E=lambda k,d: int(os.environ.get(k,str(d)))
FORCE_SLOW=E('FORCE_SLOW',0); P1_ROT=E('P1_ROT',3); CS_DEPTH=E('CS_DEPTH',4); SLEEP2=E('SLEEP2',1); NOW=E('NOW',0)
KA_TOUCH_AT=E('KA_TOUCH_AT',4); TOUCH=E('TOUCH',1); P2_CH=E('P2_CH',2); SP_TOUCH=E('SP_TOUCH',1); ROT4=E('ROT4',1); ROTB=E('ROTB',1)
TBS=114688; SZ_QA=64*TBS; WS_QA=WS_ACT
FN=4096
KN=["ka"]
def P(name): return f"L_{KN[0]}_{name}"
WS_DBG=0x1400000
STN=[]
def st(a,name,rt=False):
    if not STAMP: return
    name=KN[0]+"."+name
    if name not in STN: STN.append(name)
    i=[n for n in STN if n.startswith(KN[0])].index(name)
    a(f"s_mem{'real' if rt else ''}time s[64:65]")
    a("s_waitcnt lgkmcnt(0)")
    a(f"v_writelane_b32 v255, s64, {i}")
def dump(a):
    if not STAMP: return
    a("s_waitcnt vmcnt(0)")
    st(a,"end"); st(a,"rt1",True)
    srd(a,48,PWS,PWS+1,2*256*8*256,WS_DBG)
    a("v_lshlrev_b32 v2, 2, v0")
    a("s_lshl_b32 s36, s2, 11")
    if KN[0]=="kb": a(f"s_add_u32 s36, s36, {256*2048}")
    a("buffer_store_dword v255, v2, s[48:51], s36 offen")
_uid=[0]
def hstore(a, instrs):
    _uid[0]+=1; u=_uid[0]
    a(f"s_cmp_eq_u32 s{SMODE}, 0")
    a(f"s_cbranch_scc1 L_hs{u}a")
    for i in instrs: a(i)
    a(f"s_branch L_hs{u}b")
    a.label(f"L_hs{u}a")
    for i in instrs: a(i+" sc1")
    a.label(f"L_hs{u}b")
def signal(a, off_sgpr, tag):
    st(a,tag+"_pre")
    a("s_waitcnt vmcnt(0)")
    a("s_barrier")
    st(a,tag+"_bar")
    a(f"s_cmp_lg_u32 s{SW}, 1")
    a(f"s_cbranch_scc1 {P(tag+'_nosig')}")
    a("v_mov_b32 v2, 1")
    a("v_mov_b32 v3, 0")
    a("s_mov_b64 exec, 1")
    hstore(a,[f"buffer_store_dword v2, v3, s[{SRD_FLAG}:{SRD_FLAG+3}], s{off_sgpr} offen"])
    a("s_mov_b64 exec, -1")
    a.label(P(tag+'_nosig'))
def spin(a, voff, soff, mask_lo, mask_hi, tag, vd=2):
    a(f"s_mov_b32 exec_lo, {mask_lo}")
    a(f"s_mov_b32 exec_hi, {mask_hi}")
    a("s_mov_b32 s101, 0")
    a.label(P(tag+'_pl'))
    a(f"buffer_load_dword v{vd}, v{voff}, s[{SRD_FLAG}:{SRD_FLAG+3}], {soff} offen sc1")
    a("s_add_u32 s101, s101, 1")
    a("s_waitcnt vmcnt(0)")
    a(f"v_cmp_eq_u32 vcc, 0, v{vd}")
    a(f"s_cmp_gt_u32 s101, {SPIN_MAX}")
    a(f"s_cbranch_scc1 {P(tag+'_pd')}")
    a("s_nop 3")
    a(f"s_cbranch_vccz {P(tag+'_pd')}")
    a(f"s_sleep {SLEEP2}")
    a(f"s_branch {P(tag+'_pl')}")
    a.label(P(tag+'_pd'))
    a("s_mov_b64 exec, -1")
def poll(a, voff, soff, mask_lo, mask_hi, tag):
    st(a,tag+"_pre")
    a(f"s_cmp_lg_u32 s{SW}, 0")
    a(f"s_cbranch_scc1 {P(tag+'_pw')}")
    spin(a,voff,soff,mask_lo,mask_hi,tag)
    a.label(P(tag+'_pw'))
    a("s_barrier")
    st(a,tag)
def rot_idx(a, sd, n, srot, mod):
    a(f"s_add_u32 s{sd}, s{srot}, {n}")
    a(f"s_sub_u32 s100, s{sd}, {mod}")
    a(f"s_cmp_ge_u32 s{sd}, {mod}")
    a(f"s_cselect_b32 s{sd}, s100, s{sd}")
FT=8192
TK_LDS=155640
def prologue(a,name,hint=None):
    kb=(KN[0]=="kb")
    kstart(a,name)
    a(f"s_cmp_ge_u32 s2, {NWG}")
    a(f"s_cbranch_scc1 {P('end')}")
    if STAMP: a("v_mov_b32 v255, 0")
    st(a,"rt0",True); st(a,"start")
    a("s_load_dwordx16 s[4:19], s[0:1], 0")
    a("s_load_dwordx4 s[20:23], s[0:1], 64")
    a("v_and_b32 v1, 63, v0")
    a("v_lshrrev_b32 v2, 6, v0")
    a(f"s_getreg_b32 s{SXC}, hwreg(HW_REG_XCC_ID)")
    a(f"v_readfirstlane_b32 s{SW}, v2")
    a(f"s_and_b32 s{SXC}, s{SXC}, 15")
    a("s_lshr_b32 s36, s2, 6")
    a(f"v_mov_b32 v4, {49152+7168 if kb else TK_LDS}")
    a("s_waitcnt lgkmcnt(0)")
    st(a,"kernarg")
    if kb: srd(a,SRD_FLAG,PWS,PWS+1,SZ_FLAG,WS_FLAG)
    a(f"s_cmp_lg_u32 s{SW}, 0")
    a(f"s_cbranch_scc1 {P('tk_wait')}")
    if not kb: srd(a,SRD_FLAG,PDBG,PDBG+1,256)
    a("s_mov_b32 s37, 0")
    a("v_mov_b32 v3, 0")
    a("s_mov_b64 exec, 1")
    a.label(P('tk_loop'))
    a("s_lshr_b32 s38, s37, 2")
    a(f"s_add_u32 s38, s38, s{SXC}")
    a("s_and_b32 s38, s38, 7")
    a("s_add_u32 s39, s36, s37")
    a("s_and_b32 s39, s39, 3")
    a("s_lshl_b32 s40, s38, 2")
    a("s_add_u32 s40, s40, s39")
    a(f"s_lshl_b32 s41, s40, {7 if kb else 3}")
    if kb: a(f"s_add_u32 s41, s41, {FT}")
    a("v_mov_b32 v2, 1")
    a(f"buffer_atomic_add v2, v3, s[{SRD_FLAG}:{SRD_FLAG+3}], s41 offen sc0 sc1")
    a("s_waitcnt vmcnt(0)")
    a("v_readfirstlane_b32 s42, v2")
    a("s_add_u32 s37, s37, 1")
    a("s_cmp_lt_u32 s42, 8")
    a(f"s_cbranch_scc1 {P('tk_got')}")
    a("s_cmp_lt_u32 s37, 32")
    a(f"s_cbranch_scc1 {P('tk_loop')}")
    a.label(P('tk_got'))
    a("s_lshl_b32 s40, s40, 3")
    a("s_and_b32 s42, s42, 7")
    a("s_add_u32 s40, s40, s42")
    a("v_mov_b32 v2, s40")
    a("ds_write_b32 v4, v2")
    a("s_mov_b64 exec, -1")
    a("s_waitcnt lgkmcnt(0)")
    a(f"s_branch {P('tk_bar')}")
    a.label(P('tk_wait'))
    if hint: hint()
    a.label(P('tk_bar'))
    a("s_barrier")
    a("ds_read_b32 v2, v4")
    a(f"s_add_u32 s{SXC}, s{SXC}, 1")
    a("s_waitcnt lgkmcnt(0)")
    a("v_readfirstlane_b32 s40, v2")
    a("s_nop 3")
    a(f"s_lshr_b32 s{SX}, s40, 5")
    a(f"s_and_b32 s{SI}, s40, 31")
    if STAMP:
        a(f"s_lshl_b32 s2, s{SI}, 3")
        a(f"s_add_u32 s2, s2, s{SX}")
    st(a,"ticket")
    sdiv(a,92,89,SI,7,93)
    a(f"s_lshl_b32 s88, s{SX}, 2")
    a("s_add_u32 s88, s88, s92")

def gen_ka(name):
    KN[0]="ka"
    a=Asm(); prologue(a,name)
    a(f"s_cmp_ge_u32 s{SI}, 28")
    a(f"s_cbranch_scc1 {P('spare')}")
    XB=0; WB=57344; WSLOT=24576
    RB,CB=88,89
    if P1_ROT==0: a("s_mov_b32 s76, 0")
    else:
        a("s_lshr_b32 s76, s92, 1")
        a(f"s_mul_i32 s76, s76, {P1_ROT}")
    for u in range(3):
        a(f"v_add_u32 v9, {64*u}, v1")
        a("v_mul_u32_u24 v10, 2731, v9")
        a("v_lshrrev_b32 v10, 16, v10")
        a("v_mul_u32_u24 v11, 24, v10")
        a("v_sub_u32 v11, v9, v11")
        a("v_lshrrev_b32 v12, 2, v11")
        a("v_bfe_u32 v13, v10, 1, 1")
        a("v_xor_b32 v12, v12, v13")
        a("v_and_b32 v11, 3, v11")
        a("v_lshlrev_b32 v11, 4, v11")
        a("v_lshl_add_u32 v11, v12, 6, v11")
        a("v_mul_u32_u24 v10, 2688, v10")
        a(f"v_add_u32 v{16+u}, v10, v11")
    a(f"s_mul_i32 s40, s{CB}, 384")
    a(f"s_and_b32 s43, s{SW}, 3")
    a(f"s_mul_i32 s44, s43, {16*2688}")
    a("s_add_u32 s44, s44, s40")
    a(f"s_mul_i32 s45, s43, 6144")
    a(f"s_add_u32 s45, s45, {WB}")
    for c in range(7): rot_idx(a,66+c,c,76,7)
    def w_ops(c,vm):
        slot=c%4
        a(f"s_mul_i32 s47, s{66+c}, {64*2688}")
        a("s_add_u32 s47, s47, s44")
        a(f"s_add_u32 s46, s47, {8*2688}")
        for u in range(6):
            a(f"s_add_u32 m0, s45, {slot*WSLOT+u*1024}")
            a("s_nop 0")
            a(f"buffer_load_dwordx4 v{16+u%3}, s[52:55], s{47 if u<3 else 46} offen lds"); vm.issue(("W",c))
    a(f"s_cmp_ge_u32 s{SW}, 4")
    a(f"s_cbranch_scc1 {P('C')}")
    a("v_lshrrev_b32 v5, 3, v1")
    a(f"s_lshl_b32 s38, s{SW}, 4")
    a("v_add_u32 v5, s38, v5")
    a("v_mul_u32_u24 v6, 896, v5")
    a("v_and_b32 v7, 7, v1")
    a("v_lshl_add_u32 v6, v7, 4, v6")
    a(f"v_add_u32 v15, {8*896}, v6")
    a(f"s_mul_i32 s38, s{RB}, {64*896}")
    a("v_bfe_u32 v8, v5, 1, 3")
    a("v_xor_b32 v8, v8, v7")
    a("v_lshlrev_b32 v8, 4, v8")
    a("v_lshl_add_u32 v8, v5, 7, v8")
    a("v_xor_b32 v14, 64, v8")
    a("v_add_u32 v14, 1024, v14")
    for i in range(7):
        a(f"s_lshl_b32 s{78+i}, s{66+i}, 7")
        a(f"s_add_u32 s{78+i}, s{78+i}, s38")
    a("v_mov_b32 v19, 0x3f803f80")
    a("s_mov_b32 s39, 0xffff0000")
    for r in range(20,28): a(f"v_mov_b32 v{r}, 0")
    srd(a,48,PX,PX+1,S*D*2)
    vm=Cnt(a,"vmcnt")
    XR=32; FR=96
    for i in range(7):
        for u in range(2):
            a(f"buffer_load_dwordx4 {v(XR+28*u+4*i,4)}, v{6 if u==0 else 15}, s[48:51], s{78+i} offen"); vm.issue(("x",u,i))
    srd(a,52,PWQKV,PWQKV+1,D*NQKV*2)
    for i in range(7):
        for u in range(2):
            vm.wait(("x",u,i))
            for d_ in range(4):
                x=XR+28*u+4*i+d_
                a(f"v_dot2c_f32_bf16 v{20+4*u+(d_&1)}, v{x}, v19")
                a(f"v_dot2c_f32_bf16 v{22+4*u+(d_&1)}, v{x}, v{x}")
    st(a,"x")
    a("s_nop 2")
    for u in range(2):
        a(f"v_add_f32 v{20+4*u}, v{20+4*u}, v{21+4*u}")
        a(f"v_add_f32 v{22+4*u}, v{22+4*u}, v{23+4*u}")
    for dpp in ("quad_perm:[1,0,3,2]","quad_perm:[2,3,0,1]","row_half_mirror"):
        a("s_nop 0")
        for r in (20,22,24,26):
            a(f"v_add_f32_dpp v{r}, v{r}, v{r} {dpp} row_mask:0xf bank_mask:0xf")
    for u in range(2):
        m=20+4*u; q=22+4*u
        a(f"v_mul_f32 v{m}, {f32bits(1.0/D)}, v{m}")
        a(f"v_mul_f32 v{q}, {f32bits(1.0/D)}, v{q}")
    for u in range(2):
        m=20+4*u; q=22+4*u
        a(f"v_fma_f32 v{q}, -v{m}, v{m}, v{q}")
        a(f"v_max_f32 v{q}, 0, v{q}")
        a(f"v_add_f32 v{q}, {f32bits(1e-5)}, v{q}")
        a(f"v_rsq_f32 v{q}, v{q}")
    a("s_nop 0")
    for u in range(2):
        m=20+4*u; q=22+4*u
        a(f"v_mul_f32 v{m}, v{m}, v{q}")
        a(f"v_sub_f32 v{m}, 0, v{m}")
    def norm(i):
        for u in range(2):
            for d_ in range(4):
                x=XR+28*u+4*i+d_; f=FR+2*d_+8*u
                a(f"v_lshlrev_b32 v{f}, 16, v{x}")
                a(f"v_and_b32 v{f+1}, s39, v{x}")
        for u in range(2):
            m=20+4*u; q=22+4*u
            for d_ in range(4):
                f=FR+2*d_+8*u
                a(f"v_pk_fma_f32 {v(f,2)}, {v(f,2)}, {v(q,2)}, {v(m,2)} op_sel_hi:[1,0,0]")
        for u in range(2):
            for d_ in range(4):
                x=XR+28*u+4*i+d_; f=FR+2*d_+8*u
                a(f"v_cvt_pk_bf16_f32 v{x}, v{f}, v{f+1}")
            a(f"ds_write_b128 v{8 if u==0 else 14}, {v(XR+28*u+4*i,4)} offset:{XB+8192*i}")
    sched=eval(os.environ.get('P1_SCHED','{0:[0,1],1:[2,3],2:[4,5],3:[6],4:[],5:[],6:[]}'))
    for c in range(7):
        for i in sched[c]: norm(i)
        if sched[c]: a("s_waitcnt lgkmcnt(0)")
        vm.wait(("W",c))
        st(a,f"L{c}")
        a("s_barrier")
        if c>=2 and c+2<7: w_ops(c+2,vm)
        if c==KA_TOUCH_AT:
            srd(a,56,PWS,PWS+1,SZ_QA,WS_QA)
            a("v_lshlrev_b32 v9, 7, v1")
            a("v_mov_b32 v10, 0x40000000")
            a("v_cmp_gt_u32 vcc, 48, v1")
            a(f"s_lshl_b32 s60, s{RB}, 1")
            a("s_lshr_b32 s61, s43, 1")
            a("v_cndmask_b32 v9, v10, v9, vcc")
            a("s_add_u32 s60, s60, s61")
            a(f"s_mul_i32 s60, s60, {TBS}")
            a(f"s_mul_i32 s61, s{CB}, 12288")
            a("s_add_u32 s60, s60, s61")
            a("s_and_b32 s61, s43, 1")
            a("s_mul_i32 s61, s61, 6144")
            a("s_add_u32 s60, s60, s61")
            a("buffer_load_dword v30, v9, s[56:59], s60 offen sc1"); vm.issue("t")
    dump(a)
    a("s_endpgm")
    a.label(P('C'))
    vm=Cnt(a,"vmcnt"); lg=Cnt(a,"lgkmcnt")
    a("s_and_b32 s36, s43, 1")
    a("s_lshr_b32 s37, s43, 1")
    a("s_waitcnt lgkmcnt(0)")
    srd(a,52,PWQKV,PWQKV+1,D*NQKV*2)
    w_ops(0,vm); w_ops(1,vm)
    srd(a,56,PWS,PWS+1,SZ_QA,WS_QA)
    a("v_and_b32 v3, 31, v1")
    a("s_lshl_b32 s60, s36, 5")
    a("v_add_u32 v3, s60, v3")
    a("v_lshrrev_b32 v4, 5, v1")
    a("v_bfe_u32 v5, v3, 1, 3")
    a("v_xor_b32 v5, v5, v4")
    a("v_lshlrev_b32 v5, 4, v5")
    a("v_lshl_add_u32 v10, v3, 7, v5")
    for s_ in range(1,4): a(f"v_xor_b32 v{10+s_}, {32*s_}, v10")
    a("v_bfe_u32 v5, v1, 2, 2")
    a("v_lshl_add_u32 v6, v4, 3, v5")
    a("v_mul_u32_u24 v6, 384, v6")
    a("v_bfe_u32 v7, v1, 4, 1")
    a("v_lshl_add_u32 v6, v7, 5, v6")
    a("v_and_b32 v7, 1, v1")
    a("v_lshl_add_u32 v6, v7, 4, v6")
    a("v_bfe_u32 v7, v1, 1, 1")
    a("v_lshl_add_u32 v6, v7, 3, v6")
    a(f"v_add_u32 v6, {WB}, v6")
    a("v_lshrrev_b32 v5, 1, v5")
    a("s_mul_i32 s60, s37, 3")
    for jj in range(3):
        a(f"s_add_u32 s61, s60, {jj}")
        a("v_xor_b32 v7, s61, v5")
        a(f"v_lshl_add_u32 v{20+jj}, v7, 6, v6")
        a(f"v_add_u32 v{24+jj}, {2*WSLOT}, v{20+jj}")
    a(f"s_mul_i32 s60, s{CB}, 192")
    a("s_mul_i32 s61, s37, 96")
    a("s_add_u32 s60, s60, s61")
    a(f"s_lshl_b32 s62, s{RB}, 1")
    a("s_add_u32 s62, s62, s36")
    a(f"s_mul_i32 s62, s62, {TBS}")
    a("s_lshl_b32 s61, s60, 6")
    a("s_add_u32 s62, s62, s61")
    a("s_add_u32 s63, s62, 4096")
    for jj in range(3):
        a(f"s_add_u32 s61, s60, {32*jj}")
        a("s_cmp_lt_u32 s61, 448")
        a(f"s_cselect_b32 s{78+2*jj}, {f32bits(DH**-0.5*LOG2E)}, {f32bits(1.0)}")
        a(f"s_mov_b32 s{79+2*jj}, s{78+2*jj}")
    a("v_lshlrev_b32 v5, 4, v1")
    ACC=32; BFq=96; AFq=112
    NK=28
    def rdB(k):
        c=k//4; s_=k%4; b=k%3
        a(f"ds_read_b128 {v(BFq+4*b,4)}, v{10+s_} offset:{XB+c*8192}"); lg.issue(("f",k,0))
    def rdA(k,jj):
        c=k//4; s_=k%4; slot=c%4; b=k%3
        ab=(20 if slot<2 else 24)+jj
        o=(slot&1)*WSLOT+s_*16*384
        a(f"ds_read_b64_tr_b16 {v(AFq+12*b+4*jj,2)}, v{ab} offset:{o}"); lg.issue(("f",k,jj))
        a(f"ds_read_b64_tr_b16 {v(AFq+12*b+4*jj+2,2)}, v{ab} offset:{o+4*384}"); lg.issue(("f",k,jj))
    vm.wait(("W",0))
    st(a,"C0")
    w_ops(2,vm)
    a("s_barrier")
    st(a,"B0")
    for k in (0,1):
        rdB(k)
        for jj in range(3): rdA(k,jj)
    for k in range(NK):
        b=k%3
        for jj in range(3):
            lg.wait(("f",k,jj))
            cin="0" if k==0 else v(ACC+16*jj,16)
            a(f"v_mfma_f32_32x32x16_bf16 {v(ACC+16*jj,16)}, {v(AFq+12*b+4*jj,4)}, {v(BFq+4*b,4)}, {cin}")
            if k+2<NK:
                if jj==0:
                    if (k+2)%4==0:
                        vm.wait(("W",(k+2)//4))
                        a("s_barrier")
                        if k+2==4: w_ops(3,vm)
                    rdB(k+2)
                rdA(k+2,jj)
    st(a,"mfma")
    a("s_nop 7")
    a("s_nop 1")
    OB=160
    for jj in range(3):
        for r in range(8): a(f"v_pk_mul_f32 {v(ACC+16*jj+2*r,2)}, {v(ACC+16*jj+2*r,2)}, s[{78+2*jj}:{79+2*jj}]")
        for r in range(8): a(f"v_cvt_pk_bf16_f32 v{OB+8*jj+r}, v{ACC+16*jj+2*r}, v{ACC+16*jj+2*r+1}")
        sb=62 if jj<2 else 63; o=2048*(jj%2)
        a(f"buffer_store_dwordx4 {v(OB+8*jj,4)}, v5, s[56:59], s{sb} offen offset:{o}")
        a(f"buffer_store_dwordx4 {v(OB+8*jj+4,4)}, v5, s[56:59], s{sb} offen offset:{o+1024}")
    st(a,"epi")
    dump(a)
    a("s_endpgm")
    a.label(P('spare'))
    a(f"s_sub_u32 s36, s{SI}, 28")
    a("s_lshl_b32 s36, s36, 3")
    a(f"s_add_u32 s36, s36, s{SX}")
    sdiv(a,37,38,36,14,39)
    a("v_lshrrev_b32 v3, 4, v1")
    a(f"s_lshl_b32 s39, s{SW}, 2")
    a("v_add_u32 v3, s39, v3")
    a("v_mul_u32_u24 v4, 3584, v3")
    a("v_and_b32 v5, 15, v1")
    a("v_lshl_add_u32 v4, v5, 4, v4")
    a("s_waitcnt lgkmcnt(0)")
    a("s_cmp_lt_u32 s36, 28")
    a(f"s_cbranch_scc1 {P('cs')}")
    a("s_cmp_lg_u32 s36, 31")
    a(f"s_cbranch_scc1 {P('end')}")
    srd(a,SRD_FLAG,PWS,PWS+1,SZ_FLAG,WS_FLAG)
    a("v_lshlrev_b32 v3, 4, v0")
    for r in range(4,8): a(f"v_mov_b32 v{r}, 0")
    a(f"buffer_store_dwordx4 v[4:7], v3, s[{SRD_FLAG}:{SRD_FLAG+3}], 0 offen")
    a("s_mov_b32 s37, 8192")
    a(f"buffer_store_dwordx4 v[4:7], v3, s[{SRD_FLAG}:{SRD_FLAG+3}], s37 offen")
    a("s_endpgm")
    a.label(P('cs'))
    a("s_cmp_eq_u32 s37, 0")
    a(f"s_cselect_b32 s40, s{PWG}, s{PWU}")
    a(f"s_cselect_b32 s41, s{PWG+1}, s{PWU+1}")
    srd(a,48,40,41,D*F*2)
    srd(a,52,PWS,PWS+1,SZ_CS,WS_CS)
    a("s_lshl_b32 s42, s38, 8")
    def csl(i):
        a(f"s_add_u32 s43, s42, {i*32*3584}")
        a(f"buffer_load_dwordx4 {v(32+4*i,4)}, v4, s[48:51], s43 offen")
    for i in range(CS_DEPTH): csl(i)
    for r in range(8): a(f"v_mov_b32 v{16+r}, 0")
    for i in range(14):
        a(f"s_waitcnt vmcnt({min(13-i,CS_DEPTH-1)})")
        if i+CS_DEPTH<14: csl(i+CS_DEPTH)
        for d_ in range(4):
            a(f"v_lshlrev_b32 v{24+2*d_}, 16, v{32+4*i+d_}")
            a(f"v_and_b32 v{25+2*d_}, 0xffff0000, v{32+4*i+d_}")
        for d_ in range(4):
            a(f"v_pk_add_f32 {v(16+2*d_,2)}, {v(16+2*d_,2)}, {v(24+2*d_,2)}")
    a("v_lshlrev_b32 v6, 9, v3")
    a("v_lshl_add_u32 v6, v5, 5, v6")
    a("ds_write_b128 v6, v[16:19]")
    a("ds_write_b128 v6, v[20:23] offset:16")
    a("s_waitcnt lgkmcnt(0)")
    a("s_barrier")
    a(f"s_cmp_ge_u32 s{SW}, 2")
    a(f"s_cbranch_scc1 {P('end')}")
    a("v_lshlrev_b32 v6, 2, v0")
    for i in range(32):
        a(f"ds_read_b32 v{32+i}, v6 offset:{512*i}")
        if i%8==7: a("s_waitcnt lgkmcnt(0)")
    a("v_mov_b32 v16, 0")
    a("v_mov_b32 v17, 0")
    for i in range(0,32,2):
        a(f"v_pk_add_f32 v[16:17], v[16:17], {v(32+i,2)}")
    a("v_add_f32 v16, v16, v17")
    a(f"s_mul_i32 s42, s37, {F*4}")
    a("s_lshl_b32 s43, s38, 9")
    a("s_add_u32 s42, s42, s43")
    a("buffer_store_dword v16, v6, s[52:55], s42 offen")
    dump(a)
    a.label(P('end'))
    a("s_endpgm")
    return a.text(), kdesc(name,256 if STAMP else 192)

def CH(c): return 16384*c if c<3 else (KVB+16384*(c-3) if c<6 else UB)
MISC=49152
NEARLY=5; NRES=19
def p5_group_addr(n):
    if n<5: return UB+16384+8192*n
    if n<19:
        k=n-5; return CH(k//2)+8192*(k%2)
    return p5_group_addr(n-19)
VW=254; VG=252; VU=253; VL16=251; VL4=250; VRES=240
S_GU=94; S_W1K=95; S_WD=78; S_WDROT=93; S_WOROT=77
SRD_G=80; SRD_U=84; SRD_WD=96
def gu_dma(a, c, m, vm=None):
    a(f"s_add_u32 m0, s{S_W1K}, {CH(c)+8192*m}")
    if m==1: a(f"s_add_u32 s92, s90, {64*3584}")
    else: a("s_nop 0")
    if not NOW:
        a(f"buffer_load_dwordx4 v{VG+m}, s[{SRD_G+4*m}:{SRD_G+3+4*m}], s90 offen lds")
        if vm: vm.issue(("W",c))
    if m==1:
        a("s_cmp_eq_u32 s92, s91")
        a(f"s_cselect_b32 s90, s{S_GU}, s92")
def wd_dma(a, n, vm=None):
    a(f"s_add_u32 m0, s{S_W1K}, {p5_group_addr(n)}")
    a(f"s_add_u32 s92, s79, {64*896}")
    if not NOW:
        a(f"buffer_load_dwordx4 v{VW}, s[{SRD_WD}:{SRD_WD+3}], s79 offen lds")
        if vm: vm.issue(("wd",n))
    a("s_cmp_eq_u32 s92, s75")
    a(f"s_cselect_b32 s79, s{S_WD}, s92")

def kb_phase2(a):
    KB=KVB; VB=KVB+24576
    HD,QB=36,37
    a(f"s_lshr_b32 s{HD}, s{SI}, 1")
    a(f"s_and_b32 s38, s{SI}, 1")
    a(f"s_lshl_b32 s{QB}, s{SX}, 1")
    a(f"s_add_u32 s{QB}, s{QB}, s38")
    a(f"s_mul_i32 s40, s{HD}, 7")
    a("s_lshr_b32 s40, s40, 1")
    a(f"s_and_b32 s41, s{HD}, 1")
    a("v_and_b32 v3, 15, v1")
    a("v_lshrrev_b32 v4, 4, v1")
    a("v_lshlrev_b32 v5, 9, v4")
    a("v_lshl_add_u32 v6, v3, 4, v5")
    a("v_and_b32 v7, 1, v4")
    a("v_lshlrev_b32 v7, 3, v7")
    a("v_xor_b32 v7, v7, v3")
    a("v_lshl_add_u32 v7, v7, 4, v5")
    a(f"s_lshl_b32 s42, s{QB}, 3")
    a(f"s_add_u32 s42, s42, s{SW}")
    a("s_lshr_b32 s43, s42, 1")
    a(f"s_mul_i32 s43, s43, {TBS}")
    a("s_and_b32 s44, s42, 1")
    a("s_lshl_b32 s44, s44, 8")
    a("s_add_u32 s43, s43, s44")
    a("s_lshl_b32 s45, s40, 9")
    a("s_add_u32 s46, s43, s45")
    for u in range(3):
        a(f"s_mul_i32 s56, s{SW}, 3")
        a(f"s_add_u32 s56, s56, {u}")
        a(f"s_lshl_b32 s57, s{QB}, 3")
        a("s_add_u32 s57, s57, s56")
        a("s_sub_u32 s57, s57, 16")
        a("s_lshr_b32 s58, s57, 1")
        a(f"s_mul_i32 s58, s58, {TBS}")
        a("s_and_b32 s59, s57, 1")
        a("s_lshl_b32 s59, s59, 8")
        a("s_add_u32 s58, s58, s59")
        a("s_add_u32 s58, s58, s45")
        a("s_cmp_lt_i32 s57, 0")
        a("s_cselect_b32 s58, 0x40000000, s58")
        a(f"s_add_u32 s{66+2*u}, s58, {56*512}")
        a(f"s_add_u32 s{67+2*u}, s58, {112*512}")
    a(f"s_mul_i32 s60, s{SW}, 3072")
    a(f"s_add_u32 s60, s60, {KB}")
    QF=12
    srd(a,48,PWS,PWS+1,SZ_QA,WS_QA)
    a(f"buffer_load_dwordx4 {v(QF,4)}, v6, s[48:51], s46 offen sc1")
    for u in range(3):
        a(f"s_add_u32 m0, s60, {1024*u}")
        a("s_nop 0")
        a(f"buffer_load_dwordx4 v6, s[48:51], s{66+2*u} offen sc1 lds")
    for u in range(3):
        a(f"s_add_u32 m0, s60, {VB-KB+1024*u}")
        a("s_nop 0")
        a(f"buffer_load_dwordx4 v7, s[48:51], s{67+2*u} offen sc1 lds")
    a(f"s_lshl_b32 s74, s{SX}, 7")
    a(f"s_lshl_b32 s56, s{SI}, 2")
    a("s_add_u32 s56, s56, s74")
    a(f"s_cmp_eq_u32 s{SW}, 7")
    a("s_cselect_b32 s56, s56, 0x40000000")
    a(f"v_mov_b32 v2, s{SXC}")
    a("v_mov_b32 v8, 0")
    a("s_mov_b64 exec, 1")
    a(f"buffer_store_dword v2, v8, s[{SRD_FLAG}:{SRD_FLAG+3}], s56 offen sc1")
    a("s_mov_b64 exec, -1")
    M0R=16; M16=20
    a("v_lshlrev_b32 v8, 2, v4")
    a(f"v_mov_b32 v9, {NEG}")
    for r in range(4):
        a(f"v_add_u32 v10, {r}, v8")
        a("v_cmp_lt_u32 vcc, v3, v10")
        a("s_nop 1")
        a(f"v_cndmask_b32_e64 v{M0R+r}, v9, 0, vcc")
        a(f"v_cndmask_b32_e64 v{M16+r}, 0, v9, vcc")
    a(f"v_lshlrev_b32 v{VL16}, 4, v1")
    a(f"v_lshlrev_b32 v{VL4}, 2, v1")
    a(f"s_lshl_b32 s{S_W1K}, s{SW}, 10")
    a(f"s_add_u32 s47, s{S_W1K}, {KB}")
    a(f"v_add_u32 v10, s47, v{VL16}")
    a("v_bfe_u32 v24, v1, 2, 2")
    a("v_add_u32 v24, v24, v8")
    a("v_bfe_u32 v25, v1, 1, 1")
    a("v_lshlrev_b32 v26, 3, v25")
    a("v_xor_b32 v24, v24, v26")
    a("v_lshlrev_b32 v24, 4, v24")
    a("v_lshl_add_u32 v24, v25, 8, v24")
    a("v_and_b32 v25, 1, v1")
    a("v_lshl_add_u32 v24, v25, 3, v24")
    a(f"v_add_u32 v24, {VB-KB}, v24")
    a("v_add_u32 v11, s47, v24")
    a("v_lshrrev_b32 v28, 1, v4")
    a("v_lshlrev_b32 v28, 9, v28")
    a("v_lshl_add_u32 v28, v3, 4, v28")
    a("v_and_b32 v29, 1, v4")
    a("v_lshl_add_u32 v28, v29, 3, v28")
    a("v_add_u32 v29, 1024, v28")
    a("v_mov_b32 v30, 0x40000000")
    a("s_cmp_eq_u32 s41, 0")
    a("s_cselect_b32 s62, 64, 0")
    a("s_cselect_b32 s63, 3, 64")
    a("v_cmp_eq_u32 vcc, s62, v4")
    a("s_nop 1")
    a("v_cndmask_b32 v28, v28, v30, vcc")
    a("v_cmp_eq_u32 vcc, s63, v4")
    a("s_nop 1")
    a("v_cndmask_b32 v29, v29, v30, vcc")
    a(f"s_lshl_b32 s61, s{QB}, 4")
    a(f"s_add_u32 s61, s61, s{HD}")
    a("s_lshl_b32 s61, s61, 2")
    a(f"s_add_u32 s61, s61, {F2}")
    a(f"v_lshrrev_b32 v{VW}, 3, v1")
    a(f"v_mul_u32_u24 v150, 3584, v{VW}")
    a(f"v_mul_u32_u24 v{VW}, 896, v{VW}")
    a("v_bfe_u32 v151, v1, 2, 1")
    a("v_bfe_u32 v152, v1, 4, 1")
    a("v_xor_b32 v151, v151, v152")
    a(f"v_lshl_add_u32 v{VW}, v151, 6, v{VW}")
    a("v_and_b32 v151, 3, v1")
    a(f"v_lshl_add_u32 v{VW}, v151, 4, v{VW}")
    a("v_bfe_u32 v151, v1, 1, 2")
    a("v_xor_b32 v151, v151, v152")
    a("v_and_b32 v152, 1, v1")
    a("v_lshl_add_u32 v150, v152, 4, v150")
    a(f"v_lshl_add_u32 v{VG}, v151, 5, v150")
    a("v_xor_b32 v151, 2, v151")
    a(f"v_lshl_add_u32 v{VU}, v151, 5, v150")
    srd(a,SRD_G,PWG,PWG+1,D*F*2)
    srd(a,SRD_U,PWU,PWU+1,D*F*2)
    srd(a,SRD_WD,PWO,PWO+1,D*D*2)
    a(f"s_mul_i32 s{S_GU}, s{SW}, {8*3584}")
    a(f"s_lshl_b32 s56, s{SI}, 7")
    a(f"s_add_u32 s{S_GU}, s{S_GU}, s56")
    a(f"s_mul_i32 s{S_WD}, s{SW}, {8*896}")
    a("s_lshl_b32 s56, s89, 7")
    a(f"s_add_u32 s{S_WD}, s{S_WD}, s56")
    a(f"s_lshl_b32 s56, s92, 1")
    if ROTB: rot_idx(a,S_WOROT,"s56",89,7)
    else: a(f"s_mov_b32 s{S_WOROT}, s56")
    a("s_mul_i32 s56, s92, 7")
    a("s_lshl_b32 s57, s89, 2")
    if ROTB: rot_idx(a,S_WDROT,"s56",57,28)
    else: a(f"s_mov_b32 s{S_WDROT}, s56")
    a(f"s_cmp_ge_u32 s{SI}, 28")
    a(f"s_cselect_b32 s{S_GU}, 0x40000000, s{S_GU}")
    a(f"s_cselect_b32 s{S_WD}, 0x40000000, s{S_WD}")
    a(f"s_mul_i32 s90, s89, {64*3584 if ROT4 else 0}")
    a(f"s_add_u32 s90, s90, s{S_GU}")
    a(f"s_add_u32 s91, s{S_GU}, {7*64*3584}")
    a(f"s_mul_i32 s79, s{S_WOROT}, {64*896}")
    a(f"s_add_u32 s79, s79, s{S_WD}")
    a(f"s_add_u32 s75, s{S_WD}, {7*64*896}")
    a(f"s_and_b32 s56, s{SW}, 3")
    a(f"s_lshr_b32 s57, s{SW}, 2")
    a("s_lshl_b32 s58, s88, 1")
    a("s_add_u32 s58, s58, s57")
    a(f"s_mul_i32 s58, s58, {32*896}")
    a("s_lshl_b32 s59, s89, 7")
    a("s_add_u32 s58, s58, s59")
    a("s_lshl_b32 s59, s56, 5")
    a("s_add_u32 s73, s58, s59")
    a(f"s_cmp_ge_u32 s{SI}, 28")
    a("s_cselect_b32 s73, 0x40000000, s73")
    a("v_and_b32 v150, 31, v1")
    a("v_mul_u32_u24 v150, 896, v150")
    a("v_lshrrev_b32 v151, 5, v1")
    a("v_lshl_add_u32 v249, v151, 4, v150")
    srd(a,56,PX,PX+1,S*D*2)
    a("s_waitcnt vmcnt(7)")
    a("s_cmp_eq_u32 s41, 0")
    a(f"s_cbranch_scc0 {P('p2_odd')}")
    a("v_cmp_gt_u32 vcc, 48, v1")
    a("s_nop 1")
    a(f"v_cndmask_b32 v{QF+2}, 0, v{QF+2}, vcc")
    a(f"v_cndmask_b32 v{QF+3}, 0, v{QF+3}, vcc")
    a(f"s_branch {P('p2_qd')}")
    a.label(P('p2_odd'))
    a("v_cmp_le_u32 vcc, 16, v1")
    a("s_nop 1")
    a(f"v_cndmask_b32 v{QF+0}, 0, v{QF+0}, vcc")
    a(f"v_cndmask_b32 v{QF+1}, 0, v{QF+1}, vcc")
    a.label(P('p2_qd'))
    st(a,"setup")
    a("s_waitcnt vmcnt(1)")
    a("s_barrier")
    st(a,"kv")
    def wo_dma(n):
        a(f"s_add_u32 m0, s{S_W1K}, {UB+8192*n}")
        a(f"s_add_u32 s92, s79, {64*896}")
        if not NOW: a(f"buffer_load_dwordx4 v{VW}, s[{SRD_WD}:{SRD_WD+3}], s79 offen lds")
        a("s_cmp_eq_u32 s92, s75")
        a(f"s_cselect_b32 s79, s{S_WD}, s92")
    pf=[lambda n=n: wo_dma(n) for n in range(7)]
    pf+=[lambda: a(f"buffer_load_dwordx4 {v(VRES,4)}, v249, s[56:59], s73 offen")]
    pf+=[lambda k=k: gu_dma(a,k//2,k%2) for k in range(2*P2_CH)]
    def htouch():
        srd(a,68,PWS,PWS+1,SZ_H,WS_H)
        a(f"s_lshr_b32 s66, s{SW}, 2")
        a("s_lshl_b32 s67, s88, 1")
        a("s_add_u32 s66, s66, s67")
        a(f"s_mul_i32 s67, s66, {56*512}")
        a("s_lshl_b32 s72, s89, 12")
        a("s_add_u32 s67, s67, s72")
        a(f"s_and_b32 s72, s{SW}, 3")
        a("s_lshl_b32 s72, s72, 10")
        a("s_add_u32 s67, s67, s72")
        a(f"s_cmp_ge_u32 s{SI}, 28")
        a("s_cselect_b32 s67, 0x40000000, s67")
        a(f"buffer_load_dwordx4 v[144:147], v{VL16}, s[68:71], s67 offen sc1")
        srd(a,68,PWS,PWS+1,SZ_ST2,WS_ST2)
        a(f"s_mul_i32 s67, s89, {S*8}")
        a("s_lshl_b32 s66, s66, 8")
        a("s_add_u32 s67, s67, s66")
        a(f"buffer_load_dword v148, v{VL4}, s[68:71], s67 offen sc1")
    if TOUCH: htouch()
    def csdma():
        srd(a,68,PWS,PWS+1,SZ_CS,WS_CS)
        a(f"s_mul_i32 s66, s{SW}, {F*4}")
        a(f"s_lshl_b32 s67, s{SI}, 8")
        a("s_add_u32 s66, s66, s67")
        a(f"s_min_u32 s67, s{SW}, 2")
        a("s_lshl_b32 s67, s67, 8")
        a(f"s_add_u32 m0, s67, {MISC}")
        a("s_nop 0")
        a(f"buffer_load_dword v{VL4}, s[68:71], s66 offen lds")
    csdma()
    SR=32; KF=100; NB=6
    for t in range(NB):
        a(f"ds_read_b128 {v(KF+4*(t%NB),4)}, v10 offset:{1024*t}")
    for t in range(17):
        outstanding=min(17,t+NB)-t-1
        a(f"s_waitcnt lgkmcnt({outstanding})")
        cin = v(M0R,4) if t==0 else (v(M16,4) if t==16 else "0")
        a(f"v_mfma_f32_16x16x32_bf16 {v(SR+4*t,4)}, {v(KF+4*(t%NB),4)}, {v(QF,4)}, {cin}")
        if t+NB<17:
            a(f"ds_read_b128 {v(KF+4*(t%NB),4)}, v10 offset:{1024*(t+NB)}")
        if t%3==2 and pf: pf.pop(0)()
    VF=100
    def vread(j):
        b=VF+8*(j%3)
        for dt in range(2):
            a(f"ds_read_b64_tr_b16 {v(b+4*dt,2)}, v11 offset:{1024*(2*j)+512*dt}")
            if 2*j+1<17:
                a(f"ds_read_b64_tr_b16 {v(b+4*dt+2,2)}, v11 offset:{1024*(2*j+1)+512*dt}")
    vread(0); vread(1); vread(2)
    a("s_cmp_ge_u32 s42, 16")
    a(f"s_cbranch_scc1 {P('p2_nomask')}")
    a("s_sub_u32 s63, 16, s42")
    for t in range(16):
        a(f"s_cmp_le_u32 s63, {t}")
        a(f"s_cbranch_scc1 {P('p2_nomask')}")
        for r in range(4): a(f"v_mov_b32 v{SR+4*t+r}, v9")
    a.label(P('p2_nomask'))
    st(a,"qk")
    a(f"v_max3_f32 v24, v{SR}, v{SR+1}, v{SR+2}")
    a(f"v_max3_f32 v25, v{SR+3}, v{SR+4}, v{SR+5}")
    i=6; k=0
    while i+1<68:
        a(f"v_max3_f32 v{24+k}, v{24+k}, v{SR+i}, v{SR+i+1}")
        i+=2; k^=1
    a("v_max_f32 v24, v24, v25")
    a("v_mov_b32 v25, v24")
    a("s_nop 1")
    a("v_permlane32_swap_b32 v24, v25")
    a("v_max_f32 v24, v24, v25")
    a("v_mov_b32 v25, v24")
    a("s_nop 1")
    a("v_permlane16_swap_b32 v24, v25")
    a("v_max_f32 v24, v24, v25")
    a("v_mov_b32 v25, v24")
    a("v_mov_b32 v26, 0\nv_mov_b32 v27, 0")
    O0=124; O1=128; PP=132
    after_id=[0]
    for j in range(9):
        nt = 2 if 2*j+1<17 else 1
        pb=PP+4*(j%2)
        regs=[SR+8*j+r for r in range(4*nt)]
        for r in regs[::2]: a(f"v_pk_add_f32 {v(r,2)}, {v(r,2)}, v[24:25] neg_lo:[0,1] neg_hi:[0,1]")
        for r in regs: a(f"v_exp_f32 v{r}, v{r}")
        if pf:
            pf.pop(0)()
            if j>4: after_id[0]+=1
        else: a("s_nop 0")
        for q,r in enumerate(regs[::2]):
            a(f"v_cvt_pk_bf16_f32 v{pb+q}, v{r}, v{r+1}")
        for r in regs[::2]: a(f"v_pk_add_f32 v[26:27], v[26:27], {v(r,2)}")
        rem=0
        for jj in range(j+1,min(9,j+3)):
            rem += 4 if 2*jj+1<17 else 2
        a(f"s_waitcnt lgkmcnt({rem})")
        b=VF+8*(j%3)
        c0 = "0" if j==0 else v(O0,4)
        c1 = "0" if j==0 else v(O1,4)
        if nt==2:
            a(f"v_mfma_f32_16x16x32_bf16 {v(O0,4)}, {v(b,4)}, {v(pb,4)}, {c0}")
            a(f"v_mfma_f32_16x16x32_bf16 {v(O1,4)}, {v(b+4,4)}, {v(pb,4)}, {c1}")
        else:
            a(f"v_mfma_f32_16x16x16_bf16 {v(O0,4)}, {v(b,2)}, {v(pb,2)}, {c0}")
            a(f"v_mfma_f32_16x16x16_bf16 {v(O1,4)}, {v(b+4,2)}, {v(pb,2)}, {c1}")
        if j+3<9: vread(j+3)
        if j==4:
            a(f"buffer_load_dword v31, v{VL4}, s[{SRD_FLAG}:{SRD_FLAG+3}], s74 offen sc1")
    while pf: pf.pop(0)(); after_id[0]+=1
    a("v_add_f32 v26, v26, v27")
    a("v_mov_b32 v27, v26")
    a("s_nop 1")
    a("v_permlane32_swap_b32 v26, v27")
    a("v_add_f32 v26, v26, v27")
    a("v_mov_b32 v27, v26")
    a("s_nop 1")
    a("v_permlane16_swap_b32 v26, v27")
    a("v_add_f32 v26, v26, v27")
    a("v_rcp_f32 v26, v26")
    a("s_nop 0")
    for r in range(8): a(f"v_mul_f32 v{O0+r}, v26, v{O0+r}")
    for r in range(4): a(f"v_cvt_pk_bf16_f32 v{PP+r}, v{O0+2*r}, v{O0+2*r+1}")
    a(f"s_waitcnt vmcnt({0 if NOW else after_id[0]})")
    a("v_cmp_eq_u32 vcc, 0, v31")
    a("s_nop 3")
    a("s_cmp_eq_u32 vcc_lo, 0")
    a(f"s_cbranch_scc1 {P('idok')}")
    spin(a,VL4,"s74",-1,0,"wid",vd=31)
    a.label(P('idok'))
    a(f"v_cmp_ne_u32 vcc, s{SXC}, v31")
    a("s_nop 3")
    a("s_cmp_eq_u32 vcc_lo, 0")
    a(f"s_cselect_b32 s{SMODE}, {0 if FORCE_SLOW else 1}, 0")
    hstore(a,[f"buffer_store_dwordx2 {v(PP,2)}, v28, s[48:51], s46 offen",
              f"buffer_store_dwordx2 {v(PP+2,2)}, v29, s[48:51], s46 offen"])
    signal(a,61,"s2")
    a(f"s_cmp_lg_u32 s{SW}, 2")
    a(f"s_cbranch_scc1 {P('nofn')}")
    a(f"s_lshl_b32 s61, s{SI}, 2")
    a("s_add_u32 s61, s61, s74")
    a(f"s_add_u32 s61, s61, {FN}")
    a("v_mov_b32 v2, 1")
    a("v_mov_b32 v3, 0")
    a("s_mov_b64 exec, 1")
    a(f"buffer_store_dword v2, v3, s[{SRD_FLAG}:{SRD_FLAG+3}], s61 offen sc1")
    a("s_mov_b64 exec, -1")
    a.label(P('nofn'))
    a(f"s_cmp_ge_u32 s{SI}, 28")
    a(f"s_cbranch_scc1 {P('spare2')}")

def kb_phase35(a, mode):
    k3=(mode==3); tag=f"p{mode}"
    KD=D if k3 else F
    NST=KD//64
    vm=Cnt(a,"vmcnt"); lg=Cnt(a,"lgkmcnt")
    KS,TG=36,37
    a(f"s_and_b32 s{KS}, s{SW}, 3")
    a(f"s_lshr_b32 s{TG}, s{SW}, 2")
    a(f"s_lshr_b32 s38, s{KS}, 1")
    a(f"s_and_b32 s39, s{KS}, 1")
    a("v_lshrrev_b32 v4, 5, v1")
    a("v_bfe_u32 v5, v1, 2, 2")
    a("v_lshl_add_u32 v8, v4, 3, v5")
    a("v_lshlrev_b32 v8, 7, v8")
    a("v_lshrrev_b32 v5, 1, v5")
    a("v_xor_b32 v5, s38, v5")
    a("v_lshl_add_u32 v8, v5, 6, v8")
    a("v_bfe_u32 v5, v1, 4, 1")
    a("v_xor_b32 v5, s39, v5")
    a("v_lshl_add_u32 v8, v5, 5, v8")
    a("v_and_b32 v5, 1, v1")
    a("v_lshl_add_u32 v8, v5, 4, v8")
    a("v_bfe_u32 v5, v1, 1, 1")
    a("v_lshl_add_u32 v8, v5, 3, v8")
    a(f"s_lshl_b32 s40, s{KS}, 11")
    a("v_add_u32 v8, s40, v8")
    a("v_xor_b32 v9, 64, v8")
    a("v_add_u32 v10, 0x10000, v8")
    a("v_add_u32 v11, 0x10000, v9")
    if not k3:
        a("v_add_u32 v12, 0x20000, v8")
        a("v_add_u32 v13, 0x20000, v9")
    if k3:
        srd(a,56,PWS,PWS+1,SZ_H,WS_H)
        srd(a,60,PWS,PWS+1,SZ_ST2,WS_ST2)
    else:
        srd(a,48,PWS,PWS+1,SZ_QA,WS_QA)
        srd(a,52,PWS,PWS+1,SZ_H,WS_H)
        srd(a,56,POUT,POUT+1,S*D*2)
    a("s_lshl_b32 s40, s88, 1")
    a(f"s_add_u32 s40, s40, s{TG}")
    a(f"s_mul_i32 s41, s40, {TBS}")
    a(f"s_lshl_b32 s42, s{KS}, 10")
    a("s_add_u32 s41, s41, s42")
    a(f"s_add_u32 s43, s41, {NST*4096}")
    a(f"s_lshl_b32 s42, s{S_WOROT if k3 else S_WDROT}, 12")
    a("s_add_u32 s42, s42, s41")
    a(f"s_mul_i32 s45, s40, {56*512}")
    a("s_lshl_b32 s46, s89, 12")
    a("s_add_u32 s45, s45, s46")
    a(f"s_lshl_b32 s46, s{KS}, 10")
    a("s_add_u32 s45, s45, s46")
    if k3: b0,b1=KVB,KVB+24576
    else: b0,b1=KVB,KVB+24576
    a(f"s_mul_i32 s46, s{TG}, {b1-b0}")
    a(f"s_add_u32 s46, s46, {b0}")
    a(f"s_mul_i32 s47, s{KS}, 6144")
    a("s_add_u32 s47, s47, s46")
    a(f"v_add_u32 v24, s47, v{VL16}")
    for j in (1,2,3):
        a(f"s_xor_b32 s47, s{KS}, {j}")
        a("s_mul_i32 s47, s47, 6144")
        a("s_add_u32 s47, s47, s46")
        a(f"v_add_u32 v{24+j}, s47, v{VL16}")
    RES=VRES if k3 else 16; ACC=32; AF=64; BF=96
    RB_=28 if not k3 else 7
    if k3:
        a(f"s_mul_i32 s44, s89, {S*8}")
        a(f"s_lshl_b32 s47, s{SW}, 9")
        a(f"s_add_u32 s47, s47, {MISC+1024}")
        a("v_lshlrev_b32 v28, 3, v1")
        a("v_add_u32 v28, s47, v28")
        a(f"s_lshl_b32 s47, s{TG}, 11")
        a(f"s_add_u32 s47, s47, {MISC+1024}")
        a("v_and_b32 v29, 31, v1")
        a("v_lshlrev_b32 v29, 3, v29")
        a("v_add_u32 v29, s47, v29")
        a("s_lshl_b32 s47, s40, 8")
        a("s_add_u32 s44, s44, s47")
        a("v_lshlrev_b32 v14, 3, v1")
        a("v_mov_b32 v15, 0x40000000")
        a("v_cmp_gt_u32 vcc, 32, v1")
        a("s_nop 1")
        a("v_cndmask_b32 v14, v15, v14, vcc")
        a("s_lshr_b32 s72, s88, 2")
        a("s_lshl_b32 s72, s72, 7")
        a(f"s_lshl_b32 s47, s{SI}, 2")
        a("s_add_u32 s72, s72, s47")
        a(f"s_add_u32 s72, s72, {F3}")
        a("s_lshr_b32 s46, s88, 1")
        a("s_lshl_b32 s46, s46, 6")
        a(f"s_add_u32 s46, s46, {F2}")
        a("s_mov_b32 s47, 0xffff0000")
        poll(a,VL4,"s46",0xffff,0,"w2")
    else:
        a(f"buffer_load_dwordx4 {v(RES,4)}, v{VL16}, s[52:55], s45 offen"); vm.issue("res")
        a(f"s_add_u32 s46, s74, {F4}")
        a("s_mov_b32 s47, 0xffff0000")
        poll(a,VL4,"s46",0x0fffffff,0,"w4")
    def bload(n):
        a("s_add_u32 s46, s42, 4096")
        a(f"buffer_load_dwordx4 {v(BF+4*(n%RB_),4)}, v{VL16}, s[48:51], s42 offen sc1"); vm.issue(("B",n))
        a("s_cmp_eq_u32 s46, s43")
        a("s_cselect_b32 s42, s41, s46")
    def aread(n):
        ga = UB+8192*n if k3 else p5_group_addr(n)
        hi=ga>>16; o=ga&0xffff
        r0=8+2*hi
        b=AF+8*(n%2)
        for sl in range(2):
            a(f"ds_read_b64_tr_b16 {v(b+4*sl,2)}, v{r0+sl} offset:{o}"); lg.issue(("A",n))
            a(f"ds_read_b64_tr_b16 {v(b+4*sl+2,2)}, v{r0+sl} offset:{o+512}"); lg.issue(("A",n))
    LA0=7 if k3 else E('P5_LA0',4)
    for n in range(LA0): bload(n)
    nb=LA0
    if k3:
        for c in range(P2_CH,3):
            for m in range(2): gu_dma(a,c,m,vm)
    aread(0)
    pend=[]
    NB1=15; NB2=NRES
    for n in range(NST):
        if n+1<NST:
            if not k3 and n+1==NB1:
                vm.wait(("wd",NRES-1)); a("s_barrier")
            if not k3 and n+1==NB2:
                vm.wait(("wd",27)); a("s_barrier")
            aread(n+1)
        vm.wait(("B",n)); lg.wait(("A",n))
        for sl in range(2):
            cin="0" if n==0 else v(ACC+16*sl,16)
            a(f"v_mfma_f32_32x32x16_bf16 {v(ACC+16*sl,16)}, {v(AF+8*(n%2)+4*sl,4)}, {v(BF+4*(n%RB_),4)}, {cin}")
        for _ in range(E('P5_BPS',2)):
            if nb<NST and nb-n<=E('P5_LAM',10): bload(nb); nb+=1
        if STAMP and n in (0,8,18): lg.waitall(); st(a,f"{tag}_n{n}")
        if not k3:
            if n==3: pend=list(range(NB1,NRES))
            if n==8:
                a("s_barrier")
                pend+=list(range(NRES,28))
            for _ in range(1 if n<8 else 2):
                if pend: wd_dma(a,pend.pop(0),vm)
    st(a,tag+"_mfma")
    a("s_nop 7")
    a("s_nop 3")
    for j in (1,2,3):
        for q in range(2): a(f"ds_write_b128 v24, {v(ACC+8*j+4*q,4)} offset:{(j-1)*2048+q*1024}")
    vm.wait("res")
    UBr=AF
    for d_ in range(4):
        a(f"v_lshlrev_b32 v{UBr+2*d_}, 16, v{RES+d_}")
        a(f"v_and_b32 v{UBr+2*d_+1}, s47, v{RES+d_}")
    for d_ in range(4):
        a(f"v_pk_add_f32 {v(ACC+2*d_,2)}, {v(ACC+2*d_,2)}, {v(UBr+2*d_,2)}")
    a("s_waitcnt lgkmcnt(0)")
    a("s_barrier")
    st(a,tag+"_red")
    PR=BF
    for j in (1,2,3):
        for q in range(2): a(f"ds_read_b128 {v(PR+8*j+4*q,4)}, v{24+j} offset:{(j-1)*2048+q*1024}")
    for j in (1,2,3):
        a(f"s_waitcnt lgkmcnt({2*(3-j)})")
        for d_ in range(4):
            a(f"v_pk_add_f32 {v(ACC+2*d_,2)}, {v(ACC+2*d_,2)}, {v(PR+8*j+2*d_,2)}")
    OB=16
    for d_ in range(4): a(f"v_cvt_pk_bf16_f32 v{OB+d_}, v{ACC+2*d_}, v{ACC+2*d_+1}")
    if k3:
        hstore(a,[f"buffer_store_dwordx4 {v(OB,4)}, v{VL16}, s[56:59], s45 offen"])
        a("v_mov_b32 v22, 0x3f803f80")
        a("v_mov_b32 v20, 0")
        a("v_mov_b32 v21, 0")
        for d_ in range(4):
            a(f"v_dot2c_f32_bf16 v20, v{OB+d_}, v22")
            a(f"v_dot2c_f32_bf16 v21, v{OB+d_}, v{OB+d_}")
        a("s_nop 2")
        a("ds_write_b64 v28, v[20:21]")
        a("s_waitcnt lgkmcnt(0)")
        a("s_barrier")
        a(f"s_cmp_lg_u32 s{KS}, 0")
        a(f"s_cbranch_scc1 {P('p3_nost')}")
        for q in range(8): a(f"ds_read_b64 {v(32+2*q,2)}, v29 offset:{256*q}")
        a("s_waitcnt lgkmcnt(0)")
        for q in (0,2,4,6): a(f"v_pk_add_f32 {v(32+2*q,2)}, {v(32+2*q,2)}, {v(34+2*q,2)}")
        a("v_pk_add_f32 v[32:33], v[32:33], v[36:37]")
        a("v_pk_add_f32 v[40:41], v[40:41], v[44:45]")
        a("v_pk_add_f32 v[32:33], v[32:33], v[40:41]")
        hstore(a,[f"buffer_store_dwordx2 v[32:33], v14, s[60:63], s44 offen"])
        a.label(P('p3_nost'))
        signal(a,72,"s3")
    else:
        a(f"buffer_store_dwordx4 {v(OB,4)}, v249, s[56:59], s73 offen")

def kb_phase4(a):
    vm=Cnt(a,"vmcnt"); lg=Cnt(a,"lgkmcnt")
    for m in range(2): gu_dma(a,3,m)
    srd(a,SRD_WD,PWD,PWD+1,F*D*2)
    a(f"s_mul_i32 s79, s{S_WDROT}, {64*896}")
    a(f"s_add_u32 s79, s79, s{S_WD}")
    a(f"s_add_u32 s75, s{S_WD}, {28*64*896}")
    a("v_lshrrev_b32 v4, 5, v1")
    a("v_bfe_u32 v5, v1, 2, 2")
    a("v_lshl_add_u32 v9, v4, 3, v5")
    a("v_lshlrev_b32 v9, 7, v9")
    a("v_bfe_u32 v10, v1, 4, 1")
    a("v_and_b32 v11, 1, v1")
    a("v_lshl_add_u32 v9, v11, 4, v9")
    a("v_bfe_u32 v11, v1, 1, 1")
    a("v_lshl_add_u32 v9, v11, 3, v9")
    a("v_lshrrev_b32 v5, 1, v5")
    a("v_lshl_add_u32 v5, v10, 1, v5")
    a("v_lshl_add_u32 v9, v5, 5, v9")
    a("v_lshl_add_u32 v12, v10, 13, v9")
    for t in range(1,4): a(f"v_xor_b32 v{12+t}, {32*t}, v12")
    a(f"v_add_u32 v25, {KVB}, v12")
    a("v_xor_b32 v26, 32, v25")
    a("v_xor_b32 v27, 64, v25")
    a("v_xor_b32 v29, 96, v25")
    a("v_and_b32 v17, 31, v1")
    a("v_lshlrev_b32 v17, 3, v17")
    a(f"v_mul_u32_u24 v16, {S*8}, v4")
    a("v_add_u32 v17, v17, v16")
    a("v_lshlrev_b32 v28, 5, v4")
    a(f"s_lshl_b32 s56, s{SX}, 3")
    a(f"s_add_u32 s56, s56, s{SW}")
    a(f"s_mul_i32 s57, s56, {28*1024}")
    a(f"s_add_u32 s54, s57, {7*4096}")
    a(f"s_mul_i32 s55, s89, {4096 if ROT4 else 0}")
    a("s_add_u32 s55, s55, s57")
    a("s_lshl_b32 s58, s56, 8")
    a(f"s_mul_i32 s59, s56, {112*1024}")
    a(f"s_lshl_b32 s60, s{SI}, 12")
    a("s_add_u32 s59, s59, s60")
    a(f"s_lshl_b32 s60, s{SI}, 8")
    a(f"s_add_u32 s61, s60, {F*4}")
    srd(a,36,PWS,PWS+1,SZ_H,WS_H)
    srd(a,40,PWS,PWS+1,SZ_QA,WS_QA)
    srd(a,44,PWS,PWS+1,SZ_ST2,WS_ST2)
    srd(a,48,PWS,PWS+1,SZ_CS,WS_CS)
    a(f"s_lshl_b32 s72, s{SI}, 2")
    a("s_add_u32 s72, s72, s74")
    a(f"s_add_u32 s72, s72, {F4}")
    a(f"s_add_u32 s62, s74, {F3}")
    a(f"v_mul_u32_u24 v16, {FN-F3}, v4")
    a(f"v_add_u32 v16, v16, v{VL4}")
    a(f"s_cmp_eq_u32 s{SX}, 7")
    a("s_cselect_b32 s63, 0, -1")
    poll(a,16,"s62",0x0fffffff,"s63","w3")
    BFR=64; ACC=176; AF=32; STR=240
    def hb(c,s_):
        def f():
            if s_==0 and c>0:
                a("s_add_u32 s55, s55, 4096")
                a("s_cmp_eq_u32 s55, s54")
                a("s_cselect_b32 s55, s57, s55")
            a(f"buffer_load_dwordx4 {v(BFR+16*c+4*s_,4)}, v{VL16}, s[36:39], s55 offen offset:{1024*s_}"); vm.issue(("h",c,s_))
        return f
    hq=[hb(c,s_) for c in range(7) for s_ in range(4)]
    NPRE=E('P4_NPRE',6)
    for f in hq[:NPRE]: f()
    steps=[(c,s_,t) for c in range(5) for s_ in range(4) for t in range(4)]
    steps+=[(c,s_,t) for t in range(4) for c in (5,6) for s_ in range(4)]
    NS=len(steps); PF=6
    def rd(i):
        c,s_,t=steps[i]
        b=AF+4*(i%8); o=CH(c)+s_*2048
        ar=12+t
        if o>=KVB: o-=KVB; ar=(25,26,27,29)[t]
        a(f"ds_read_b64_tr_b16 {v(b,2)}, v{ar} offset:{o}"); lg.issue(("A",i))
        a(f"ds_read_b64_tr_b16 {v(b+2,2)}, v{ar} offset:{o+512}"); lg.issue(("A",i))
    fill={i:[] for i in range(NS)}
    HSP=float(os.environ.get('P4_HSP','3'))
    for k,f in enumerate(hq[NPRE:]): fill[int(1+HSP*k)].append(f)
    for sl in range(4):
        def f(sl=sl):
            a(f"s_add_u32 s62, s58, {sl*2*S*8}")
            a(f"buffer_load_dwordx2 {v(STR+2*sl,2)}, v17, s[44:47], s62 offen"); vm.issue("st")
        fill[2+3*sl].append(f)
    for k in range(6): fill[3+6*k].append(lambda k=k: gu_dma(a,4+k//2,k%2,vm))
    def atouch():
        a("v_and_b32 v30, 31, v1")
        a("v_lshlrev_b32 v30, 7, v30")
        a(f"s_cmp_ge_u32 s{SI}, 21")
        a("s_cselect_b32 s62, s59, 0x40000000")
        a("buffer_load_dword v31, v30, s[40:43], s62 offen sc1"); vm.issue("t")
    if TOUCH: fill[E('P4_AT',36)].append(atouch)
    def stats_math():
        vm.wait("st")
        for sl in range(1,4):
            a(f"v_add_f32 v{STR}, v{STR}, v{STR+2*sl}")
            a(f"v_add_f32 v{STR+1}, v{STR+1}, v{STR+2*sl+1}")
        a(f"v_mov_b32 v18, v{STR}")
        a(f"v_mov_b32 v19, v{STR+1}")
        a("s_nop 1")
        a(f"v_permlane32_swap_b32 v18, v{STR}")
        a(f"v_permlane32_swap_b32 v19, v{STR+1}")
        a(f"v_add_f32 v18, v18, v{STR}")
        a(f"v_add_f32 v19, v19, v{STR+1}")
        a(f"v_mul_f32 v18, {f32bits(1.0/D)}, v18")
        a(f"v_mul_f32 v19, {f32bits(1.0/D)}, v19")
        a("v_fma_f32 v19, -v18, v18, v19")
        a("v_max_f32 v19, 0, v19")
        a(f"v_add_f32 v24, {f32bits(1e-5)}, v19")
        a("v_rsq_f32 v20, v24")
        a("v_sub_f32 v22, 0, v18")
        a(f"v_mul_f32 v20, {f32bits(-LOG2E)}, v20")
    fill[40].append(stats_math)
    def rdcs(t):
        CS=64+16*t
        for q,o in enumerate((64*t,64*t+16,256+64*t,256+64*t+16)):
            a(f"ds_read_b128 {v(CS+4*q,4)}, v28 offset:{MISC+o}"); lg.issue(("cs",t))
    for t in range(4): fill[70+2*t].append(lambda t=t: rdcs(t))
    for n in range(NEARLY): fill[42+6*n].append(lambda n=n: wd_dma(a,n,vm))
    def epi_ops(t):
        CS=64+16*t; T0=CS; OB=CS+8
        A0=ACC+16*t
        ops=[]
        ops.append(lambda: a("s_nop 3"))
        for r in range(8): ops.append(lambda r=r: a(f"v_fmac_f32 v{A0+r}, v22, v{CS+r}"))
        for r in range(8): ops.append(lambda r=r: a(f"v_mul_f32 v{T0+r}, v20, v{A0+r}"))
        for r in range(8):
            ops.append(lambda r=r: a(f"v_exp_f32 v{T0+r}, v{T0+r}"))
            ops.append(lambda r=r: a(f"v_fmac_f32 v{A0+8+r}, v22, v{CS+8+r}"))
        for r in range(8): ops.append(lambda r=r: a(f"v_fma_f32 v{T0+r}, v{T0+r}, v24, v24"))
        for r in range(8):
            ops.append(lambda r=r: a(f"v_rcp_f32 v{T0+r}, v{T0+r}"))
            ops.append(lambda r=r: a(f"v_mul_f32 v{A0+r}, v{A0+r}, v{A0+8+r}"))
        for r in range(8): ops.append(lambda r=r: a(f"v_mul_f32 v{A0+r}, v{A0+r}, v{T0+r}"))
        for p in range(4): ops.append(lambda p=p: a(f"v_cvt_pk_bf16_f32 v{OB+p}, v{A0+2*p}, v{A0+2*p+1}"))
        def stv():
            hstore(a,[f"buffer_store_dwordx4 {v(OB,4)}, v{VL16}, s[40:43], s59 offen offset:{1024*t}"]); vm.issue("out")
        ops.append(stv)
        return ops
    tail_ops=[]
    for t in range(4):
        ops=epi_ops(t)
        base=80+8*t
        if t<3:
            nb=base+8
            per=-(-len(ops)//7)
            for k,f in enumerate(ops): fill[nb+1+k//per].append(f)
        else: tail_ops=ops
    fill[80].insert(0,lambda: a("s_barrier"))
    for n in range(NEARLY,15): fill[81+(n-NEARLY)].append(lambda n=n: wd_dma(a,n,vm))
    for i in range(PF): rd(i)
    landed=2
    for i in range(NS):
        c,s_,t=steps[i]
        vm.wait(("h",c,s_))
        lg.wait(("A",i))
        cin="0" if (c==0 and s_==0) else v(ACC+16*t,16)
        a(f"v_mfma_f32_32x32x16_bf16 {v(ACC+16*t,16)}, {v(AF+4*(i%8),4)}, {v(BFR+16*c+4*s_,4)}, {cin}")
        for f in fill[i]: f()
        if i+PF<NS:
            nc=steps[i+PF][0]
            if nc>landed:
                tgt = nc if nc<5 else 6
                vm.wait(("W",tgt)); a("s_barrier"); landed=tgt
            rd(i+PF)
        if STAMP and i in (0,15,31,47,63,79,95,111): lg.waitall(); st(a,f"p4_i{i}")
    a("s_nop 7")
    a("s_nop 1")
    for f in tail_ops: f()
    signal(a,72,"s4")

def gen_kb(name):
    KN[0]="kb"
    a=Asm(); prologue(a,name)
    kb_phase2(a)
    kb_phase35(a,3)
    kb_phase4(a)
    kb_phase35(a,5)
    dump(a)
    a.label(P('end'))
    a("s_endpgm")
    a.label(P('spare2'))
    if SP_TOUCH:
        a("v_lshlrev_b32 v9, 7, v1")
        a(f"s_sub_u32 s36, s{SI}, 28")
        a("s_lshl_b32 s36, s36, 3")
        a(f"s_add_u32 s36, s36, s{SW}")
        a("s_bitcmp1_b32 s36, 0")
        a(f"s_cselect_b32 s{SRD_G}, s{SRD_U}, s{SRD_G}")
        a(f"s_cselect_b32 s{SRD_G+1}, s{SRD_U+1}, s{SRD_G+1}")
        a("s_lshr_b32 s37, s36, 1")
        a("s_lshl_b32 s37, s37, 13")
        q0=256*3584//8192
        for i in range(6):
            a(f"s_add_u32 s38, s37, {(q0+16*i)*8192}")
            a(f"buffer_load_dword v{30+i}, v9, s[{SRD_G}:{SRD_G+3}], s38 offen")
        srd(a,SRD_WD,PWD,PWD+1,F*D*2)
        a("s_lshl_b32 s37, s36, 13")
        for i in range(7):
            a(f"s_add_u32 s38, s37, {i*32*8192}")
            a(f"buffer_load_dword v{40+i}, v9, s[{SRD_WD}:{SRD_WD+3}], s38 offen")
    dump(a)
    a("s_endpgm")
    return a.text(), kdesc(name,256)

def build(path):
    hdr=open("sequential_preLN__sliding_block__swiglu_ffn__prompt.s.ref").read().split("; Override launch")[0]
    ta,da=gen_ka("ka_kernel"); tb,db=gen_kb("kb_kernel")
    L=[hdr.rstrip(), f"; @launch kernel=ka_kernel grid=({NWG},1,1) block=({THREADS},1,1) lds=155648",
       f"; @launch kernel=kb_kernel grid=({NWG},1,1) block=({THREADS},1,1) lds={LDS}",
       '.amdgcn_target "amdgcn-amd-amdhsa--gfx950"\n.text', ta, tb, '.section .rodata,"a"', da, db]
    open(path,"w").write("\n".join(L)+"\n")
    if STAMP: open(path+".names","w").write(" ".join(STN))
if __name__=="__main__":
    build(sys.argv[1])
```

```python
from common import *
import sys
NWG=256; THREADS=512; LDS=163840
WS_FLAG=0x1300000; SZ_FLAG=8192
FID=0; F2=1024; F3=2048; F4=3072
WS_ST2=0x1210000; SZ_ST2=7*S*8
PX,PWQKV,PWO,PBX,PWG,PWU,PWD,POUT,PDBG,PWS=4,6,8,10,12,14,16,18,20,22
SW,SX,SI=24,25,26
SMODE=27; SXC=3
SRD_FLAG=28
UB=57344; KVB=114688
SPIN_MAX=200000
NEG=f32bits(-1e30)
E=lambda k,d: int(os.environ.get(k,str(d)))
FORCE_SLOW=E('FORCE_SLOW',0); P1_ROT=E('P1_ROT',3); CS_DEPTH=E('CS_DEPTH',4); SLEEP2=E('SLEEP2',1); NOW=E('NOW',0)
KA_TOUCH_AT=E('KA_TOUCH_AT',4); TOUCH=E('TOUCH',1); P2_CH=E('P2_CH',2); SP_TOUCH=E('SP_TOUCH',1); ROT4=E('ROT4',1); ROTB=E('ROTB',1)
TBS=114688; SZ_QA=64*TBS; WS_QA=WS_ACT
FN=4096
KN=["ka"]
def P(name): return f"L_{KN[0]}_{name}"
WS_DBG=0x1400000
STN=[]
def st(a,name,rt=False):
    if not STAMP: return
    name=KN[0]+"."+name
    if name not in STN: STN.append(name)
    i=[n for n in STN if n.startswith(KN[0])].index(name)
    a(f"s_mem{'real' if rt else ''}time s[64:65]")
    a("s_waitcnt lgkmcnt(0)")
    a(f"v_writelane_b32 v255, s64, {i}")
def dump(a):
    if not STAMP: return
    a("s_waitcnt vmcnt(0)")
    st(a,"end"); st(a,"rt1",True)
    srd(a,48,PWS,PWS+1,2*256*8*256,WS_DBG)
    a("v_lshlrev_b32 v2, 2, v0")
    a("s_lshl_b32 s36, s2, 11")
    if KN[0]=="kb": a(f"s_add_u32 s36, s36, {256*2048}")
    a("buffer_store_dword v255, v2, s[48:51], s36 offen")
_uid=[0]
def hstore(a, instrs):
    _uid[0]+=1; u=_uid[0]
    a(f"s_cmp_eq_u32 s{SMODE}, 0")
    a(f"s_cbranch_scc1 L_hs{u}a")
    for i in instrs: a(i)
    a(f"s_branch L_hs{u}b")
    a.label(f"L_hs{u}a")
    for i in instrs: a(i+" sc1")
    a.label(f"L_hs{u}b")
def signal(a, off_sgpr, tag):
    st(a,tag+"_pre")
    a("s_waitcnt vmcnt(0)")
    a("s_barrier")
    st(a,tag+"_bar")
    a(f"s_cmp_lg_u32 s{SW}, 1")
    a(f"s_cbranch_scc1 {P(tag+'_nosig')}")
    a("v_mov_b32 v2, 1")
    a("v_mov_b32 v3, 0")
    a("s_mov_b64 exec, 1")
    hstore(a,[f"buffer_store_dword v2, v3, s[{SRD_FLAG}:{SRD_FLAG+3}], s{off_sgpr} offen"])
    a("s_mov_b64 exec, -1")
    a.label(P(tag+'_nosig'))
def spin(a, voff, soff, mask_lo, mask_hi, tag, vd=2):
    a(f"s_mov_b32 exec_lo, {mask_lo}")
    a(f"s_mov_b32 exec_hi, {mask_hi}")
    a("s_mov_b32 s101, 0")
    a.label(P(tag+'_pl'))
    a(f"buffer_load_dword v{vd}, v{voff}, s[{SRD_FLAG}:{SRD_FLAG+3}], {soff} offen sc1")
    a("s_add_u32 s101, s101, 1")
    a("s_waitcnt vmcnt(0)")
    a(f"v_cmp_eq_u32 vcc, 0, v{vd}")
    a(f"s_cmp_gt_u32 s101, {SPIN_MAX}")
    a(f"s_cbranch_scc1 {P(tag+'_pd')}")
    a("s_nop 3")
    a(f"s_cbranch_vccz {P(tag+'_pd')}")
    a(f"s_sleep {SLEEP2}")
    a(f"s_branch {P(tag+'_pl')}")
    a.label(P(tag+'_pd'))
    a("s_mov_b64 exec, -1")
def poll(a, voff, soff, mask_lo, mask_hi, tag):
    st(a,tag+"_pre")
    a(f"s_cmp_lg_u32 s{SW}, 0")
    a(f"s_cbranch_scc1 {P(tag+'_pw')}")
    spin(a,voff,soff,mask_lo,mask_hi,tag)
    a.label(P(tag+'_pw'))
    a("s_barrier")
    st(a,tag)
def rot_idx(a, sd, n, srot, mod):
    a(f"s_add_u32 s{sd}, s{srot}, {n}")
    a(f"s_sub_u32 s100, s{sd}, {mod}")
    a(f"s_cmp_ge_u32 s{sd}, {mod}")
    a(f"s_cselect_b32 s{sd}, s100, s{sd}")
def prologue(a,name):
    kstart(a,name)
    a(f"s_cmp_ge_u32 s2, {NWG}")
    a(f"s_cbranch_scc1 {P('end')}")
    if STAMP: a("v_mov_b32 v255, 0")
    a("s_memrealtime s[98:99]" if KN[0]=="ka" else "s_memrealtime s[34:35]")
    a("s_load_dwordx16 s[4:19], s[0:1], 0")
    a("s_load_dwordx4 s[20:23], s[0:1], 64")
    a("v_and_b32 v1, 63, v0")
    a("v_lshrrev_b32 v2, 6, v0")
    a(f"s_and_b32 s{SX}, s2, 7")
    a(f"v_readfirstlane_b32 s{SW}, v2")
    a(f"s_lshr_b32 s{SI}, s2, 3")
    sdiv(a,92,89,SI,7,93)
    a(f"s_lshl_b32 s88, s{SX}, 2")
    a("s_add_u32 s88, s88, s92")

def gen_ka(name):
    KN[0]="ka"
    a=Asm(); prologue(a,name)
    a(f"s_cmp_ge_u32 s{SI}, 28")
    a(f"s_cbranch_scc1 {P('spare')}")
    XB=0; WB=57344; WSLOT=24576
    RB,CB=88,89
    if P1_ROT==0: a("s_mov_b32 s76, 0")
    else:
        a("s_lshr_b32 s76, s92, 1")
        a(f"s_mul_i32 s76, s76, {P1_ROT}")
    for u in range(3):
        a(f"v_add_u32 v9, {64*u}, v1")
        a("v_mul_u32_u24 v10, 2731, v9")
        a("v_lshrrev_b32 v10, 16, v10")
        a("v_mul_u32_u24 v11, 24, v10")
        a("v_sub_u32 v11, v9, v11")
        a("v_lshrrev_b32 v12, 2, v11")
        a("v_bfe_u32 v13, v10, 1, 1")
        a("v_xor_b32 v12, v12, v13")
        a("v_and_b32 v11, 3, v11")
        a("v_lshlrev_b32 v11, 4, v11")
        a("v_lshl_add_u32 v11, v12, 6, v11")
        a("v_mul_u32_u24 v10, 2688, v10")
        a(f"v_add_u32 v{16+u}, v10, v11")
    a(f"s_mul_i32 s40, s{CB}, 384")
    a(f"s_and_b32 s43, s{SW}, 3")
    a(f"s_mul_i32 s44, s43, {16*2688}")
    a("s_add_u32 s44, s44, s40")
    a(f"s_mul_i32 s45, s43, 6144")
    a(f"s_add_u32 s45, s45, {WB}")
    for c in range(7): rot_idx(a,66+c,c,76,7)
    def w_ops(c,vm):
        slot=c%4
        a(f"s_mul_i32 s47, s{66+c}, {64*2688}")
        a("s_add_u32 s47, s47, s44")
        a(f"s_add_u32 s46, s47, {8*2688}")
        for u in range(6):
            a(f"s_add_u32 m0, s45, {slot*WSLOT+u*1024}")
            a("s_nop 0")
            a(f"buffer_load_dwordx4 v{16+u%3}, s[52:55], s{47 if u<3 else 46} offen lds"); vm.issue(("W",c))
    a(f"s_cmp_ge_u32 s{SW}, 4")
    a(f"s_cbranch_scc1 {P('C')}")
    a("v_lshrrev_b32 v5, 3, v1")
    a(f"s_lshl_b32 s38, s{SW}, 4")
    a("v_add_u32 v5, s38, v5")
    a("v_mul_u32_u24 v6, 896, v5")
    a("v_and_b32 v7, 7, v1")
    a("v_lshl_add_u32 v6, v7, 4, v6")
    a(f"v_add_u32 v15, {8*896}, v6")
    a(f"s_mul_i32 s38, s{RB}, {64*896}")
    a("v_bfe_u32 v8, v5, 1, 3")
    a("v_xor_b32 v8, v8, v7")
    a("v_lshlrev_b32 v8, 4, v8")
    a("v_lshl_add_u32 v8, v5, 7, v8")
    a("v_xor_b32 v14, 64, v8")
    a("v_add_u32 v14, 1024, v14")
    for i in range(7):
        a(f"s_lshl_b32 s{78+i}, s{66+i}, 7")
        a(f"s_add_u32 s{78+i}, s{78+i}, s38")
    a("v_mov_b32 v19, 0x3f803f80")
    a("s_mov_b32 s39, 0xffff0000")
    for r in range(20,28): a(f"v_mov_b32 v{r}, 0")
    a("s_waitcnt lgkmcnt(0)")
    st(a,"kernarg")
    srd(a,48,PX,PX+1,S*D*2)
    vm=Cnt(a,"vmcnt")
    XR=32; FR=96
    for i in range(7):
        for u in range(2):
            a(f"buffer_load_dwordx4 {v(XR+28*u+4*i,4)}, v{6 if u==0 else 15}, s[48:51], s{78+i} offen"); vm.issue(("x",u,i))
    srd(a,52,PWQKV,PWQKV+1,D*NQKV*2)
    for i in range(7):
        for u in range(2):
            vm.wait(("x",u,i))
            for d_ in range(4):
                x=XR+28*u+4*i+d_
                a(f"v_dot2c_f32_bf16 v{20+4*u+(d_&1)}, v{x}, v19")
                a(f"v_dot2c_f32_bf16 v{22+4*u+(d_&1)}, v{x}, v{x}")
    st(a,"x")
    a("s_nop 2")
    for u in range(2):
        a(f"v_add_f32 v{20+4*u}, v{20+4*u}, v{21+4*u}")
        a(f"v_add_f32 v{22+4*u}, v{22+4*u}, v{23+4*u}")
    for dpp in ("quad_perm:[1,0,3,2]","quad_perm:[2,3,0,1]","row_half_mirror"):
        a("s_nop 0")
        for r in (20,22,24,26):
            a(f"v_add_f32_dpp v{r}, v{r}, v{r} {dpp} row_mask:0xf bank_mask:0xf")
    for u in range(2):
        m=20+4*u; q=22+4*u
        a(f"v_mul_f32 v{m}, {f32bits(1.0/D)}, v{m}")
        a(f"v_mul_f32 v{q}, {f32bits(1.0/D)}, v{q}")
    for u in range(2):
        m=20+4*u; q=22+4*u
        a(f"v_fma_f32 v{q}, -v{m}, v{m}, v{q}")
        a(f"v_max_f32 v{q}, 0, v{q}")
        a(f"v_add_f32 v{q}, {f32bits(1e-5)}, v{q}")
        a(f"v_rsq_f32 v{q}, v{q}")
    a("s_nop 0")
    for u in range(2):
        m=20+4*u; q=22+4*u
        a(f"v_mul_f32 v{m}, v{m}, v{q}")
        a(f"v_sub_f32 v{m}, 0, v{m}")
    def norm(i):
        for u in range(2):
            for d_ in range(4):
                x=XR+28*u+4*i+d_; f=FR+2*d_+8*u
                a(f"v_lshlrev_b32 v{f}, 16, v{x}")
                a(f"v_and_b32 v{f+1}, s39, v{x}")
        for u in range(2):
            m=20+4*u; q=22+4*u
            for d_ in range(4):
                f=FR+2*d_+8*u
                a(f"v_pk_fma_f32 {v(f,2)}, {v(f,2)}, {v(q,2)}, {v(m,2)} op_sel_hi:[1,0,0]")
        for u in range(2):
            for d_ in range(4):
                x=XR+28*u+4*i+d_; f=FR+2*d_+8*u
                a(f"v_cvt_pk_bf16_f32 v{x}, v{f}, v{f+1}")
            a(f"ds_write_b128 v{8 if u==0 else 14}, {v(XR+28*u+4*i,4)} offset:{XB+8192*i}")
    sched=eval(os.environ.get('P1_SCHED','{0:[0,1],1:[2,3],2:[4,5],3:[6],4:[],5:[],6:[]}'))
    for c in range(7):
        for i in sched[c]: norm(i)
        if sched[c]: a("s_waitcnt lgkmcnt(0)")
        vm.wait(("W",c))
        st(a,f"L{c}")
        a("s_barrier")
        if c>=2 and c+2<7: w_ops(c+2,vm)
        if c==KA_TOUCH_AT:
            srd(a,56,PWS,PWS+1,SZ_QA,WS_QA)
            a("v_lshlrev_b32 v9, 7, v1")
            a("v_mov_b32 v10, 0x40000000")
            a("v_cmp_gt_u32 vcc, 48, v1")
            a(f"s_lshl_b32 s60, s{RB}, 1")
            a("s_lshr_b32 s61, s43, 1")
            a("v_cndmask_b32 v9, v10, v9, vcc")
            a("s_add_u32 s60, s60, s61")
            a(f"s_mul_i32 s60, s60, {TBS}")
            a(f"s_mul_i32 s61, s{CB}, 12288")
            a("s_add_u32 s60, s60, s61")
            a("s_and_b32 s61, s43, 1")
            a("s_mul_i32 s61, s61, 6144")
            a("s_add_u32 s60, s60, s61")
            a("buffer_load_dword v30, v9, s[56:59], s60 offen sc1"); vm.issue("t")
    dump(a)
    a("s_endpgm")
    a.label(P('C'))
    vm=Cnt(a,"vmcnt"); lg=Cnt(a,"lgkmcnt")
    a("s_and_b32 s36, s43, 1")
    a("s_lshr_b32 s37, s43, 1")
    a("s_waitcnt lgkmcnt(0)")
    srd(a,52,PWQKV,PWQKV+1,D*NQKV*2)
    w_ops(0,vm); w_ops(1,vm)
    srd(a,56,PWS,PWS+1,SZ_QA,WS_QA)
    a("v_and_b32 v3, 31, v1")
    a("s_lshl_b32 s60, s36, 5")
    a("v_add_u32 v3, s60, v3")
    a("v_lshrrev_b32 v4, 5, v1")
    a("v_bfe_u32 v5, v3, 1, 3")
    a("v_xor_b32 v5, v5, v4")
    a("v_lshlrev_b32 v5, 4, v5")
    a("v_lshl_add_u32 v10, v3, 7, v5")
    for s_ in range(1,4): a(f"v_xor_b32 v{10+s_}, {32*s_}, v10")
    a("v_bfe_u32 v5, v1, 2, 2")
    a("v_lshl_add_u32 v6, v4, 3, v5")
    a("v_mul_u32_u24 v6, 384, v6")
    a("v_bfe_u32 v7, v1, 4, 1")
    a("v_lshl_add_u32 v6, v7, 5, v6")
    a("v_and_b32 v7, 1, v1")
    a("v_lshl_add_u32 v6, v7, 4, v6")
    a("v_bfe_u32 v7, v1, 1, 1")
    a("v_lshl_add_u32 v6, v7, 3, v6")
    a(f"v_add_u32 v6, {WB}, v6")
    a("v_lshrrev_b32 v5, 1, v5")
    a("s_mul_i32 s60, s37, 3")
    for jj in range(3):
        a(f"s_add_u32 s61, s60, {jj}")
        a("v_xor_b32 v7, s61, v5")
        a(f"v_lshl_add_u32 v{20+jj}, v7, 6, v6")
        a(f"v_add_u32 v{24+jj}, {2*WSLOT}, v{20+jj}")
    a(f"s_mul_i32 s60, s{CB}, 192")
    a("s_mul_i32 s61, s37, 96")
    a("s_add_u32 s60, s60, s61")
    a(f"s_lshl_b32 s62, s{RB}, 1")
    a("s_add_u32 s62, s62, s36")
    a(f"s_mul_i32 s62, s62, {TBS}")
    a("s_lshl_b32 s61, s60, 6")
    a("s_add_u32 s62, s62, s61")
    a("s_add_u32 s63, s62, 4096")
    for jj in range(3):
        a(f"s_add_u32 s61, s60, {32*jj}")
        a("s_cmp_lt_u32 s61, 448")
        a(f"s_cselect_b32 s{78+2*jj}, {f32bits(DH**-0.5*LOG2E)}, {f32bits(1.0)}")
        a(f"s_mov_b32 s{79+2*jj}, s{78+2*jj}")
    a("v_lshlrev_b32 v5, 4, v1")
    ACC=32; BFq=96; AFq=112
    NK=28
    def rdB(k):
        c=k//4; s_=k%4; b=k%3
        a(f"ds_read_b128 {v(BFq+4*b,4)}, v{10+s_} offset:{XB+c*8192}"); lg.issue(("f",k,0))
    def rdA(k,jj):
        c=k//4; s_=k%4; slot=c%4; b=k%3
        ab=(20 if slot<2 else 24)+jj
        o=(slot&1)*WSLOT+s_*16*384
        a(f"ds_read_b64_tr_b16 {v(AFq+12*b+4*jj,2)}, v{ab} offset:{o}"); lg.issue(("f",k,jj))
        a(f"ds_read_b64_tr_b16 {v(AFq+12*b+4*jj+2,2)}, v{ab} offset:{o+4*384}"); lg.issue(("f",k,jj))
    vm.wait(("W",0))
    st(a,"C0")
    w_ops(2,vm)
    a("s_barrier")
    st(a,"B0")
    for k in (0,1):
        rdB(k)
        for jj in range(3): rdA(k,jj)
    for k in range(NK):
        b=k%3
        for jj in range(3):
            lg.wait(("f",k,jj))
            cin="0" if k==0 else v(ACC+16*jj,16)
            a(f"v_mfma_f32_32x32x16_bf16 {v(ACC+16*jj,16)}, {v(AFq+12*b+4*jj,4)}, {v(BFq+4*b,4)}, {cin}")
            if k+2<NK:
                if jj==0:
                    if (k+2)%4==0:
                        vm.wait(("W",(k+2)//4))
                        a("s_barrier")
                        if k+2==4: w_ops(3,vm)
                    rdB(k+2)
                rdA(k+2,jj)
    st(a,"mfma")
    a("s_nop 7")
    a("s_nop 1")
    OB=160
    for jj in range(3):
        for r in range(8): a(f"v_pk_mul_f32 {v(ACC+16*jj+2*r,2)}, {v(ACC+16*jj+2*r,2)}, s[{78+2*jj}:{79+2*jj}]")
        for r in range(8): a(f"v_cvt_pk_bf16_f32 v{OB+8*jj+r}, v{ACC+16*jj+2*r}, v{ACC+16*jj+2*r+1}")
        sb=62 if jj<2 else 63; o=2048*(jj%2)
        a(f"buffer_store_dwordx4 {v(OB+8*jj,4)}, v5, s[56:59], s{sb} offen offset:{o}")
        a(f"buffer_store_dwordx4 {v(OB+8*jj+4,4)}, v5, s[56:59], s{sb} offen offset:{o+1024}")
    a("s_waitcnt vmcnt(0)")
    a("s_memrealtime s[96:97]")
    a("s_waitcnt lgkmcnt(0)")
    a("s_cmp_lg_u32 s2, 0")
    a(f"s_cbranch_scc1 {P('end')}")
    srd(a,48,PWS,PWS+1,256,WS_DBG)
    a("v_mov_b32 v2, s98")
    a("v_mov_b32 v3, s96")
    a("v_mov_b32 v4, 0")
    a("buffer_store_dwordx2 v[2:3], v4, s[48:51], 0 offen")
    a("s_endpgm")
    a.label(P('spare'))
    a(f"s_sub_u32 s36, s{SI}, 28")
    a("s_lshl_b32 s36, s36, 3")
    a(f"s_add_u32 s36, s36, s{SX}")
    sdiv(a,37,38,36,14,39)
    a("v_lshrrev_b32 v3, 4, v1")
    a(f"s_lshl_b32 s39, s{SW}, 2")
    a("v_add_u32 v3, s39, v3")
    a("v_mul_u32_u24 v4, 3584, v3")
    a("v_and_b32 v5, 15, v1")
    a("v_lshl_add_u32 v4, v5, 4, v4")
    a("s_waitcnt lgkmcnt(0)")
    a("s_cmp_lt_u32 s36, 28")
    a(f"s_cbranch_scc1 {P('cs')}")
    a("s_cmp_lg_u32 s36, 31")
    a(f"s_cbranch_scc1 {P('end')}")
    srd(a,SRD_FLAG,PWS,PWS+1,SZ_FLAG,WS_FLAG)
    a("v_lshlrev_b32 v3, 4, v0")
    for r in range(4,8): a(f"v_mov_b32 v{r}, 0")
    a(f"buffer_store_dwordx4 v[4:7], v3, s[{SRD_FLAG}:{SRD_FLAG+3}], 0 offen")
    a("s_endpgm")
    a.label(P('cs'))
    a("s_cmp_eq_u32 s37, 0")
    a(f"s_cselect_b32 s40, s{PWG}, s{PWU}")
    a(f"s_cselect_b32 s41, s{PWG+1}, s{PWU+1}")
    srd(a,48,40,41,D*F*2)
    srd(a,52,PWS,PWS+1,SZ_CS,WS_CS)
    a("s_lshl_b32 s42, s38, 8")
    def csl(i):
        a(f"s_add_u32 s43, s42, {i*32*3584}")
        a(f"buffer_load_dwordx4 {v(32+4*i,4)}, v4, s[48:51], s43 offen")
    for i in range(CS_DEPTH): csl(i)
    for r in range(8): a(f"v_mov_b32 v{16+r}, 0")
    for i in range(14):
        a(f"s_waitcnt vmcnt({min(13-i,CS_DEPTH-1)})")
        if i+CS_DEPTH<14: csl(i+CS_DEPTH)
        for d_ in range(4):
            a(f"v_lshlrev_b32 v{24+2*d_}, 16, v{32+4*i+d_}")
            a(f"v_and_b32 v{25+2*d_}, 0xffff0000, v{32+4*i+d_}")
        for d_ in range(4):
            a(f"v_pk_add_f32 {v(16+2*d_,2)}, {v(16+2*d_,2)}, {v(24+2*d_,2)}")
    a("v_lshlrev_b32 v6, 9, v3")
    a("v_lshl_add_u32 v6, v5, 5, v6")
    a("ds_write_b128 v6, v[16:19]")
    a("ds_write_b128 v6, v[20:23] offset:16")
    a("s_waitcnt lgkmcnt(0)")
    a("s_barrier")
    a(f"s_cmp_ge_u32 s{SW}, 2")
    a(f"s_cbranch_scc1 {P('end')}")
    a("v_lshlrev_b32 v6, 2, v0")
    for i in range(32):
        a(f"ds_read_b32 v{32+i}, v6 offset:{512*i}")
        if i%8==7: a("s_waitcnt lgkmcnt(0)")
    a("v_mov_b32 v16, 0")
    a("v_mov_b32 v17, 0")
    for i in range(0,32,2):
        a(f"v_pk_add_f32 v[16:17], v[16:17], {v(32+i,2)}")
    a("v_add_f32 v16, v16, v17")
    a(f"s_mul_i32 s42, s37, {F*4}")
    a("s_lshl_b32 s43, s38, 9")
    a("s_add_u32 s42, s42, s43")
    a("buffer_store_dword v16, v6, s[52:55], s42 offen")
    dump(a)
    a.label(P('end'))
    a("s_endpgm")
    return a.text(), kdesc(name,256 if STAMP else 192)

def CH(c): return 16384*c if c<3 else (KVB+16384*(c-3) if c<6 else UB)
MISC=49152
NEARLY=5; NRES=19
def p5_group_addr(n):
    if n<5: return UB+16384+8192*n
    if n<19:
        k=n-5; return CH(k//2)+8192*(k%2)
    return p5_group_addr(n-19)
VW=254; VG=252; VU=253; VL16=251; VL4=250; VRES=240
S_GU=94; S_W1K=95; S_WD=78; S_WDROT=93; S_WOROT=77
SRD_G=80; SRD_U=84; SRD_WD=96
def gu_dma(a, c, m, vm=None):
    a(f"s_add_u32 m0, s{S_W1K}, {CH(c)+8192*m}")
    if m==1: a(f"s_add_u32 s92, s90, {64*3584}")
    else: a("s_nop 0")
    if not NOW:
        a(f"buffer_load_dwordx4 v{VG+m}, s[{SRD_G+4*m}:{SRD_G+3+4*m}], s90 offen lds")
        if vm: vm.issue(("W",c))
    if m==1:
        a("s_cmp_eq_u32 s92, s91")
        a(f"s_cselect_b32 s90, s{S_GU}, s92")
def wd_dma(a, n, vm=None):
    a(f"s_add_u32 m0, s{S_W1K}, {p5_group_addr(n)}")
    a(f"s_add_u32 s92, s79, {64*896}")
    if not NOW:
        a(f"buffer_load_dwordx4 v{VW}, s[{SRD_WD}:{SRD_WD+3}], s79 offen lds")
        if vm: vm.issue(("wd",n))
    a("s_cmp_eq_u32 s92, s75")
    a(f"s_cselect_b32 s79, s{S_WD}, s92")

def kb_phase2(a):
    KB=KVB; VB=KVB+24576
    HD,QB=36,37
    a(f"s_getreg_b32 s{SXC}, hwreg(HW_REG_XCC_ID)")
    a(f"s_lshr_b32 s{HD}, s{SI}, 1")
    a(f"s_and_b32 s38, s{SI}, 1")
    a(f"s_lshl_b32 s{QB}, s{SX}, 1")
    a(f"s_add_u32 s{QB}, s{QB}, s38")
    a(f"s_mul_i32 s40, s{HD}, 7")
    a("s_lshr_b32 s40, s40, 1")
    a(f"s_and_b32 s41, s{HD}, 1")
    a("v_and_b32 v3, 15, v1")
    a("v_lshrrev_b32 v4, 4, v1")
    a("v_lshlrev_b32 v5, 9, v4")
    a("v_lshl_add_u32 v6, v3, 4, v5")
    a("v_and_b32 v7, 1, v4")
    a("v_lshlrev_b32 v7, 3, v7")
    a("v_xor_b32 v7, v7, v3")
    a("v_lshl_add_u32 v7, v7, 4, v5")
    a(f"s_lshl_b32 s42, s{QB}, 3")
    a(f"s_add_u32 s42, s42, s{SW}")
    a("s_lshr_b32 s43, s42, 1")
    a(f"s_mul_i32 s43, s43, {TBS}")
    a("s_and_b32 s44, s42, 1")
    a("s_lshl_b32 s44, s44, 8")
    a("s_add_u32 s43, s43, s44")
    a("s_lshl_b32 s45, s40, 9")
    a("s_add_u32 s46, s43, s45")
    for u in range(3):
        a(f"s_mul_i32 s56, s{SW}, 3")
        a(f"s_add_u32 s56, s56, {u}")
        a(f"s_lshl_b32 s57, s{QB}, 3")
        a("s_add_u32 s57, s57, s56")
        a("s_sub_u32 s57, s57, 16")
        a("s_lshr_b32 s58, s57, 1")
        a(f"s_mul_i32 s58, s58, {TBS}")
        a("s_and_b32 s59, s57, 1")
        a("s_lshl_b32 s59, s59, 8")
        a("s_add_u32 s58, s58, s59")
        a("s_add_u32 s58, s58, s45")
        a("s_cmp_lt_i32 s57, 0")
        a("s_cselect_b32 s58, 0x40000000, s58")
        a(f"s_add_u32 s{66+2*u}, s58, {56*512}")
        a(f"s_add_u32 s{67+2*u}, s58, {112*512}")
    a(f"s_mul_i32 s60, s{SW}, 3072")
    a(f"s_add_u32 s60, s60, {KB}")
    a(f"s_and_b32 s{SXC}, s{SXC}, 15")
    a(f"s_add_u32 s{SXC}, s{SXC}, 1")
    QF=12
    a("s_waitcnt lgkmcnt(0)")
    st(a,"kernarg")
    srd(a,48,PWS,PWS+1,SZ_QA,WS_QA)
    a(f"buffer_load_dwordx4 {v(QF,4)}, v6, s[48:51], s46 offen sc1")
    for u in range(3):
        a(f"s_add_u32 m0, s60, {1024*u}")
        a("s_nop 0")
        a(f"buffer_load_dwordx4 v6, s[48:51], s{66+2*u} offen sc1 lds")
    for u in range(3):
        a(f"s_add_u32 m0, s60, {VB-KB+1024*u}")
        a("s_nop 0")
        a(f"buffer_load_dwordx4 v7, s[48:51], s{67+2*u} offen sc1 lds")
    srd(a,SRD_FLAG,PWS,PWS+1,SZ_FLAG,WS_FLAG)
    a(f"s_lshl_b32 s74, s{SX}, 7")
    a(f"s_lshl_b32 s56, s{SI}, 2")
    a("s_add_u32 s56, s56, s74")
    a(f"s_cmp_eq_u32 s{SW}, 7")
    a("s_cselect_b32 s56, s56, 0x40000000")
    a(f"v_mov_b32 v2, s{SXC}")
    a("v_mov_b32 v8, 0")
    a("s_mov_b64 exec, 1")
    a(f"buffer_store_dword v2, v8, s[{SRD_FLAG}:{SRD_FLAG+3}], s56 offen sc1")
    a("s_mov_b64 exec, -1")
    M0R=16; M16=20
    a("v_lshlrev_b32 v8, 2, v4")
    a(f"v_mov_b32 v9, {NEG}")
    for r in range(4):
        a(f"v_add_u32 v10, {r}, v8")
        a("v_cmp_lt_u32 vcc, v3, v10")
        a("s_nop 1")
        a(f"v_cndmask_b32_e64 v{M0R+r}, v9, 0, vcc")
        a(f"v_cndmask_b32_e64 v{M16+r}, 0, v9, vcc")
    a(f"v_lshlrev_b32 v{VL16}, 4, v1")
    a(f"v_lshlrev_b32 v{VL4}, 2, v1")
    a(f"s_lshl_b32 s{S_W1K}, s{SW}, 10")
    a(f"s_add_u32 s47, s{S_W1K}, {KB}")
    a(f"v_add_u32 v10, s47, v{VL16}")
    a("v_bfe_u32 v24, v1, 2, 2")
    a("v_add_u32 v24, v24, v8")
    a("v_bfe_u32 v25, v1, 1, 1")
    a("v_lshlrev_b32 v26, 3, v25")
    a("v_xor_b32 v24, v24, v26")
    a("v_lshlrev_b32 v24, 4, v24")
    a("v_lshl_add_u32 v24, v25, 8, v24")
    a("v_and_b32 v25, 1, v1")
    a("v_lshl_add_u32 v24, v25, 3, v24")
    a(f"v_add_u32 v24, {VB-KB}, v24")
    a("v_add_u32 v11, s47, v24")
    a("v_lshrrev_b32 v28, 1, v4")
    a("v_lshlrev_b32 v28, 9, v28")
    a("v_lshl_add_u32 v28, v3, 4, v28")
    a("v_and_b32 v29, 1, v4")
    a("v_lshl_add_u32 v28, v29, 3, v28")
    a("v_add_u32 v29, 1024, v28")
    a("v_mov_b32 v30, 0x40000000")
    a("s_cmp_eq_u32 s41, 0")
    a("s_cselect_b32 s62, 64, 0")
    a("s_cselect_b32 s63, 3, 64")
    a("v_cmp_eq_u32 vcc, s62, v4")
    a("s_nop 1")
    a("v_cndmask_b32 v28, v28, v30, vcc")
    a("v_cmp_eq_u32 vcc, s63, v4")
    a("s_nop 1")
    a("v_cndmask_b32 v29, v29, v30, vcc")
    a(f"s_lshl_b32 s61, s{QB}, 4")
    a(f"s_add_u32 s61, s61, s{HD}")
    a("s_lshl_b32 s61, s61, 2")
    a(f"s_add_u32 s61, s61, {F2}")
    a(f"v_lshrrev_b32 v{VW}, 3, v1")
    a(f"v_mul_u32_u24 v150, 3584, v{VW}")
    a(f"v_mul_u32_u24 v{VW}, 896, v{VW}")
    a("v_bfe_u32 v151, v1, 2, 1")
    a("v_bfe_u32 v152, v1, 4, 1")
    a("v_xor_b32 v151, v151, v152")
    a(f"v_lshl_add_u32 v{VW}, v151, 6, v{VW}")
    a("v_and_b32 v151, 3, v1")
    a(f"v_lshl_add_u32 v{VW}, v151, 4, v{VW}")
    a("v_bfe_u32 v151, v1, 1, 2")
    a("v_xor_b32 v151, v151, v152")
    a("v_and_b32 v152, 1, v1")
    a("v_lshl_add_u32 v150, v152, 4, v150")
    a(f"v_lshl_add_u32 v{VG}, v151, 5, v150")
    a("v_xor_b32 v151, 2, v151")
    a(f"v_lshl_add_u32 v{VU}, v151, 5, v150")
    srd(a,SRD_G,PWG,PWG+1,D*F*2)
    srd(a,SRD_U,PWU,PWU+1,D*F*2)
    srd(a,SRD_WD,PWO,PWO+1,D*D*2)
    a(f"s_mul_i32 s{S_GU}, s{SW}, {8*3584}")
    a(f"s_lshl_b32 s56, s{SI}, 7")
    a(f"s_add_u32 s{S_GU}, s{S_GU}, s56")
    a(f"s_mul_i32 s{S_WD}, s{SW}, {8*896}")
    a("s_lshl_b32 s56, s89, 7")
    a(f"s_add_u32 s{S_WD}, s{S_WD}, s56")
    a(f"s_lshl_b32 s56, s92, 1")
    if ROTB: rot_idx(a,S_WOROT,"s56",89,7)
    else: a(f"s_mov_b32 s{S_WOROT}, s56")
    a("s_mul_i32 s56, s92, 7")
    a("s_lshl_b32 s57, s89, 2")
    if ROTB: rot_idx(a,S_WDROT,"s56",57,28)
    else: a(f"s_mov_b32 s{S_WDROT}, s56")
    a(f"s_cmp_ge_u32 s{SI}, 28")
    a(f"s_cselect_b32 s{S_GU}, 0x40000000, s{S_GU}")
    a(f"s_cselect_b32 s{S_WD}, 0x40000000, s{S_WD}")
    a(f"s_mul_i32 s90, s89, {64*3584 if ROT4 else 0}")
    a(f"s_add_u32 s90, s90, s{S_GU}")
    a(f"s_add_u32 s91, s{S_GU}, {7*64*3584}")
    a(f"s_mul_i32 s79, s{S_WOROT}, {64*896}")
    a(f"s_add_u32 s79, s79, s{S_WD}")
    a(f"s_add_u32 s75, s{S_WD}, {7*64*896}")
    a(f"s_and_b32 s56, s{SW}, 3")
    a(f"s_lshr_b32 s57, s{SW}, 2")
    a("s_lshl_b32 s58, s88, 1")
    a("s_add_u32 s58, s58, s57")
    a(f"s_mul_i32 s58, s58, {32*896}")
    a("s_lshl_b32 s59, s89, 7")
    a("s_add_u32 s58, s58, s59")
    a("s_lshl_b32 s59, s56, 5")
    a("s_add_u32 s73, s58, s59")
    a(f"s_cmp_ge_u32 s{SI}, 28")
    a("s_cselect_b32 s73, 0x40000000, s73")
    a("v_and_b32 v150, 31, v1")
    a("v_mul_u32_u24 v150, 896, v150")
    a("v_lshrrev_b32 v151, 5, v1")
    a("v_lshl_add_u32 v249, v151, 4, v150")
    srd(a,56,PX,PX+1,S*D*2)
    a("s_waitcnt vmcnt(7)")
    a("s_cmp_eq_u32 s41, 0")
    a(f"s_cbranch_scc0 {P('p2_odd')}")
    a("v_cmp_gt_u32 vcc, 48, v1")
    a("s_nop 1")
    a(f"v_cndmask_b32 v{QF+2}, 0, v{QF+2}, vcc")
    a(f"v_cndmask_b32 v{QF+3}, 0, v{QF+3}, vcc")
    a(f"s_branch {P('p2_qd')}")
    a.label(P('p2_odd'))
    a("v_cmp_le_u32 vcc, 16, v1")
    a("s_nop 1")
    a(f"v_cndmask_b32 v{QF+0}, 0, v{QF+0}, vcc")
    a(f"v_cndmask_b32 v{QF+1}, 0, v{QF+1}, vcc")
    a.label(P('p2_qd'))
    st(a,"setup")
    a("s_waitcnt vmcnt(1)")
    a("s_barrier")
    st(a,"kv")
    def wo_dma(n):
        a(f"s_add_u32 m0, s{S_W1K}, {UB+8192*n}")
        a(f"s_add_u32 s92, s79, {64*896}")
        if not NOW: a(f"buffer_load_dwordx4 v{VW}, s[{SRD_WD}:{SRD_WD+3}], s79 offen lds")
        a("s_cmp_eq_u32 s92, s75")
        a(f"s_cselect_b32 s79, s{S_WD}, s92")
    pf=[lambda n=n: wo_dma(n) for n in range(7)]
    pf+=[lambda: a(f"buffer_load_dwordx4 {v(VRES,4)}, v249, s[56:59], s73 offen")]
    pf+=[lambda k=k: gu_dma(a,k//2,k%2) for k in range(2*P2_CH)]
    def htouch():
        srd(a,68,PWS,PWS+1,SZ_H,WS_H)
        a(f"s_lshr_b32 s66, s{SW}, 2")
        a("s_lshl_b32 s67, s88, 1")
        a("s_add_u32 s66, s66, s67")
        a(f"s_mul_i32 s67, s66, {56*512}")
        a("s_lshl_b32 s72, s89, 12")
        a("s_add_u32 s67, s67, s72")
        a(f"s_and_b32 s72, s{SW}, 3")
        a("s_lshl_b32 s72, s72, 10")
        a("s_add_u32 s67, s67, s72")
        a(f"s_cmp_ge_u32 s{SI}, 28")
        a("s_cselect_b32 s67, 0x40000000, s67")
        a(f"buffer_load_dwordx4 v[144:147], v{VL16}, s[68:71], s67 offen sc1")
        srd(a,68,PWS,PWS+1,SZ_ST2,WS_ST2)
        a(f"s_mul_i32 s67, s89, {S*8}")
        a("s_lshl_b32 s66, s66, 8")
        a("s_add_u32 s67, s67, s66")
        a(f"buffer_load_dword v148, v{VL4}, s[68:71], s67 offen sc1")
    if TOUCH: htouch()
    def csdma():
        srd(a,68,PWS,PWS+1,SZ_CS,WS_CS)
        a(f"s_mul_i32 s66, s{SW}, {F*4}")
        a(f"s_lshl_b32 s67, s{SI}, 8")
        a("s_add_u32 s66, s66, s67")
        a(f"s_min_u32 s67, s{SW}, 2")
        a("s_lshl_b32 s67, s67, 8")
        a(f"s_add_u32 m0, s67, {MISC}")
        a("s_nop 0")
        a(f"buffer_load_dword v{VL4}, s[68:71], s66 offen lds")
    csdma()
    SR=32; KF=100; NB=6
    for t in range(NB):
        a(f"ds_read_b128 {v(KF+4*(t%NB),4)}, v10 offset:{1024*t}")
    for t in range(17):
        outstanding=min(17,t+NB)-t-1
        a(f"s_waitcnt lgkmcnt({outstanding})")
        cin = v(M0R,4) if t==0 else (v(M16,4) if t==16 else "0")
        a(f"v_mfma_f32_16x16x32_bf16 {v(SR+4*t,4)}, {v(KF+4*(t%NB),4)}, {v(QF,4)}, {cin}")
        if t+NB<17:
            a(f"ds_read_b128 {v(KF+4*(t%NB),4)}, v10 offset:{1024*(t+NB)}")
        if t%3==2 and pf: pf.pop(0)()
    VF=100
    def vread(j):
        b=VF+8*(j%3)
        for dt in range(2):
            a(f"ds_read_b64_tr_b16 {v(b+4*dt,2)}, v11 offset:{1024*(2*j)+512*dt}")
            if 2*j+1<17:
                a(f"ds_read_b64_tr_b16 {v(b+4*dt+2,2)}, v11 offset:{1024*(2*j+1)+512*dt}")
    vread(0); vread(1); vread(2)
    a("s_cmp_ge_u32 s42, 16")
    a(f"s_cbranch_scc1 {P('p2_nomask')}")
    a("s_sub_u32 s63, 16, s42")
    for t in range(16):
        a(f"s_cmp_le_u32 s63, {t}")
        a(f"s_cbranch_scc1 {P('p2_nomask')}")
        for r in range(4): a(f"v_mov_b32 v{SR+4*t+r}, v9")
    a.label(P('p2_nomask'))
    st(a,"qk")
    a(f"v_max3_f32 v24, v{SR}, v{SR+1}, v{SR+2}")
    a(f"v_max3_f32 v25, v{SR+3}, v{SR+4}, v{SR+5}")
    i=6; k=0
    while i+1<68:
        a(f"v_max3_f32 v{24+k}, v{24+k}, v{SR+i}, v{SR+i+1}")
        i+=2; k^=1
    a("v_max_f32 v24, v24, v25")
    a("v_mov_b32 v25, v24")
    a("s_nop 1")
    a("v_permlane32_swap_b32 v24, v25")
    a("v_max_f32 v24, v24, v25")
    a("v_mov_b32 v25, v24")
    a("s_nop 1")
    a("v_permlane16_swap_b32 v24, v25")
    a("v_max_f32 v24, v24, v25")
    a("v_mov_b32 v25, v24")
    a("v_mov_b32 v26, 0\nv_mov_b32 v27, 0")
    O0=124; O1=128; PP=132
    after_id=[0]
    for j in range(9):
        nt = 2 if 2*j+1<17 else 1
        pb=PP+4*(j%2)
        regs=[SR+8*j+r for r in range(4*nt)]
        for r in regs[::2]: a(f"v_pk_add_f32 {v(r,2)}, {v(r,2)}, v[24:25] neg_lo:[0,1] neg_hi:[0,1]")
        for r in regs: a(f"v_exp_f32 v{r}, v{r}")
        if pf:
            pf.pop(0)()
            if j>4: after_id[0]+=1
        else: a("s_nop 0")
        for q,r in enumerate(regs[::2]):
            a(f"v_cvt_pk_bf16_f32 v{pb+q}, v{r}, v{r+1}")
        for r in regs[::2]: a(f"v_pk_add_f32 v[26:27], v[26:27], {v(r,2)}")
        rem=0
        for jj in range(j+1,min(9,j+3)):
            rem += 4 if 2*jj+1<17 else 2
        a(f"s_waitcnt lgkmcnt({rem})")
        b=VF+8*(j%3)
        c0 = "0" if j==0 else v(O0,4)
        c1 = "0" if j==0 else v(O1,4)
        if nt==2:
            a(f"v_mfma_f32_16x16x32_bf16 {v(O0,4)}, {v(b,4)}, {v(pb,4)}, {c0}")
            a(f"v_mfma_f32_16x16x32_bf16 {v(O1,4)}, {v(b+4,4)}, {v(pb,4)}, {c1}")
        else:
            a(f"v_mfma_f32_16x16x16_bf16 {v(O0,4)}, {v(b,2)}, {v(pb,2)}, {c0}")
            a(f"v_mfma_f32_16x16x16_bf16 {v(O1,4)}, {v(b+4,2)}, {v(pb,2)}, {c1}")
        if j+3<9: vread(j+3)
        if j==4:
            a(f"buffer_load_dword v31, v{VL4}, s[{SRD_FLAG}:{SRD_FLAG+3}], s74 offen sc1")
    while pf: pf.pop(0)(); after_id[0]+=1
    a("v_add_f32 v26, v26, v27")
    a("v_mov_b32 v27, v26")
    a("s_nop 1")
    a("v_permlane32_swap_b32 v26, v27")
    a("v_add_f32 v26, v26, v27")
    a("v_mov_b32 v27, v26")
    a("s_nop 1")
    a("v_permlane16_swap_b32 v26, v27")
    a("v_add_f32 v26, v26, v27")
    a("v_rcp_f32 v26, v26")
    a("s_nop 0")
    for r in range(8): a(f"v_mul_f32 v{O0+r}, v26, v{O0+r}")
    for r in range(4): a(f"v_cvt_pk_bf16_f32 v{PP+r}, v{O0+2*r}, v{O0+2*r+1}")
    a(f"s_waitcnt vmcnt({0 if NOW else after_id[0]})")
    a("v_cmp_eq_u32 vcc, 0, v31")
    a("s_nop 3")
    a("s_cmp_eq_u32 vcc_lo, 0")
    a(f"s_cbranch_scc1 {P('idok')}")
    spin(a,VL4,"s74",-1,0,"wid",vd=31)
    a.label(P('idok'))
    a(f"v_cmp_ne_u32 vcc, s{SXC}, v31")
    a("s_nop 3")
    a("s_cmp_eq_u32 vcc_lo, 0")
    a(f"s_cselect_b32 s{SMODE}, {0 if FORCE_SLOW else 1}, 0")
    hstore(a,[f"buffer_store_dwordx2 {v(PP,2)}, v28, s[48:51], s46 offen",
              f"buffer_store_dwordx2 {v(PP+2,2)}, v29, s[48:51], s46 offen"])
    signal(a,61,"s2")
    a(f"s_cmp_lg_u32 s{SW}, 2")
    a(f"s_cbranch_scc1 {P('nofn')}")
    a(f"s_lshl_b32 s61, s{SI}, 2")
    a("s_add_u32 s61, s61, s74")
    a(f"s_add_u32 s61, s61, {FN}")
    a("v_mov_b32 v2, 1")
    a("v_mov_b32 v3, 0")
    a("s_mov_b64 exec, 1")
    a(f"buffer_store_dword v2, v3, s[{SRD_FLAG}:{SRD_FLAG+3}], s61 offen sc1")
    a("s_mov_b64 exec, -1")
    a.label(P('nofn'))
    a(f"s_cmp_ge_u32 s{SI}, 28")
    a(f"s_cbranch_scc1 {P('spare2')}")

def kb_phase35(a, mode):
    k3=(mode==3); tag=f"p{mode}"
    KD=D if k3 else F
    NST=KD//64
    vm=Cnt(a,"vmcnt"); lg=Cnt(a,"lgkmcnt")
    KS,TG=36,37
    a(f"s_and_b32 s{KS}, s{SW}, 3")
    a(f"s_lshr_b32 s{TG}, s{SW}, 2")
    a(f"s_lshr_b32 s38, s{KS}, 1")
    a(f"s_and_b32 s39, s{KS}, 1")
    a("v_lshrrev_b32 v4, 5, v1")
    a("v_bfe_u32 v5, v1, 2, 2")
    a("v_lshl_add_u32 v8, v4, 3, v5")
    a("v_lshlrev_b32 v8, 7, v8")
    a("v_lshrrev_b32 v5, 1, v5")
    a("v_xor_b32 v5, s38, v5")
    a("v_lshl_add_u32 v8, v5, 6, v8")
    a("v_bfe_u32 v5, v1, 4, 1")
    a("v_xor_b32 v5, s39, v5")
    a("v_lshl_add_u32 v8, v5, 5, v8")
    a("v_and_b32 v5, 1, v1")
    a("v_lshl_add_u32 v8, v5, 4, v8")
    a("v_bfe_u32 v5, v1, 1, 1")
    a("v_lshl_add_u32 v8, v5, 3, v8")
    a(f"s_lshl_b32 s40, s{KS}, 11")
    a("v_add_u32 v8, s40, v8")
    a("v_xor_b32 v9, 64, v8")
    a("v_add_u32 v10, 0x10000, v8")
    a("v_add_u32 v11, 0x10000, v9")
    if not k3:
        a("v_add_u32 v12, 0x20000, v8")
        a("v_add_u32 v13, 0x20000, v9")
    if k3:
        srd(a,56,PWS,PWS+1,SZ_H,WS_H)
        srd(a,60,PWS,PWS+1,SZ_ST2,WS_ST2)
    else:
        srd(a,48,PWS,PWS+1,SZ_QA,WS_QA)
        srd(a,52,PWS,PWS+1,SZ_H,WS_H)
        srd(a,56,POUT,POUT+1,S*D*2)
    a("s_lshl_b32 s40, s88, 1")
    a(f"s_add_u32 s40, s40, s{TG}")
    a(f"s_mul_i32 s41, s40, {TBS}")
    a(f"s_lshl_b32 s42, s{KS}, 10")
    a("s_add_u32 s41, s41, s42")
    a(f"s_add_u32 s43, s41, {NST*4096}")
    a(f"s_lshl_b32 s42, s{S_WOROT if k3 else S_WDROT}, 12")
    a("s_add_u32 s42, s42, s41")
    a(f"s_mul_i32 s45, s40, {56*512}")
    a("s_lshl_b32 s46, s89, 12")
    a("s_add_u32 s45, s45, s46")
    a(f"s_lshl_b32 s46, s{KS}, 10")
    a("s_add_u32 s45, s45, s46")
    if k3: b0,b1=KVB,KVB+24576
    else: b0,b1=KVB,KVB+24576
    a(f"s_mul_i32 s46, s{TG}, {b1-b0}")
    a(f"s_add_u32 s46, s46, {b0}")
    a(f"s_mul_i32 s47, s{KS}, 6144")
    a("s_add_u32 s47, s47, s46")
    a(f"v_add_u32 v24, s47, v{VL16}")
    for j in (1,2,3):
        a(f"s_xor_b32 s47, s{KS}, {j}")
        a("s_mul_i32 s47, s47, 6144")
        a("s_add_u32 s47, s47, s46")
        a(f"v_add_u32 v{24+j}, s47, v{VL16}")
    RES=VRES if k3 else 16; ACC=32; AF=64; BF=96
    RB_=28 if not k3 else 7
    if k3:
        a(f"s_mul_i32 s44, s89, {S*8}")
        a(f"s_lshl_b32 s47, s{SW}, 9")
        a(f"s_add_u32 s47, s47, {MISC+1024}")
        a("v_lshlrev_b32 v28, 3, v1")
        a("v_add_u32 v28, s47, v28")
        a(f"s_lshl_b32 s47, s{TG}, 11")
        a(f"s_add_u32 s47, s47, {MISC+1024}")
        a("v_and_b32 v29, 31, v1")
        a("v_lshlrev_b32 v29, 3, v29")
        a("v_add_u32 v29, s47, v29")
        a("s_lshl_b32 s47, s40, 8")
        a("s_add_u32 s44, s44, s47")
        a("v_lshlrev_b32 v14, 3, v1")
        a("v_mov_b32 v15, 0x40000000")
        a("v_cmp_gt_u32 vcc, 32, v1")
        a("s_nop 1")
        a("v_cndmask_b32 v14, v15, v14, vcc")
        a("s_lshr_b32 s72, s88, 2")
        a("s_lshl_b32 s72, s72, 7")
        a(f"s_lshl_b32 s47, s{SI}, 2")
        a("s_add_u32 s72, s72, s47")
        a(f"s_add_u32 s72, s72, {F3}")
        a("s_lshr_b32 s46, s88, 1")
        a("s_lshl_b32 s46, s46, 6")
        a(f"s_add_u32 s46, s46, {F2}")
        a("s_mov_b32 s47, 0xffff0000")
        poll(a,VL4,"s46",0xffff,0,"w2")
    else:
        a(f"buffer_load_dwordx4 {v(RES,4)}, v{VL16}, s[52:55], s45 offen"); vm.issue("res")
        a(f"s_add_u32 s46, s74, {F4}")
        a("s_mov_b32 s47, 0xffff0000")
        poll(a,VL4,"s46",0x0fffffff,0,"w4")
    def bload(n):
        a("s_add_u32 s46, s42, 4096")
        a(f"buffer_load_dwordx4 {v(BF+4*(n%RB_),4)}, v{VL16}, s[48:51], s42 offen sc1"); vm.issue(("B",n))
        a("s_cmp_eq_u32 s46, s43")
        a("s_cselect_b32 s42, s41, s46")
    def aread(n):
        ga = UB+8192*n if k3 else p5_group_addr(n)
        hi=ga>>16; o=ga&0xffff
        r0=8+2*hi
        b=AF+8*(n%2)
        for sl in range(2):
            a(f"ds_read_b64_tr_b16 {v(b+4*sl,2)}, v{r0+sl} offset:{o}"); lg.issue(("A",n))
            a(f"ds_read_b64_tr_b16 {v(b+4*sl+2,2)}, v{r0+sl} offset:{o+512}"); lg.issue(("A",n))
    LA0=7 if k3 else E('P5_LA0',4)
    for n in range(LA0): bload(n)
    nb=LA0
    if k3:
        for c in range(P2_CH,3):
            for m in range(2): gu_dma(a,c,m,vm)
    aread(0)
    pend=[]
    NB1=15; NB2=NRES
    for n in range(NST):
        if n+1<NST:
            if not k3 and n+1==NB1:
                vm.wait(("wd",NRES-1)); a("s_barrier")
            if not k3 and n+1==NB2:
                vm.wait(("wd",27)); a("s_barrier")
            aread(n+1)
        vm.wait(("B",n)); lg.wait(("A",n))
        for sl in range(2):
            cin="0" if n==0 else v(ACC+16*sl,16)
            a(f"v_mfma_f32_32x32x16_bf16 {v(ACC+16*sl,16)}, {v(AF+8*(n%2)+4*sl,4)}, {v(BF+4*(n%RB_),4)}, {cin}")
        for _ in range(E('P5_BPS',2)):
            if nb<NST and nb-n<=E('P5_LAM',10): bload(nb); nb+=1
        if STAMP and n in (0,8,18): lg.waitall(); st(a,f"{tag}_n{n}")
        if not k3:
            if n==3: pend=list(range(NB1,NRES))
            if n==8:
                a("s_barrier")
                pend+=list(range(NRES,28))
            for _ in range(1 if n<8 else 2):
                if pend: wd_dma(a,pend.pop(0),vm)
    st(a,tag+"_mfma")
    a("s_nop 7")
    a("s_nop 3")
    for j in (1,2,3):
        for q in range(2): a(f"ds_write_b128 v24, {v(ACC+8*j+4*q,4)} offset:{(j-1)*2048+q*1024}")
    vm.wait("res")
    UBr=AF
    for d_ in range(4):
        a(f"v_lshlrev_b32 v{UBr+2*d_}, 16, v{RES+d_}")
        a(f"v_and_b32 v{UBr+2*d_+1}, s47, v{RES+d_}")
    for d_ in range(4):
        a(f"v_pk_add_f32 {v(ACC+2*d_,2)}, {v(ACC+2*d_,2)}, {v(UBr+2*d_,2)}")
    a("s_waitcnt lgkmcnt(0)")
    a("s_barrier")
    st(a,tag+"_red")
    PR=BF
    for j in (1,2,3):
        for q in range(2): a(f"ds_read_b128 {v(PR+8*j+4*q,4)}, v{24+j} offset:{(j-1)*2048+q*1024}")
    for j in (1,2,3):
        a(f"s_waitcnt lgkmcnt({2*(3-j)})")
        for d_ in range(4):
            a(f"v_pk_add_f32 {v(ACC+2*d_,2)}, {v(ACC+2*d_,2)}, {v(PR+8*j+2*d_,2)}")
    OB=16
    for d_ in range(4): a(f"v_cvt_pk_bf16_f32 v{OB+d_}, v{ACC+2*d_}, v{ACC+2*d_+1}")
    if k3:
        hstore(a,[f"buffer_store_dwordx4 {v(OB,4)}, v{VL16}, s[56:59], s45 offen"])
        a("v_mov_b32 v22, 0x3f803f80")
        a("v_mov_b32 v20, 0")
        a("v_mov_b32 v21, 0")
        for d_ in range(4):
            a(f"v_dot2c_f32_bf16 v20, v{OB+d_}, v22")
            a(f"v_dot2c_f32_bf16 v21, v{OB+d_}, v{OB+d_}")
        a("s_nop 2")
        a("ds_write_b64 v28, v[20:21]")
        a("s_waitcnt lgkmcnt(0)")
        a("s_barrier")
        a(f"s_cmp_lg_u32 s{KS}, 0")
        a(f"s_cbranch_scc1 {P('p3_nost')}")
        for q in range(8): a(f"ds_read_b64 {v(32+2*q,2)}, v29 offset:{256*q}")
        a("s_waitcnt lgkmcnt(0)")
        for q in (0,2,4,6): a(f"v_pk_add_f32 {v(32+2*q,2)}, {v(32+2*q,2)}, {v(34+2*q,2)}")
        a("v_pk_add_f32 v[32:33], v[32:33], v[36:37]")
        a("v_pk_add_f32 v[40:41], v[40:41], v[44:45]")
        a("v_pk_add_f32 v[32:33], v[32:33], v[40:41]")
        hstore(a,[f"buffer_store_dwordx2 v[32:33], v14, s[60:63], s44 offen"])
        a.label(P('p3_nost'))
        signal(a,72,"s3")
    else:
        a(f"buffer_store_dwordx4 {v(OB,4)}, v249, s[56:59], s73 offen")

def kb_phase4(a):
    vm=Cnt(a,"vmcnt"); lg=Cnt(a,"lgkmcnt")
    for m in range(2): gu_dma(a,3,m)
    srd(a,SRD_WD,PWD,PWD+1,F*D*2)
    a(f"s_mul_i32 s79, s{S_WDROT}, {64*896}")
    a(f"s_add_u32 s79, s79, s{S_WD}")
    a(f"s_add_u32 s75, s{S_WD}, {28*64*896}")
    a("v_lshrrev_b32 v4, 5, v1")
    a("v_bfe_u32 v5, v1, 2, 2")
    a("v_lshl_add_u32 v9, v4, 3, v5")
    a("v_lshlrev_b32 v9, 7, v9")
    a("v_bfe_u32 v10, v1, 4, 1")
    a("v_and_b32 v11, 1, v1")
    a("v_lshl_add_u32 v9, v11, 4, v9")
    a("v_bfe_u32 v11, v1, 1, 1")
    a("v_lshl_add_u32 v9, v11, 3, v9")
    a("v_lshrrev_b32 v5, 1, v5")
    a("v_lshl_add_u32 v5, v10, 1, v5")
    a("v_lshl_add_u32 v9, v5, 5, v9")
    a("v_lshl_add_u32 v12, v10, 13, v9")
    for t in range(1,4): a(f"v_xor_b32 v{12+t}, {32*t}, v12")
    a(f"v_add_u32 v25, {KVB}, v12")
    a("v_xor_b32 v26, 32, v25")
    a("v_xor_b32 v27, 64, v25")
    a("v_xor_b32 v29, 96, v25")
    a("v_and_b32 v17, 31, v1")
    a("v_lshlrev_b32 v17, 3, v17")
    a(f"v_mul_u32_u24 v16, {S*8}, v4")
    a("v_add_u32 v17, v17, v16")
    a("v_lshlrev_b32 v28, 5, v4")
    a(f"s_lshl_b32 s56, s{SX}, 3")
    a(f"s_add_u32 s56, s56, s{SW}")
    a(f"s_mul_i32 s57, s56, {28*1024}")
    a(f"s_add_u32 s54, s57, {7*4096}")
    a(f"s_mul_i32 s55, s89, {4096 if ROT4 else 0}")
    a("s_add_u32 s55, s55, s57")
    a("s_lshl_b32 s58, s56, 8")
    a(f"s_mul_i32 s59, s56, {112*1024}")
    a(f"s_lshl_b32 s60, s{SI}, 12")
    a("s_add_u32 s59, s59, s60")
    a(f"s_lshl_b32 s60, s{SI}, 8")
    a(f"s_add_u32 s61, s60, {F*4}")
    srd(a,36,PWS,PWS+1,SZ_H,WS_H)
    srd(a,40,PWS,PWS+1,SZ_QA,WS_QA)
    srd(a,44,PWS,PWS+1,SZ_ST2,WS_ST2)
    srd(a,48,PWS,PWS+1,SZ_CS,WS_CS)
    a(f"s_lshl_b32 s72, s{SI}, 2")
    a("s_add_u32 s72, s72, s74")
    a(f"s_add_u32 s72, s72, {F4}")
    a(f"s_add_u32 s62, s74, {F3}")
    a(f"v_mul_u32_u24 v16, {FN-F3}, v4")
    a(f"v_add_u32 v16, v16, v{VL4}")
    a(f"s_cmp_eq_u32 s{SX}, 7")
    a("s_cselect_b32 s63, 0, -1")
    poll(a,16,"s62",0x0fffffff,"s63","w3")
    BFR=64; ACC=176; AF=32; STR=240
    def hb(c,s_):
        def f():
            if s_==0 and c>0:
                a("s_add_u32 s55, s55, 4096")
                a("s_cmp_eq_u32 s55, s54")
                a("s_cselect_b32 s55, s57, s55")
            a(f"buffer_load_dwordx4 {v(BFR+16*c+4*s_,4)}, v{VL16}, s[36:39], s55 offen offset:{1024*s_}"); vm.issue(("h",c,s_))
        return f
    hq=[hb(c,s_) for c in range(7) for s_ in range(4)]
    NPRE=E('P4_NPRE',6)
    for f in hq[:NPRE]: f()
    steps=[(c,s_,t) for c in range(5) for s_ in range(4) for t in range(4)]
    steps+=[(c,s_,t) for t in range(4) for c in (5,6) for s_ in range(4)]
    NS=len(steps); PF=6
    def rd(i):
        c,s_,t=steps[i]
        b=AF+4*(i%8); o=CH(c)+s_*2048
        ar=12+t
        if o>=KVB: o-=KVB; ar=(25,26,27,29)[t]
        a(f"ds_read_b64_tr_b16 {v(b,2)}, v{ar} offset:{o}"); lg.issue(("A",i))
        a(f"ds_read_b64_tr_b16 {v(b+2,2)}, v{ar} offset:{o+512}"); lg.issue(("A",i))
    fill={i:[] for i in range(NS)}
    HSP=float(os.environ.get('P4_HSP','3'))
    for k,f in enumerate(hq[NPRE:]): fill[int(1+HSP*k)].append(f)
    for sl in range(4):
        def f(sl=sl):
            a(f"s_add_u32 s62, s58, {sl*2*S*8}")
            a(f"buffer_load_dwordx2 {v(STR+2*sl,2)}, v17, s[44:47], s62 offen"); vm.issue("st")
        fill[2+3*sl].append(f)
    for k in range(6): fill[3+6*k].append(lambda k=k: gu_dma(a,4+k//2,k%2,vm))
    def atouch():
        a("v_and_b32 v30, 31, v1")
        a("v_lshlrev_b32 v30, 7, v30")
        a(f"s_cmp_ge_u32 s{SI}, 21")
        a("s_cselect_b32 s62, s59, 0x40000000")
        a("buffer_load_dword v31, v30, s[40:43], s62 offen sc1"); vm.issue("t")
    if TOUCH: fill[E('P4_AT',36)].append(atouch)
    def stats_math():
        vm.wait("st")
        for sl in range(1,4):
            a(f"v_add_f32 v{STR}, v{STR}, v{STR+2*sl}")
            a(f"v_add_f32 v{STR+1}, v{STR+1}, v{STR+2*sl+1}")
        a(f"v_mov_b32 v18, v{STR}")
        a(f"v_mov_b32 v19, v{STR+1}")
        a("s_nop 1")
        a(f"v_permlane32_swap_b32 v18, v{STR}")
        a(f"v_permlane32_swap_b32 v19, v{STR+1}")
        a(f"v_add_f32 v18, v18, v{STR}")
        a(f"v_add_f32 v19, v19, v{STR+1}")
        a(f"v_mul_f32 v18, {f32bits(1.0/D)}, v18")
        a(f"v_mul_f32 v19, {f32bits(1.0/D)}, v19")
        a("v_fma_f32 v19, -v18, v18, v19")
        a("v_max_f32 v19, 0, v19")
        a(f"v_add_f32 v24, {f32bits(1e-5)}, v19")
        a("v_rsq_f32 v20, v24")
        a("v_sub_f32 v22, 0, v18")
        a(f"v_mul_f32 v20, {f32bits(-LOG2E)}, v20")
    fill[40].append(stats_math)
    def rdcs(t):
        CS=64+16*t
        for q,o in enumerate((64*t,64*t+16,256+64*t,256+64*t+16)):
            a(f"ds_read_b128 {v(CS+4*q,4)}, v28 offset:{MISC+o}"); lg.issue(("cs",t))
    for t in range(4): fill[70+2*t].append(lambda t=t: rdcs(t))
    for n in range(NEARLY): fill[42+6*n].append(lambda n=n: wd_dma(a,n,vm))
    def epi_ops(t):
        CS=64+16*t; T0=CS; OB=CS+8
        A0=ACC+16*t
        ops=[]
        ops.append(lambda: a("s_nop 3"))
        for r in range(8): ops.append(lambda r=r: a(f"v_fmac_f32 v{A0+r}, v22, v{CS+r}"))
        for r in range(8): ops.append(lambda r=r: a(f"v_mul_f32 v{T0+r}, v20, v{A0+r}"))
        for r in range(8):
            ops.append(lambda r=r: a(f"v_exp_f32 v{T0+r}, v{T0+r}"))
            ops.append(lambda r=r: a(f"v_fmac_f32 v{A0+8+r}, v22, v{CS+8+r}"))
        for r in range(8): ops.append(lambda r=r: a(f"v_fma_f32 v{T0+r}, v{T0+r}, v24, v24"))
        for r in range(8):
            ops.append(lambda r=r: a(f"v_rcp_f32 v{T0+r}, v{T0+r}"))
            ops.append(lambda r=r: a(f"v_mul_f32 v{A0+r}, v{A0+r}, v{A0+8+r}"))
        for r in range(8): ops.append(lambda r=r: a(f"v_mul_f32 v{A0+r}, v{A0+r}, v{T0+r}"))
        for p in range(4): ops.append(lambda p=p: a(f"v_cvt_pk_bf16_f32 v{OB+p}, v{A0+2*p}, v{A0+2*p+1}"))
        def stv():
            hstore(a,[f"buffer_store_dwordx4 {v(OB,4)}, v{VL16}, s[40:43], s59 offen offset:{1024*t}"]); vm.issue("out")
        ops.append(stv)
        return ops
    tail_ops=[]
    for t in range(4):
        ops=epi_ops(t)
        base=80+8*t
        if t<3:
            nb=base+8
            per=-(-len(ops)//7)
            for k,f in enumerate(ops): fill[nb+1+k//per].append(f)
        else: tail_ops=ops
    fill[80].insert(0,lambda: a("s_barrier"))
    for n in range(NEARLY,15): fill[81+(n-NEARLY)].append(lambda n=n: wd_dma(a,n,vm))
    for i in range(PF): rd(i)
    landed=2
    for i in range(NS):
        c,s_,t=steps[i]
        vm.wait(("h",c,s_))
        lg.wait(("A",i))
        cin="0" if (c==0 and s_==0) else v(ACC+16*t,16)
        a(f"v_mfma_f32_32x32x16_bf16 {v(ACC+16*t,16)}, {v(AF+4*(i%8),4)}, {v(BFR+16*c+4*s_,4)}, {cin}")
        for f in fill[i]: f()
        if i+PF<NS:
            nc=steps[i+PF][0]
            if nc>landed:
                tgt = nc if nc<5 else 6
                vm.wait(("W",tgt)); a("s_barrier"); landed=tgt
            rd(i+PF)
        if STAMP and i in (0,15,31,47,63,79,95,111): lg.waitall(); st(a,f"p4_i{i}")
    a("s_nop 7")
    a("s_nop 1")
    for f in tail_ops: f()
    signal(a,72,"s4")

def gen_kb(name):
    KN[0]="kb"
    a=Asm(); prologue(a,name)
    kb_phase2(a)
    a("s_memrealtime s[64:65]")
    a("s_waitcnt lgkmcnt(0)")
    a("v_writelane_b32 v248, s64, 3")
    kb_phase35(a,3)
    a("s_memrealtime s[64:65]")
    a("s_waitcnt lgkmcnt(0)")
    a("v_writelane_b32 v248, s64, 4")
    kb_phase4(a)
    a("s_memrealtime s[64:65]")
    a("s_waitcnt lgkmcnt(0)")
    a("v_writelane_b32 v248, s64, 5")
    kb_phase35(a,5)
    a("s_waitcnt vmcnt(0)")
    a("s_memrealtime s[64:65]")
    a("s_waitcnt lgkmcnt(0)")
    a("v_writelane_b32 v248, s64, 6")
    a("s_cmp_lg_u32 s2, 0")
    a(f"s_cbranch_scc1 {P('end')}")
    a(f"s_cmp_lg_u32 s{SW}, 0")
    a(f"s_cbranch_scc1 {P('end')}")
    srd(a,48,PWS,PWS+1,256,WS_DBG)
    srd(a,52,PDBG,PDBG+1,256)
    a("v_mov_b32 v4, 0")
    a("buffer_load_dwordx2 v[2:3], v4, s[48:51], 0 offen")
    a("v_writelane_b32 v248, s34, 2")
    a("s_waitcnt vmcnt(0)")
    a("v_readfirstlane_b32 s36, v2")
    a("v_readfirstlane_b32 s37, v3")
    a("s_nop 3")
    a("v_writelane_b32 v248, s36, 0")
    a("v_writelane_b32 v248, s37, 1")
    a("v_subrev_u32 v5, s36, v248")
    a(f"buffer_store_dword v5, v{VL4}, s[52:55], 0 offen")
    a.label(P('end'))
    a("s_endpgm")
    a.label(P('spare2'))
    if SP_TOUCH:
        a("v_lshlrev_b32 v9, 7, v1")
        a(f"s_sub_u32 s36, s{SI}, 28")
        a("s_lshl_b32 s36, s36, 3")
        a(f"s_add_u32 s36, s36, s{SW}")
        a("s_bitcmp1_b32 s36, 0")
        a(f"s_cselect_b32 s{SRD_G}, s{SRD_U}, s{SRD_G}")
        a(f"s_cselect_b32 s{SRD_G+1}, s{SRD_U+1}, s{SRD_G+1}")
        a("s_lshr_b32 s37, s36, 1")
        a("s_lshl_b32 s37, s37, 13")
        q0=256*3584//8192
        for i in range(6):
            a(f"s_add_u32 s38, s37, {(q0+16*i)*8192}")
            a(f"buffer_load_dword v{30+i}, v9, s[{SRD_G}:{SRD_G+3}], s38 offen")
        srd(a,SRD_WD,PWD,PWD+1,F*D*2)
        a("s_lshl_b32 s37, s36, 13")
        for i in range(7):
            a(f"s_add_u32 s38, s37, {i*32*8192}")
            a(f"buffer_load_dword v{40+i}, v9, s[{SRD_WD}:{SRD_WD+3}], s38 offen")
    dump(a)
    a("s_endpgm")
    return a.text(), kdesc(name,256)

def build(path):
    hdr=open("sequential_preLN__sliding_block__swiglu_ffn__prompt.s.ref").read().split("; Override launch")[0]
    ta,da=gen_ka("ka_kernel"); tb,db=gen_kb("kb_kernel")
    L=[hdr.rstrip(), f"; @launch kernel=ka_kernel grid=({NWG},1,1) block=({THREADS},1,1) lds=155648",
       f"; @launch kernel=kb_kernel grid=({NWG},1,1) block=({THREADS},1,1) lds={LDS}",
       '.amdgcn_target "amdgcn-amd-amdhsa--gfx950"\n.text', ta, tb, '.section .rodata,"a"', da, db]
    open(path,"w").write("\n".join(L)+"\n")
    if STAMP: open(path+".names","w").write(" ".join(STN))
if __name__=="__main__":
    build(sys.argv[1])
```

```python
from common import *
import sys
NWG=256; THREADS=512; LDS=163840
WS_FLAG=0x1300000; SZ_FLAG=8192
FID=0; F2=1024; F3=2048; F4=3072
WS_ST2=0x1210000; SZ_ST2=7*S*8
PX,PWQKV,PWO,PBX,PWG,PWU,PWD,POUT,PDBG,PWS=4,6,8,10,12,14,16,18,20,22
SW,SX,SI=24,25,26
SMODE=27; SXC=3
SRD_FLAG=28
UB=57344; KVB=114688
SPIN_MAX=200000
NEG=f32bits(-1e30)
E=lambda k,d: int(os.environ.get(k,str(d)))
FORCE_SLOW=E('FORCE_SLOW',0); P1_ROT=E('P1_ROT',3); CS_DEPTH=E('CS_DEPTH',4); SLEEP2=E('SLEEP2',1); NOW=E('NOW',0)
KA_TOUCH_AT=E('KA_TOUCH_AT',4); TOUCH=E('TOUCH',1); P2_CH=E('P2_CH',2); SP_TOUCH=E('SP_TOUCH',1); ROT4=E('ROT4',1); ROTB=E('ROTB',1)
TBS=114688; SZ_QA=64*TBS; WS_QA=WS_ACT
FN=4096
KN=["ka"]
def P(name): return f"L_{KN[0]}_{name}"
WS_DBG=0x1400000
STN=[]
def st(a,name,rt=False):
    if not STAMP: return
    name=KN[0]+"."+name
    if name not in STN: STN.append(name)
    i=[n for n in STN if n.startswith(KN[0])].index(name)
    a(f"s_mem{'real' if rt else ''}time s[64:65]")
    a("s_waitcnt lgkmcnt(0)")
    a(f"v_writelane_b32 v255, s64, {i}")
def dump(a):
    if not STAMP: return
    a("s_waitcnt vmcnt(0)")
    st(a,"end"); st(a,"rt1",True)
    srd(a,48,PWS,PWS+1,2*256*8*256,WS_DBG)
    a("v_lshlrev_b32 v2, 2, v0")
    a("s_lshl_b32 s36, s2, 11")
    if KN[0]=="kb": a(f"s_add_u32 s36, s36, {256*2048}")
    a("buffer_store_dword v255, v2, s[48:51], s36 offen")
_uid=[0]
def hstore(a, instrs):
    _uid[0]+=1; u=_uid[0]
    a(f"s_cmp_eq_u32 s{SMODE}, 0")
    a(f"s_cbranch_scc1 L_hs{u}a")
    for i in instrs: a(i)
    a(f"s_branch L_hs{u}b")
    a.label(f"L_hs{u}a")
    for i in instrs: a(i+" sc1")
    a.label(f"L_hs{u}b")
def signal(a, off_sgpr, tag):
    st(a,tag+"_pre")
    a("s_waitcnt vmcnt(0)")
    a("s_barrier")
    st(a,tag+"_bar")
    a(f"s_cmp_lg_u32 s{SW}, 1")
    a(f"s_cbranch_scc1 {P(tag+'_nosig')}")
    a("v_mov_b32 v2, 1")
    a("v_mov_b32 v3, 0")
    a("s_mov_b64 exec, 1")
    hstore(a,[f"buffer_store_dword v2, v3, s[{SRD_FLAG}:{SRD_FLAG+3}], s{off_sgpr} offen"])
    a("s_mov_b64 exec, -1")
    a.label(P(tag+'_nosig'))
def spin(a, voff, soff, mask_lo, mask_hi, tag, vd=2):
    a(f"s_mov_b32 exec_lo, {mask_lo}")
    a(f"s_mov_b32 exec_hi, {mask_hi}")
    a("s_mov_b32 s101, 0")
    a.label(P(tag+'_pl'))
    a(f"buffer_load_dword v{vd}, v{voff}, s[{SRD_FLAG}:{SRD_FLAG+3}], {soff} offen sc1")
    a("s_add_u32 s101, s101, 1")
    a("s_waitcnt vmcnt(0)")
    a(f"v_cmp_eq_u32 vcc, 0, v{vd}")
    a(f"s_cmp_gt_u32 s101, {SPIN_MAX}")
    a(f"s_cbranch_scc1 {P(tag+'_pd')}")
    a("s_nop 3")
    a(f"s_cbranch_vccz {P(tag+'_pd')}")
    a(f"s_sleep {SLEEP2}")
    a(f"s_branch {P(tag+'_pl')}")
    a.label(P(tag+'_pd'))
    a("s_mov_b64 exec, -1")
def poll(a, voff, soff, mask_lo, mask_hi, tag):
    st(a,tag+"_pre")
    a(f"s_cmp_lg_u32 s{SW}, 0")
    a(f"s_cbranch_scc1 {P(tag+'_pw')}")
    spin(a,voff,soff,mask_lo,mask_hi,tag)
    a.label(P(tag+'_pw'))
    a("s_barrier")
    st(a,tag)
def rot_idx(a, sd, n, srot, mod):
    a(f"s_add_u32 s{sd}, s{srot}, {n}")
    a(f"s_sub_u32 s100, s{sd}, {mod}")
    a(f"s_cmp_ge_u32 s{sd}, {mod}")
    a(f"s_cselect_b32 s{sd}, s100, s{sd}")
def prologue(a,name):
    kstart(a,name)
    a(f"s_cmp_ge_u32 s2, {NWG}")
    a(f"s_cbranch_scc1 {P('end')}")
    if STAMP: a("v_mov_b32 v255, 0")
    a("s_memrealtime s[98:99]" if KN[0]=="ka" else "s_memrealtime s[34:35]")
    a("s_load_dwordx16 s[4:19], s[0:1], 0")
    a("s_load_dwordx4 s[20:23], s[0:1], 64")
    a("v_and_b32 v1, 63, v0")
    a("v_lshrrev_b32 v2, 6, v0")
    a(f"s_and_b32 s{SX}, s2, 7")
    a(f"v_readfirstlane_b32 s{SW}, v2")
    a(f"s_lshr_b32 s{SI}, s2, 3")
    sdiv(a,92,89,SI,7,93)
    a(f"s_lshl_b32 s88, s{SX}, 2")
    a("s_add_u32 s88, s88, s92")

def gen_ka(name):
    KN[0]="ka"
    a=Asm(); prologue(a,name)
    a(f"s_cmp_ge_u32 s{SI}, 28")
    a(f"s_cbranch_scc1 {P('spare')}")
    XB=0; WB=57344; WSLOT=24576
    RB,CB=88,89
    if P1_ROT==0: a("s_mov_b32 s76, 0")
    else:
        a("s_lshr_b32 s76, s92, 1")
        a(f"s_mul_i32 s76, s76, {P1_ROT}")
    for u in range(3):
        a(f"v_add_u32 v9, {64*u}, v1")
        a("v_mul_u32_u24 v10, 2731, v9")
        a("v_lshrrev_b32 v10, 16, v10")
        a("v_mul_u32_u24 v11, 24, v10")
        a("v_sub_u32 v11, v9, v11")
        a("v_lshrrev_b32 v12, 2, v11")
        a("v_bfe_u32 v13, v10, 1, 1")
        a("v_xor_b32 v12, v12, v13")
        a("v_and_b32 v11, 3, v11")
        a("v_lshlrev_b32 v11, 4, v11")
        a("v_lshl_add_u32 v11, v12, 6, v11")
        a("v_mul_u32_u24 v10, 2688, v10")
        a(f"v_add_u32 v{16+u}, v10, v11")
    a(f"s_mul_i32 s40, s{CB}, 384")
    a(f"s_and_b32 s43, s{SW}, 3")
    a(f"s_mul_i32 s44, s43, {16*2688}")
    a("s_add_u32 s44, s44, s40")
    a(f"s_mul_i32 s45, s43, 6144")
    a(f"s_add_u32 s45, s45, {WB}")
    for c in range(7): rot_idx(a,66+c,c,76,7)
    def w_ops(c,vm):
        slot=c%4
        a(f"s_mul_i32 s47, s{66+c}, {64*2688}")
        a("s_add_u32 s47, s47, s44")
        a(f"s_add_u32 s46, s47, {8*2688}")
        for u in range(6):
            a(f"s_add_u32 m0, s45, {slot*WSLOT+u*1024}")
            a("s_nop 0")
            a(f"buffer_load_dwordx4 v{16+u%3}, s[52:55], s{47 if u<3 else 46} offen lds"); vm.issue(("W",c))
    a(f"s_cmp_ge_u32 s{SW}, 4")
    a(f"s_cbranch_scc1 {P('C')}")
    a("v_lshrrev_b32 v5, 3, v1")
    a(f"s_lshl_b32 s38, s{SW}, 4")
    a("v_add_u32 v5, s38, v5")
    a("v_mul_u32_u24 v6, 896, v5")
    a("v_and_b32 v7, 7, v1")
    a("v_lshl_add_u32 v6, v7, 4, v6")
    a(f"v_add_u32 v15, {8*896}, v6")
    a(f"s_mul_i32 s38, s{RB}, {64*896}")
    a("v_bfe_u32 v8, v5, 1, 3")
    a("v_xor_b32 v8, v8, v7")
    a("v_lshlrev_b32 v8, 4, v8")
    a("v_lshl_add_u32 v8, v5, 7, v8")
    a("v_xor_b32 v14, 64, v8")
    a("v_add_u32 v14, 1024, v14")
    for i in range(7):
        a(f"s_lshl_b32 s{78+i}, s{66+i}, 7")
        a(f"s_add_u32 s{78+i}, s{78+i}, s38")
    a("v_mov_b32 v19, 0x3f803f80")
    a("s_mov_b32 s39, 0xffff0000")
    for r in range(20,28): a(f"v_mov_b32 v{r}, 0")
    a("s_waitcnt lgkmcnt(0)")
    st(a,"kernarg")
    srd(a,48,PX,PX+1,S*D*2)
    vm=Cnt(a,"vmcnt")
    XR=32; FR=96
    for i in range(7):
        for u in range(2):
            a(f"buffer_load_dwordx4 {v(XR+28*u+4*i,4)}, v{6 if u==0 else 15}, s[48:51], s{78+i} offen"); vm.issue(("x",u,i))
    srd(a,52,PWQKV,PWQKV+1,D*NQKV*2)
    for i in range(7):
        for u in range(2):
            vm.wait(("x",u,i))
            for d_ in range(4):
                x=XR+28*u+4*i+d_
                a(f"v_dot2c_f32_bf16 v{20+4*u+(d_&1)}, v{x}, v19")
                a(f"v_dot2c_f32_bf16 v{22+4*u+(d_&1)}, v{x}, v{x}")
    st(a,"x")
    a("s_nop 2")
    for u in range(2):
        a(f"v_add_f32 v{20+4*u}, v{20+4*u}, v{21+4*u}")
        a(f"v_add_f32 v{22+4*u}, v{22+4*u}, v{23+4*u}")
    for dpp in ("quad_perm:[1,0,3,2]","quad_perm:[2,3,0,1]","row_half_mirror"):
        a("s_nop 0")
        for r in (20,22,24,26):
            a(f"v_add_f32_dpp v{r}, v{r}, v{r} {dpp} row_mask:0xf bank_mask:0xf")
    for u in range(2):
        m=20+4*u; q=22+4*u
        a(f"v_mul_f32 v{m}, {f32bits(1.0/D)}, v{m}")
        a(f"v_mul_f32 v{q}, {f32bits(1.0/D)}, v{q}")
    for u in range(2):
        m=20+4*u; q=22+4*u
        a(f"v_fma_f32 v{q}, -v{m}, v{m}, v{q}")
        a(f"v_max_f32 v{q}, 0, v{q}")
        a(f"v_add_f32 v{q}, {f32bits(1e-5)}, v{q}")
        a(f"v_rsq_f32 v{q}, v{q}")
    a("s_nop 0")
    for u in range(2):
        m=20+4*u; q=22+4*u
        a(f"v_mul_f32 v{m}, v{m}, v{q}")
        a(f"v_sub_f32 v{m}, 0, v{m}")
    def norm(i):
        for u in range(2):
            for d_ in range(4):
                x=XR+28*u+4*i+d_; f=FR+2*d_+8*u
                a(f"v_lshlrev_b32 v{f}, 16, v{x}")
                a(f"v_and_b32 v{f+1}, s39, v{x}")
        for u in range(2):
            m=20+4*u; q=22+4*u
            for d_ in range(4):
                f=FR+2*d_+8*u
                a(f"v_pk_fma_f32 {v(f,2)}, {v(f,2)}, {v(q,2)}, {v(m,2)} op_sel_hi:[1,0,0]")
        for u in range(2):
            for d_ in range(4):
                x=XR+28*u+4*i+d_; f=FR+2*d_+8*u
                a(f"v_cvt_pk_bf16_f32 v{x}, v{f}, v{f+1}")
            a(f"ds_write_b128 v{8 if u==0 else 14}, {v(XR+28*u+4*i,4)} offset:{XB+8192*i}")
    sched=eval(os.environ.get('P1_SCHED','{0:[0,1],1:[2,3],2:[4,5],3:[6],4:[],5:[],6:[]}'))
    for c in range(7):
        for i in sched[c]: norm(i)
        if sched[c]: a("s_waitcnt lgkmcnt(0)")
        vm.wait(("W",c))
        st(a,f"L{c}")
        a("s_barrier")
        if c>=2 and c+2<7: w_ops(c+2,vm)
        if c==KA_TOUCH_AT:
            srd(a,56,PWS,PWS+1,SZ_QA,WS_QA)
            a("v_lshlrev_b32 v9, 7, v1")
            a("v_mov_b32 v10, 0x40000000")
            a("v_cmp_gt_u32 vcc, 48, v1")
            a(f"s_lshl_b32 s60, s{RB}, 1")
            a("s_lshr_b32 s61, s43, 1")
            a("v_cndmask_b32 v9, v10, v9, vcc")
            a("s_add_u32 s60, s60, s61")
            a(f"s_mul_i32 s60, s60, {TBS}")
            a(f"s_mul_i32 s61, s{CB}, 12288")
            a("s_add_u32 s60, s60, s61")
            a("s_and_b32 s61, s43, 1")
            a("s_mul_i32 s61, s61, 6144")
            a("s_add_u32 s60, s60, s61")
            a("buffer_load_dword v30, v9, s[56:59], s60 offen sc1"); vm.issue("t")
    dump(a)
    a("s_endpgm")
    a.label(P('C'))
    vm=Cnt(a,"vmcnt"); lg=Cnt(a,"lgkmcnt")
    a("s_and_b32 s36, s43, 1")
    a("s_lshr_b32 s37, s43, 1")
    a("s_waitcnt lgkmcnt(0)")
    srd(a,52,PWQKV,PWQKV+1,D*NQKV*2)
    w_ops(0,vm); w_ops(1,vm)
    srd(a,56,PWS,PWS+1,SZ_QA,WS_QA)
    a("v_and_b32 v3, 31, v1")
    a("s_lshl_b32 s60, s36, 5")
    a("v_add_u32 v3, s60, v3")
    a("v_lshrrev_b32 v4, 5, v1")
    a("v_bfe_u32 v5, v3, 1, 3")
    a("v_xor_b32 v5, v5, v4")
    a("v_lshlrev_b32 v5, 4, v5")
    a("v_lshl_add_u32 v10, v3, 7, v5")
    for s_ in range(1,4): a(f"v_xor_b32 v{10+s_}, {32*s_}, v10")
    a("v_bfe_u32 v5, v1, 2, 2")
    a("v_lshl_add_u32 v6, v4, 3, v5")
    a("v_mul_u32_u24 v6, 384, v6")
    a("v_bfe_u32 v7, v1, 4, 1")
    a("v_lshl_add_u32 v6, v7, 5, v6")
    a("v_and_b32 v7, 1, v1")
    a("v_lshl_add_u32 v6, v7, 4, v6")
    a("v_bfe_u32 v7, v1, 1, 1")
    a("v_lshl_add_u32 v6, v7, 3, v6")
    a(f"v_add_u32 v6, {WB}, v6")
    a("v_lshrrev_b32 v5, 1, v5")
    a("s_mul_i32 s60, s37, 3")
    for jj in range(3):
        a(f"s_add_u32 s61, s60, {jj}")
        a("v_xor_b32 v7, s61, v5")
        a(f"v_lshl_add_u32 v{20+jj}, v7, 6, v6")
        a(f"v_add_u32 v{24+jj}, {2*WSLOT}, v{20+jj}")
    a(f"s_mul_i32 s60, s{CB}, 192")
    a("s_mul_i32 s61, s37, 96")
    a("s_add_u32 s60, s60, s61")
    a(f"s_lshl_b32 s62, s{RB}, 1")
    a("s_add_u32 s62, s62, s36")
    a(f"s_mul_i32 s62, s62, {TBS}")
    a("s_lshl_b32 s61, s60, 6")
    a("s_add_u32 s62, s62, s61")
    a("s_add_u32 s63, s62, 4096")
    for jj in range(3):
        a(f"s_add_u32 s61, s60, {32*jj}")
        a("s_cmp_lt_u32 s61, 448")
        a(f"s_cselect_b32 s{78+2*jj}, {f32bits(DH**-0.5*LOG2E)}, {f32bits(1.0)}")
        a(f"s_mov_b32 s{79+2*jj}, s{78+2*jj}")
    a("v_lshlrev_b32 v5, 4, v1")
    ACC=32; BFq=96; AFq=112
    NK=28
    def rdB(k):
        c=k//4; s_=k%4; b=k%3
        a(f"ds_read_b128 {v(BFq+4*b,4)}, v{10+s_} offset:{XB+c*8192}"); lg.issue(("f",k,0))
    def rdA(k,jj):
        c=k//4; s_=k%4; slot=c%4; b=k%3
        ab=(20 if slot<2 else 24)+jj
        o=(slot&1)*WSLOT+s_*16*384
        a(f"ds_read_b64_tr_b16 {v(AFq+12*b+4*jj,2)}, v{ab} offset:{o}"); lg.issue(("f",k,jj))
        a(f"ds_read_b64_tr_b16 {v(AFq+12*b+4*jj+2,2)}, v{ab} offset:{o+4*384}"); lg.issue(("f",k,jj))
    vm.wait(("W",0))
    st(a,"C0")
    w_ops(2,vm)
    a("s_barrier")
    st(a,"B0")
    for k in (0,1):
        rdB(k)
        for jj in range(3): rdA(k,jj)
    for k in range(NK):
        b=k%3
        for jj in range(3):
            lg.wait(("f",k,jj))
            cin="0" if k==0 else v(ACC+16*jj,16)
            a(f"v_mfma_f32_32x32x16_bf16 {v(ACC+16*jj,16)}, {v(AFq+12*b+4*jj,4)}, {v(BFq+4*b,4)}, {cin}")
            if k+2<NK:
                if jj==0:
                    if (k+2)%4==0:
                        vm.wait(("W",(k+2)//4))
                        a("s_barrier")
                        if k+2==4: w_ops(3,vm)
                    rdB(k+2)
                rdA(k+2,jj)
    st(a,"mfma")
    a("s_nop 7")
    a("s_nop 1")
    OB=160
    for jj in range(3):
        for r in range(8): a(f"v_pk_mul_f32 {v(ACC+16*jj+2*r,2)}, {v(ACC+16*jj+2*r,2)}, s[{78+2*jj}:{79+2*jj}]")
        for r in range(8): a(f"v_cvt_pk_bf16_f32 v{OB+8*jj+r}, v{ACC+16*jj+2*r}, v{ACC+16*jj+2*r+1}")
        sb=62 if jj<2 else 63; o=2048*(jj%2)
        a(f"buffer_store_dwordx4 {v(OB+8*jj,4)}, v5, s[56:59], s{sb} offen offset:{o}")
        a(f"buffer_store_dwordx4 {v(OB+8*jj+4,4)}, v5, s[56:59], s{sb} offen offset:{o+1024}")
    a("s_waitcnt vmcnt(0)")
    a("s_memrealtime s[96:97]")
    a("s_waitcnt lgkmcnt(0)")
    a("s_cmp_lg_u32 s2, 0")
    a(f"s_cbranch_scc1 {P('end')}")
    srd(a,48,PWS,PWS+1,256,WS_DBG)
    a("v_mov_b32 v2, s98")
    a("v_mov_b32 v3, s96")
    a("v_mov_b32 v4, 0")
    a("buffer_store_dwordx2 v[2:3], v4, s[48:51], 0 offen")
    a("s_endpgm")
    a.label(P('spare'))
    a(f"s_sub_u32 s36, s{SI}, 28")
    a("s_lshl_b32 s36, s36, 3")
    a(f"s_add_u32 s36, s36, s{SX}")
    sdiv(a,37,38,36,14,39)
    a("v_lshrrev_b32 v3, 4, v1")
    a(f"s_lshl_b32 s39, s{SW}, 2")
    a("v_add_u32 v3, s39, v3")
    a("v_mul_u32_u24 v4, 3584, v3")
    a("v_and_b32 v5, 15, v1")
    a("v_lshl_add_u32 v4, v5, 4, v4")
    a("s_waitcnt lgkmcnt(0)")
    a("s_cmp_lt_u32 s36, 28")
    a(f"s_cbranch_scc1 {P('cs')}")
    a("s_cmp_lg_u32 s36, 31")
    a(f"s_cbranch_scc1 {P('end')}")
    srd(a,SRD_FLAG,PWS,PWS+1,SZ_FLAG,WS_FLAG)
    a("v_lshlrev_b32 v3, 4, v0")
    for r in range(4,8): a(f"v_mov_b32 v{r}, 0")
    a(f"buffer_store_dwordx4 v[4:7], v3, s[{SRD_FLAG}:{SRD_FLAG+3}], 0 offen")
    a("s_endpgm")
    a.label(P('cs'))
    a("s_cmp_eq_u32 s37, 0")
    a(f"s_cselect_b32 s40, s{PWG}, s{PWU}")
    a(f"s_cselect_b32 s41, s{PWG+1}, s{PWU+1}")
    srd(a,48,40,41,D*F*2)
    srd(a,52,PWS,PWS+1,SZ_CS,WS_CS)
    a("s_lshl_b32 s42, s38, 8")
    def csl(i):
        a(f"s_add_u32 s43, s42, {i*32*3584}")
        a(f"buffer_load_dwordx4 {v(32+4*i,4)}, v4, s[48:51], s43 offen")
    for i in range(CS_DEPTH): csl(i)
    for r in range(8): a(f"v_mov_b32 v{16+r}, 0")
    for i in range(14):
        a(f"s_waitcnt vmcnt({min(13-i,CS_DEPTH-1)})")
        if i+CS_DEPTH<14: csl(i+CS_DEPTH)
        for d_ in range(4):
            a(f"v_lshlrev_b32 v{24+2*d_}, 16, v{32+4*i+d_}")
            a(f"v_and_b32 v{25+2*d_}, 0xffff0000, v{32+4*i+d_}")
        for d_ in range(4):
            a(f"v_pk_add_f32 {v(16+2*d_,2)}, {v(16+2*d_,2)}, {v(24+2*d_,2)}")
    a("v_lshlrev_b32 v6, 9, v3")
    a("v_lshl_add_u32 v6, v5, 5, v6")
    a("ds_write_b128 v6, v[16:19]")
    a("ds_write_b128 v6, v[20:23] offset:16")
    a("s_waitcnt lgkmcnt(0)")
    a("s_barrier")
    a(f"s_cmp_ge_u32 s{SW}, 2")
    a(f"s_cbranch_scc1 {P('end')}")
    a("v_lshlrev_b32 v6, 2, v0")
    for i in range(32):
        a(f"ds_read_b32 v{32+i}, v6 offset:{512*i}")
        if i%8==7: a("s_waitcnt lgkmcnt(0)")
    a("v_mov_b32 v16, 0")
    a("v_mov_b32 v17, 0")
    for i in range(0,32,2):
        a(f"v_pk_add_f32 v[16:17], v[16:17], {v(32+i,2)}")
    a("v_add_f32 v16, v16, v17")
    a(f"s_mul_i32 s42, s37, {F*4}")
    a("s_lshl_b32 s43, s38, 9")
    a("s_add_u32 s42, s42, s43")
    a("buffer_store_dword v16, v6, s[52:55], s42 offen")
    dump(a)
    a.label(P('end'))
    a("s_endpgm")
    return a.text(), kdesc(name,256 if STAMP else 192)

def CH(c): return 16384*c if c<3 else (KVB+16384*(c-3) if c<6 else UB)
MISC=49152
NEARLY=5; NRES=19
def p5_group_addr(n):
    if n<5: return UB+16384+8192*n
    if n<19:
        k=n-5; return CH(k//2)+8192*(k%2)
    return p5_group_addr(n-19)
VW=254; VG=252; VU=253; VL16=251; VL4=250; VRES=240
S_GU=94; S_W1K=95; S_WD=78; S_WDROT=93; S_WOROT=77
SRD_G=80; SRD_U=84; SRD_WD=96
def gu_dma(a, c, m, vm=None):
    a(f"s_add_u32 m0, s{S_W1K}, {CH(c)+8192*m}")
    if m==1: a(f"s_add_u32 s92, s90, {64*3584}")
    else: a("s_nop 0")
    if not NOW:
        a(f"buffer_load_dwordx4 v{VG+m}, s[{SRD_G+4*m}:{SRD_G+3+4*m}], s90 offen lds")
        if vm: vm.issue(("W",c))
    if m==1:
        a("s_cmp_eq_u32 s92, s91")
        a(f"s_cselect_b32 s90, s{S_GU}, s92")
def wd_dma(a, n, vm=None):
    a(f"s_add_u32 m0, s{S_W1K}, {p5_group_addr(n)}")
    a(f"s_add_u32 s92, s79, {64*896}")
    if not NOW:
        a(f"buffer_load_dwordx4 v{VW}, s[{SRD_WD}:{SRD_WD+3}], s79 offen lds")
        if vm: vm.issue(("wd",n))
    a("s_cmp_eq_u32 s92, s75")
    a(f"s_cselect_b32 s79, s{S_WD}, s92")

def kb_phase2(a):
    KB=KVB; VB=KVB+24576
    HD,QB=36,37
    a(f"s_getreg_b32 s{SXC}, hwreg(HW_REG_XCC_ID)")
    a(f"s_lshr_b32 s{HD}, s{SI}, 1")
    a(f"s_and_b32 s38, s{SI}, 1")
    a(f"s_lshl_b32 s{QB}, s{SX}, 1")
    a(f"s_add_u32 s{QB}, s{QB}, s38")
    a(f"s_mul_i32 s40, s{HD}, 7")
    a("s_lshr_b32 s40, s40, 1")
    a(f"s_and_b32 s41, s{HD}, 1")
    a("v_and_b32 v3, 15, v1")
    a("v_lshrrev_b32 v4, 4, v1")
    a("v_lshlrev_b32 v5, 9, v4")
    a("v_lshl_add_u32 v6, v3, 4, v5")
    a("v_and_b32 v7, 1, v4")
    a("v_lshlrev_b32 v7, 3, v7")
    a("v_xor_b32 v7, v7, v3")
    a("v_lshl_add_u32 v7, v7, 4, v5")
    a(f"s_lshl_b32 s42, s{QB}, 3")
    a(f"s_add_u32 s42, s42, s{SW}")
    a("s_lshr_b32 s43, s42, 1")
    a(f"s_mul_i32 s43, s43, {TBS}")
    a("s_and_b32 s44, s42, 1")
    a("s_lshl_b32 s44, s44, 8")
    a("s_add_u32 s43, s43, s44")
    a("s_lshl_b32 s45, s40, 9")
    a("s_add_u32 s46, s43, s45")
    for u in range(3):
        a(f"s_mul_i32 s56, s{SW}, 3")
        a(f"s_add_u32 s56, s56, {u}")
        a(f"s_lshl_b32 s57, s{QB}, 3")
        a("s_add_u32 s57, s57, s56")
        a("s_sub_u32 s57, s57, 16")
        a("s_lshr_b32 s58, s57, 1")
        a(f"s_mul_i32 s58, s58, {TBS}")
        a("s_and_b32 s59, s57, 1")
        a("s_lshl_b32 s59, s59, 8")
        a("s_add_u32 s58, s58, s59")
        a("s_add_u32 s58, s58, s45")
        a("s_cmp_lt_i32 s57, 0")
        a("s_cselect_b32 s58, 0x40000000, s58")
        a(f"s_add_u32 s{66+2*u}, s58, {56*512}")
        a(f"s_add_u32 s{67+2*u}, s58, {112*512}")
    a(f"s_mul_i32 s60, s{SW}, 3072")
    a(f"s_add_u32 s60, s60, {KB}")
    a(f"s_and_b32 s{SXC}, s{SXC}, 15")
    a(f"s_add_u32 s{SXC}, s{SXC}, 1")
    QF=12
    a("s_waitcnt lgkmcnt(0)")
    st(a,"kernarg")
    srd(a,48,PWS,PWS+1,SZ_QA,WS_QA)
    a(f"buffer_load_dwordx4 {v(QF,4)}, v6, s[48:51], s46 offen sc1")
    for u in range(3):
        a(f"s_add_u32 m0, s60, {1024*u}")
        a("s_nop 0")
        a(f"buffer_load_dwordx4 v6, s[48:51], s{66+2*u} offen sc1 lds")
    for u in range(3):
        a(f"s_add_u32 m0, s60, {VB-KB+1024*u}")
        a("s_nop 0")
        a(f"buffer_load_dwordx4 v7, s[48:51], s{67+2*u} offen sc1 lds")
    srd(a,SRD_FLAG,PWS,PWS+1,SZ_FLAG,WS_FLAG)
    a(f"s_lshl_b32 s74, s{SX}, 7")
    a(f"s_lshl_b32 s56, s{SI}, 2")
    a("s_add_u32 s56, s56, s74")
    a(f"s_cmp_eq_u32 s{SW}, 7")
    a("s_cselect_b32 s56, s56, 0x40000000")
    a(f"v_mov_b32 v2, s{SXC}")
    a("v_mov_b32 v8, 0")
    a("s_mov_b64 exec, 1")
    a(f"buffer_store_dword v2, v8, s[{SRD_FLAG}:{SRD_FLAG+3}], s56 offen sc1")
    a("s_mov_b64 exec, -1")
    M0R=16; M16=20
    a("v_lshlrev_b32 v8, 2, v4")
    a(f"v_mov_b32 v9, {NEG}")
    for r in range(4):
        a(f"v_add_u32 v10, {r}, v8")
        a("v_cmp_lt_u32 vcc, v3, v10")
        a("s_nop 1")
        a(f"v_cndmask_b32_e64 v{M0R+r}, v9, 0, vcc")
        a(f"v_cndmask_b32_e64 v{M16+r}, 0, v9, vcc")
    a(f"v_lshlrev_b32 v{VL16}, 4, v1")
    a(f"v_lshlrev_b32 v{VL4}, 2, v1")
    a(f"s_lshl_b32 s{S_W1K}, s{SW}, 10")
    a(f"s_add_u32 s47, s{S_W1K}, {KB}")
    a(f"v_add_u32 v10, s47, v{VL16}")
    a("v_bfe_u32 v24, v1, 2, 2")
    a("v_add_u32 v24, v24, v8")
    a("v_bfe_u32 v25, v1, 1, 1")
    a("v_lshlrev_b32 v26, 3, v25")
    a("v_xor_b32 v24, v24, v26")
    a("v_lshlrev_b32 v24, 4, v24")
    a("v_lshl_add_u32 v24, v25, 8, v24")
    a("v_and_b32 v25, 1, v1")
    a("v_lshl_add_u32 v24, v25, 3, v24")
    a(f"v_add_u32 v24, {VB-KB}, v24")
    a("v_add_u32 v11, s47, v24")
    a("v_lshrrev_b32 v28, 1, v4")
    a("v_lshlrev_b32 v28, 9, v28")
    a("v_lshl_add_u32 v28, v3, 4, v28")
    a("v_and_b32 v29, 1, v4")
    a("v_lshl_add_u32 v28, v29, 3, v28")
    a("v_add_u32 v29, 1024, v28")
    a("v_mov_b32 v30, 0x40000000")
    a("s_cmp_eq_u32 s41, 0")
    a("s_cselect_b32 s62, 64, 0")
    a("s_cselect_b32 s63, 3, 64")
    a("v_cmp_eq_u32 vcc, s62, v4")
    a("s_nop 1")
    a("v_cndmask_b32 v28, v28, v30, vcc")
    a("v_cmp_eq_u32 vcc, s63, v4")
    a("s_nop 1")
    a("v_cndmask_b32 v29, v29, v30, vcc")
    a(f"s_lshl_b32 s61, s{QB}, 4")
    a(f"s_add_u32 s61, s61, s{HD}")
    a("s_lshl_b32 s61, s61, 2")
    a(f"s_add_u32 s61, s61, {F2}")
    a(f"v_lshrrev_b32 v{VW}, 3, v1")
    a(f"v_mul_u32_u24 v150, 3584, v{VW}")
    a(f"v_mul_u32_u24 v{VW}, 896, v{VW}")
    a("v_bfe_u32 v151, v1, 2, 1")
    a("v_bfe_u32 v152, v1, 4, 1")
    a("v_xor_b32 v151, v151, v152")
    a(f"v_lshl_add_u32 v{VW}, v151, 6, v{VW}")
    a("v_and_b32 v151, 3, v1")
    a(f"v_lshl_add_u32 v{VW}, v151, 4, v{VW}")
    a("v_bfe_u32 v151, v1, 1, 2")
    a("v_xor_b32 v151, v151, v152")
    a("v_and_b32 v152, 1, v1")
    a("v_lshl_add_u32 v150, v152, 4, v150")
    a(f"v_lshl_add_u32 v{VG}, v151, 5, v150")
    a("v_xor_b32 v151, 2, v151")
    a(f"v_lshl_add_u32 v{VU}, v151, 5, v150")
    srd(a,SRD_G,PWG,PWG+1,D*F*2)
    srd(a,SRD_U,PWU,PWU+1,D*F*2)
    srd(a,SRD_WD,PWO,PWO+1,D*D*2)
    a(f"s_mul_i32 s{S_GU}, s{SW}, {8*3584}")
    a(f"s_lshl_b32 s56, s{SI}, 7")
    a(f"s_add_u32 s{S_GU}, s{S_GU}, s56")
    a(f"s_mul_i32 s{S_WD}, s{SW}, {8*896}")
    a("s_lshl_b32 s56, s89, 7")
    a(f"s_add_u32 s{S_WD}, s{S_WD}, s56")
    a(f"s_lshl_b32 s56, s92, 1")
    if ROTB: rot_idx(a,S_WOROT,"s56",89,7)
    else: a(f"s_mov_b32 s{S_WOROT}, s56")
    a("s_mul_i32 s56, s92, 7")
    a("s_lshl_b32 s57, s89, 2")
    if ROTB: rot_idx(a,S_WDROT,"s56",57,28)
    else: a(f"s_mov_b32 s{S_WDROT}, s56")
    a(f"s_cmp_ge_u32 s{SI}, 28")
    a(f"s_cselect_b32 s{S_GU}, 0x40000000, s{S_GU}")
    a(f"s_cselect_b32 s{S_WD}, 0x40000000, s{S_WD}")
    a(f"s_mul_i32 s90, s89, {64*3584 if ROT4 else 0}")
    a(f"s_add_u32 s90, s90, s{S_GU}")
    a(f"s_add_u32 s91, s{S_GU}, {7*64*3584}")
    a(f"s_mul_i32 s79, s{S_WOROT}, {64*896}")
    a(f"s_add_u32 s79, s79, s{S_WD}")
    a(f"s_add_u32 s75, s{S_WD}, {7*64*896}")
    a(f"s_and_b32 s56, s{SW}, 3")
    a(f"s_lshr_b32 s57, s{SW}, 2")
    a("s_lshl_b32 s58, s88, 1")
    a("s_add_u32 s58, s58, s57")
    a(f"s_mul_i32 s58, s58, {32*896}")
    a("s_lshl_b32 s59, s89, 7")
    a("s_add_u32 s58, s58, s59")
    a("s_lshl_b32 s59, s56, 5")
    a("s_add_u32 s73, s58, s59")
    a(f"s_cmp_ge_u32 s{SI}, 28")
    a("s_cselect_b32 s73, 0x40000000, s73")
    a("v_and_b32 v150, 31, v1")
    a("v_mul_u32_u24 v150, 896, v150")
    a("v_lshrrev_b32 v151, 5, v1")
    a("v_lshl_add_u32 v249, v151, 4, v150")
    srd(a,56,PX,PX+1,S*D*2)
    a("s_waitcnt vmcnt(7)")
    a("s_cmp_eq_u32 s41, 0")
    a(f"s_cbranch_scc0 {P('p2_odd')}")
    a("v_cmp_gt_u32 vcc, 48, v1")
    a("s_nop 1")
    a(f"v_cndmask_b32 v{QF+2}, 0, v{QF+2}, vcc")
    a(f"v_cndmask_b32 v{QF+3}, 0, v{QF+3}, vcc")
    a(f"s_branch {P('p2_qd')}")
    a.label(P('p2_odd'))
    a("v_cmp_le_u32 vcc, 16, v1")
    a("s_nop 1")
    a(f"v_cndmask_b32 v{QF+0}, 0, v{QF+0}, vcc")
    a(f"v_cndmask_b32 v{QF+1}, 0, v{QF+1}, vcc")
    a.label(P('p2_qd'))
    st(a,"setup")
    a("s_waitcnt vmcnt(1)")
    a("s_barrier")
    st(a,"kv")
    def wo_dma(n):
        a(f"s_add_u32 m0, s{S_W1K}, {UB+8192*n}")
        a(f"s_add_u32 s92, s79, {64*896}")
        if not NOW: a(f"buffer_load_dwordx4 v{VW}, s[{SRD_WD}:{SRD_WD+3}], s79 offen lds")
        a("s_cmp_eq_u32 s92, s75")
        a(f"s_cselect_b32 s79, s{S_WD}, s92")
    pf=[lambda n=n: wo_dma(n) for n in range(7)]
    pf+=[lambda: a(f"buffer_load_dwordx4 {v(VRES,4)}, v249, s[56:59], s73 offen")]
    pf+=[lambda k=k: gu_dma(a,k//2,k%2) for k in range(2*P2_CH)]
    def htouch():
        srd(a,68,PWS,PWS+1,SZ_H,WS_H)
        a(f"s_lshr_b32 s66, s{SW}, 2")
        a("s_lshl_b32 s67, s88, 1")
        a("s_add_u32 s66, s66, s67")
        a(f"s_mul_i32 s67, s66, {56*512}")
        a("s_lshl_b32 s72, s89, 12")
        a("s_add_u32 s67, s67, s72")
        a(f"s_and_b32 s72, s{SW}, 3")
        a("s_lshl_b32 s72, s72, 10")
        a("s_add_u32 s67, s67, s72")
        a(f"s_cmp_ge_u32 s{SI}, 28")
        a("s_cselect_b32 s67, 0x40000000, s67")
        a(f"buffer_load_dwordx4 v[144:147], v{VL16}, s[68:71], s67 offen sc1")
        srd(a,68,PWS,PWS+1,SZ_ST2,WS_ST2)
        a(f"s_mul_i32 s67, s89, {S*8}")
        a("s_lshl_b32 s66, s66, 8")
        a("s_add_u32 s67, s67, s66")
        a(f"buffer_load_dword v148, v{VL4}, s[68:71], s67 offen sc1")
    if TOUCH: htouch()
    def csdma():
        srd(a,68,PWS,PWS+1,SZ_CS,WS_CS)
        a(f"s_mul_i32 s66, s{SW}, {F*4}")
        a(f"s_lshl_b32 s67, s{SI}, 8")
        a("s_add_u32 s66, s66, s67")
        a(f"s_min_u32 s67, s{SW}, 2")
        a("s_lshl_b32 s67, s67, 8")
        a(f"s_add_u32 m0, s67, {MISC}")
        a("s_nop 0")
        a(f"buffer_load_dword v{VL4}, s[68:71], s66 offen lds")
    csdma()
    SR=32; KF=100; NB=6
    for t in range(NB):
        a(f"ds_read_b128 {v(KF+4*(t%NB),4)}, v10 offset:{1024*t}")
    for t in range(17):
        outstanding=min(17,t+NB)-t-1
        a(f"s_waitcnt lgkmcnt({outstanding})")
        cin = v(M0R,4) if t==0 else (v(M16,4) if t==16 else "0")
        a(f"v_mfma_f32_16x16x32_bf16 {v(SR+4*t,4)}, {v(KF+4*(t%NB),4)}, {v(QF,4)}, {cin}")
        if t+NB<17:
            a(f"ds_read_b128 {v(KF+4*(t%NB),4)}, v10 offset:{1024*(t+NB)}")
        if t%3==2 and pf: pf.pop(0)()
    VF=100
    def vread(j):
        b=VF+8*(j%3)
        for dt in range(2):
            a(f"ds_read_b64_tr_b16 {v(b+4*dt,2)}, v11 offset:{1024*(2*j)+512*dt}")
            if 2*j+1<17:
                a(f"ds_read_b64_tr_b16 {v(b+4*dt+2,2)}, v11 offset:{1024*(2*j+1)+512*dt}")
    vread(0); vread(1); vread(2)
    a("s_cmp_ge_u32 s42, 16")
    a(f"s_cbranch_scc1 {P('p2_nomask')}")
    a("s_sub_u32 s63, 16, s42")
    for t in range(16):
        a(f"s_cmp_le_u32 s63, {t}")
        a(f"s_cbranch_scc1 {P('p2_nomask')}")
        for r in range(4): a(f"v_mov_b32 v{SR+4*t+r}, v9")
    a.label(P('p2_nomask'))
    st(a,"qk")
    a(f"v_max3_f32 v24, v{SR}, v{SR+1}, v{SR+2}")
    a(f"v_max3_f32 v25, v{SR+3}, v{SR+4}, v{SR+5}")
    i=6; k=0
    while i+1<68:
        a(f"v_max3_f32 v{24+k}, v{24+k}, v{SR+i}, v{SR+i+1}")
        i+=2; k^=1
    a("v_max_f32 v24, v24, v25")
    a("v_mov_b32 v25, v24")
    a("s_nop 1")
    a("v_permlane32_swap_b32 v24, v25")
    a("v_max_f32 v24, v24, v25")
    a("v_mov_b32 v25, v24")
    a("s_nop 1")
    a("v_permlane16_swap_b32 v24, v25")
    a("v_max_f32 v24, v24, v25")
    a("v_mov_b32 v25, v24")
    a("v_mov_b32 v26, 0\nv_mov_b32 v27, 0")
    O0=124; O1=128; PP=132
    after_id=[0]
    for j in range(9):
        nt = 2 if 2*j+1<17 else 1
        pb=PP+4*(j%2)
        regs=[SR+8*j+r for r in range(4*nt)]
        for r in regs[::2]: a(f"v_pk_add_f32 {v(r,2)}, {v(r,2)}, v[24:25] neg_lo:[0,1] neg_hi:[0,1]")
        for r in regs: a(f"v_exp_f32 v{r}, v{r}")
        if pf:
            pf.pop(0)()
            if j>4: after_id[0]+=1
        else: a("s_nop 0")
        for q,r in enumerate(regs[::2]):
            a(f"v_cvt_pk_bf16_f32 v{pb+q}, v{r}, v{r+1}")
        for r in regs[::2]: a(f"v_pk_add_f32 v[26:27], v[26:27], {v(r,2)}")
        rem=0
        for jj in range(j+1,min(9,j+3)):
            rem += 4 if 2*jj+1<17 else 2
        a(f"s_waitcnt lgkmcnt({rem})")
        b=VF+8*(j%3)
        c0 = "0" if j==0 else v(O0,4)
        c1 = "0" if j==0 else v(O1,4)
        if nt==2:
            a(f"v_mfma_f32_16x16x32_bf16 {v(O0,4)}, {v(b,4)}, {v(pb,4)}, {c0}")
            a(f"v_mfma_f32_16x16x32_bf16 {v(O1,4)}, {v(b+4,4)}, {v(pb,4)}, {c1}")
        else:
            a(f"v_mfma_f32_16x16x16_bf16 {v(O0,4)}, {v(b,2)}, {v(pb,2)}, {c0}")
            a(f"v_mfma_f32_16x16x16_bf16 {v(O1,4)}, {v(b+4,2)}, {v(pb,2)}, {c1}")
        if j+3<9: vread(j+3)
        if j==4:
            a(f"buffer_load_dword v31, v{VL4}, s[{SRD_FLAG}:{SRD_FLAG+3}], s74 offen sc1")
    while pf: pf.pop(0)(); after_id[0]+=1
    a("v_add_f32 v26, v26, v27")
    a("v_mov_b32 v27, v26")
    a("s_nop 1")
    a("v_permlane32_swap_b32 v26, v27")
    a("v_add_f32 v26, v26, v27")
    a("v_mov_b32 v27, v26")
    a("s_nop 1")
    a("v_permlane16_swap_b32 v26, v27")
    a("v_add_f32 v26, v26, v27")
    a("v_rcp_f32 v26, v26")
    a("s_nop 0")
    for r in range(8): a(f"v_mul_f32 v{O0+r}, v26, v{O0+r}")
    for r in range(4): a(f"v_cvt_pk_bf16_f32 v{PP+r}, v{O0+2*r}, v{O0+2*r+1}")
    a(f"s_waitcnt vmcnt({0 if NOW else after_id[0]})")
    a("v_cmp_eq_u32 vcc, 0, v31")
    a("s_nop 3")
    a("s_cmp_eq_u32 vcc_lo, 0")
    a(f"s_cbranch_scc1 {P('idok')}")
    spin(a,VL4,"s74",-1,0,"wid",vd=31)
    a.label(P('idok'))
    a(f"v_cmp_ne_u32 vcc, s{SXC}, v31")
    a("s_nop 3")
    a("s_cmp_eq_u32 vcc_lo, 0")
    a(f"s_cselect_b32 s{SMODE}, {0 if FORCE_SLOW else 1}, 0")
    hstore(a,[f"buffer_store_dwordx2 {v(PP,2)}, v28, s[48:51], s46 offen",
              f"buffer_store_dwordx2 {v(PP+2,2)}, v29, s[48:51], s46 offen"])
    signal(a,61,"s2")
    a(f"s_cmp_lg_u32 s{SW}, 2")
    a(f"s_cbranch_scc1 {P('nofn')}")
    a(f"s_lshl_b32 s61, s{SI}, 2")
    a("s_add_u32 s61, s61, s74")
    a(f"s_add_u32 s61, s61, {FN}")
    a("v_mov_b32 v2, 1")
    a("v_mov_b32 v3, 0")
    a("s_mov_b64 exec, 1")
    a(f"buffer_store_dword v2, v3, s[{SRD_FLAG}:{SRD_FLAG+3}], s61 offen sc1")
    a("s_mov_b64 exec, -1")
    a.label(P('nofn'))
    a(f"s_cmp_ge_u32 s{SI}, 28")
    a(f"s_cbranch_scc1 {P('spare2')}")

def kb_phase35(a, mode):
    k3=(mode==3); tag=f"p{mode}"
    KD=D if k3 else F
    NST=KD//64
    vm=Cnt(a,"vmcnt"); lg=Cnt(a,"lgkmcnt")
    KS,TG=36,37
    a(f"s_and_b32 s{KS}, s{SW}, 3")
    a(f"s_lshr_b32 s{TG}, s{SW}, 2")
    a(f"s_lshr_b32 s38, s{KS}, 1")
    a(f"s_and_b32 s39, s{KS}, 1")
    a("v_lshrrev_b32 v4, 5, v1")
    a("v_bfe_u32 v5, v1, 2, 2")
    a("v_lshl_add_u32 v8, v4, 3, v5")
    a("v_lshlrev_b32 v8, 7, v8")
    a("v_lshrrev_b32 v5, 1, v5")
    a("v_xor_b32 v5, s38, v5")
    a("v_lshl_add_u32 v8, v5, 6, v8")
    a("v_bfe_u32 v5, v1, 4, 1")
    a("v_xor_b32 v5, s39, v5")
    a("v_lshl_add_u32 v8, v5, 5, v8")
    a("v_and_b32 v5, 1, v1")
    a("v_lshl_add_u32 v8, v5, 4, v8")
    a("v_bfe_u32 v5, v1, 1, 1")
    a("v_lshl_add_u32 v8, v5, 3, v8")
    a(f"s_lshl_b32 s40, s{KS}, 11")
    a("v_add_u32 v8, s40, v8")
    a("v_xor_b32 v9, 64, v8")
    a("v_add_u32 v10, 0x10000, v8")
    a("v_add_u32 v11, 0x10000, v9")
    if not k3:
        a("v_add_u32 v12, 0x20000, v8")
        a("v_add_u32 v13, 0x20000, v9")
    if k3:
        srd(a,56,PWS,PWS+1,SZ_H,WS_H)
        srd(a,60,PWS,PWS+1,SZ_ST2,WS_ST2)
    else:
        srd(a,48,PWS,PWS+1,SZ_QA,WS_QA)
        srd(a,52,PWS,PWS+1,SZ_H,WS_H)
        srd(a,56,POUT,POUT+1,S*D*2)
    a("s_lshl_b32 s40, s88, 1")
    a(f"s_add_u32 s40, s40, s{TG}")
    a(f"s_mul_i32 s41, s40, {TBS}")
    a(f"s_lshl_b32 s42, s{KS}, 10")
    a("s_add_u32 s41, s41, s42")
    a(f"s_add_u32 s43, s41, {NST*4096}")
    a(f"s_lshl_b32 s42, s{S_WOROT if k3 else S_WDROT}, 12")
    a("s_add_u32 s42, s42, s41")
    a(f"s_mul_i32 s45, s40, {56*512}")
    a("s_lshl_b32 s46, s89, 12")
    a("s_add_u32 s45, s45, s46")
    a(f"s_lshl_b32 s46, s{KS}, 10")
    a("s_add_u32 s45, s45, s46")
    if k3: b0,b1=KVB,KVB+24576
    else: b0,b1=KVB,KVB+24576
    a(f"s_mul_i32 s46, s{TG}, {b1-b0}")
    a(f"s_add_u32 s46, s46, {b0}")
    a(f"s_mul_i32 s47, s{KS}, 6144")
    a("s_add_u32 s47, s47, s46")
    a(f"v_add_u32 v24, s47, v{VL16}")
    for j in (1,2,3):
        a(f"s_xor_b32 s47, s{KS}, {j}")
        a("s_mul_i32 s47, s47, 6144")
        a("s_add_u32 s47, s47, s46")
        a(f"v_add_u32 v{24+j}, s47, v{VL16}")
    RES=VRES if k3 else 16; ACC=32; AF=64; BF=96
    RB_=28 if not k3 else 7
    if k3:
        a(f"s_mul_i32 s44, s89, {S*8}")
        a(f"s_lshl_b32 s47, s{SW}, 9")
        a(f"s_add_u32 s47, s47, {MISC+1024}")
        a("v_lshlrev_b32 v28, 3, v1")
        a("v_add_u32 v28, s47, v28")
        a(f"s_lshl_b32 s47, s{TG}, 11")
        a(f"s_add_u32 s47, s47, {MISC+1024}")
        a("v_and_b32 v29, 31, v1")
        a("v_lshlrev_b32 v29, 3, v29")
        a("v_add_u32 v29, s47, v29")
        a("s_lshl_b32 s47, s40, 8")
        a("s_add_u32 s44, s44, s47")
        a("v_lshlrev_b32 v14, 3, v1")
        a("v_mov_b32 v15, 0x40000000")
        a("v_cmp_gt_u32 vcc, 32, v1")
        a("s_nop 1")
        a("v_cndmask_b32 v14, v15, v14, vcc")
        a("s_lshr_b32 s72, s88, 2")
        a("s_lshl_b32 s72, s72, 7")
        a(f"s_lshl_b32 s47, s{SI}, 2")
        a("s_add_u32 s72, s72, s47")
        a(f"s_add_u32 s72, s72, {F3}")
        a("s_lshr_b32 s46, s88, 1")
        a("s_lshl_b32 s46, s46, 6")
        a(f"s_add_u32 s46, s46, {F2}")
        a("s_mov_b32 s47, 0xffff0000")
        poll(a,VL4,"s46",0xffff,0,"w2")
    else:
        a(f"buffer_load_dwordx4 {v(RES,4)}, v{VL16}, s[52:55], s45 offen"); vm.issue("res")
        a(f"s_add_u32 s46, s74, {F4}")
        a("s_mov_b32 s47, 0xffff0000")
        poll(a,VL4,"s46",0x0fffffff,0,"w4")
    def bload(n):
        a("s_add_u32 s46, s42, 4096")
        a(f"buffer_load_dwordx4 {v(BF+4*(n%RB_),4)}, v{VL16}, s[48:51], s42 offen sc1"); vm.issue(("B",n))
        a("s_cmp_eq_u32 s46, s43")
        a("s_cselect_b32 s42, s41, s46")
    def aread(n):
        ga = UB+8192*n if k3 else p5_group_addr(n)
        hi=ga>>16; o=ga&0xffff
        r0=8+2*hi
        b=AF+8*(n%2)
        for sl in range(2):
            a(f"ds_read_b64_tr_b16 {v(b+4*sl,2)}, v{r0+sl} offset:{o}"); lg.issue(("A",n))
            a(f"ds_read_b64_tr_b16 {v(b+4*sl+2,2)}, v{r0+sl} offset:{o+512}"); lg.issue(("A",n))
    LA0=7 if k3 else E('P5_LA0',4)
    for n in range(LA0): bload(n)
    nb=LA0
    if k3:
        for c in range(P2_CH,3):
            for m in range(2): gu_dma(a,c,m,vm)
    aread(0)
    pend=[]
    NB1=15; NB2=NRES
    for n in range(NST):
        if n+1<NST:
            if not k3 and n+1==NB1:
                vm.wait(("wd",NRES-1)); a("s_barrier")
            if not k3 and n+1==NB2:
                vm.wait(("wd",27)); a("s_barrier")
            aread(n+1)
        vm.wait(("B",n)); lg.wait(("A",n))
        for sl in range(2):
            cin="0" if n==0 else v(ACC+16*sl,16)
            a(f"v_mfma_f32_32x32x16_bf16 {v(ACC+16*sl,16)}, {v(AF+8*(n%2)+4*sl,4)}, {v(BF+4*(n%RB_),4)}, {cin}")
        for _ in range(E('P5_BPS',2)):
            if nb<NST and nb-n<=E('P5_LAM',10): bload(nb); nb+=1
        if STAMP and n in (0,8,18): lg.waitall(); st(a,f"{tag}_n{n}")
        if not k3:
            if n==3: pend=list(range(NB1,NRES))
            if n==8:
                a("s_barrier")
                pend+=list(range(NRES,28))
            for _ in range(1 if n<8 else 2):
                if pend: wd_dma(a,pend.pop(0),vm)
    st(a,tag+"_mfma")
    a("s_nop 7")
    a("s_nop 3")
    for j in (1,2,3):
        for q in range(2): a(f"ds_write_b128 v24, {v(ACC+8*j+4*q,4)} offset:{(j-1)*2048+q*1024}")
    vm.wait("res")
    UBr=AF
    for d_ in range(4):
        a(f"v_lshlrev_b32 v{UBr+2*d_}, 16, v{RES+d_}")
        a(f"v_and_b32 v{UBr+2*d_+1}, s47, v{RES+d_}")
    for d_ in range(4):
        a(f"v_pk_add_f32 {v(ACC+2*d_,2)}, {v(ACC+2*d_,2)}, {v(UBr+2*d_,2)}")
    a("s_waitcnt lgkmcnt(0)")
    a("s_barrier")
    st(a,tag+"_red")
    PR=BF
    for j in (1,2,3):
        for q in range(2): a(f"ds_read_b128 {v(PR+8*j+4*q,4)}, v{24+j} offset:{(j-1)*2048+q*1024}")
    for j in (1,2,3):
        a(f"s_waitcnt lgkmcnt({2*(3-j)})")
        for d_ in range(4):
            a(f"v_pk_add_f32 {v(ACC+2*d_,2)}, {v(ACC+2*d_,2)}, {v(PR+8*j+2*d_,2)}")
    OB=16
    for d_ in range(4): a(f"v_cvt_pk_bf16_f32 v{OB+d_}, v{ACC+2*d_}, v{ACC+2*d_+1}")
    if k3:
        hstore(a,[f"buffer_store_dwordx4 {v(OB,4)}, v{VL16}, s[56:59], s45 offen"])
        a("v_mov_b32 v22, 0x3f803f80")
        a("v_mov_b32 v20, 0")
        a("v_mov_b32 v21, 0")
        for d_ in range(4):
            a(f"v_dot2c_f32_bf16 v20, v{OB+d_}, v22")
            a(f"v_dot2c_f32_bf16 v21, v{OB+d_}, v{OB+d_}")
        a("s_nop 2")
        a("ds_write_b64 v28, v[20:21]")
        a("s_waitcnt lgkmcnt(0)")
        a("s_barrier")
        a(f"s_cmp_lg_u32 s{KS}, 0")
        a(f"s_cbranch_scc1 {P('p3_nost')}")
        for q in range(8): a(f"ds_read_b64 {v(32+2*q,2)}, v29 offset:{256*q}")
        a("s_waitcnt lgkmcnt(0)")
        for q in (0,2,4,6): a(f"v_pk_add_f32 {v(32+2*q,2)}, {v(32+2*q,2)}, {v(34+2*q,2)}")
        a("v_pk_add_f32 v[32:33], v[32:33], v[36:37]")
        a("v_pk_add_f32 v[40:41], v[40:41], v[44:45]")
        a("v_pk_add_f32 v[32:33], v[32:33], v[40:41]")
        hstore(a,[f"buffer_store_dwordx2 v[32:33], v14, s[60:63], s44 offen"])
        a.label(P('p3_nost'))
        signal(a,72,"s3")
    else:
        a(f"buffer_store_dwordx4 {v(OB,4)}, v249, s[56:59], s73 offen")

def kb_phase4(a):
    vm=Cnt(a,"vmcnt"); lg=Cnt(a,"lgkmcnt")
    for m in range(2): gu_dma(a,3,m)
    srd(a,SRD_WD,PWD,PWD+1,F*D*2)
    a(f"s_mul_i32 s79, s{S_WDROT}, {64*896}")
    a(f"s_add_u32 s79, s79, s{S_WD}")
    a(f"s_add_u32 s75, s{S_WD}, {28*64*896}")
    a("v_lshrrev_b32 v4, 5, v1")
    a("v_bfe_u32 v5, v1, 2, 2")
    a("v_lshl_add_u32 v9, v4, 3, v5")
    a("v_lshlrev_b32 v9, 7, v9")
    a("v_bfe_u32 v10, v1, 4, 1")
    a("v_and_b32 v11, 1, v1")
    a("v_lshl_add_u32 v9, v11, 4, v9")
    a("v_bfe_u32 v11, v1, 1, 1")
    a("v_lshl_add_u32 v9, v11, 3, v9")
    a("v_lshrrev_b32 v5, 1, v5")
    a("v_lshl_add_u32 v5, v10, 1, v5")
    a("v_lshl_add_u32 v9, v5, 5, v9")
    a("v_lshl_add_u32 v12, v10, 13, v9")
    for t in range(1,4): a(f"v_xor_b32 v{12+t}, {32*t}, v12")
    a(f"v_add_u32 v25, {KVB}, v12")
    a("v_xor_b32 v26, 32, v25")
    a("v_xor_b32 v27, 64, v25")
    a("v_xor_b32 v29, 96, v25")
    a("v_and_b32 v17, 31, v1")
    a("v_lshlrev_b32 v17, 3, v17")
    a(f"v_mul_u32_u24 v16, {S*8}, v4")
    a("v_add_u32 v17, v17, v16")
    a("v_lshlrev_b32 v28, 5, v4")
    a(f"s_lshl_b32 s56, s{SX}, 3")
    a(f"s_add_u32 s56, s56, s{SW}")
    a(f"s_mul_i32 s57, s56, {28*1024}")
    a(f"s_add_u32 s54, s57, {7*4096}")
    a(f"s_mul_i32 s55, s89, {4096 if ROT4 else 0}")
    a("s_add_u32 s55, s55, s57")
    a("s_lshl_b32 s58, s56, 8")
    a(f"s_mul_i32 s59, s56, {112*1024}")
    a(f"s_lshl_b32 s60, s{SI}, 12")
    a("s_add_u32 s59, s59, s60")
    a(f"s_lshl_b32 s60, s{SI}, 8")
    a(f"s_add_u32 s61, s60, {F*4}")
    srd(a,36,PWS,PWS+1,SZ_H,WS_H)
    srd(a,40,PWS,PWS+1,SZ_QA,WS_QA)
    srd(a,44,PWS,PWS+1,SZ_ST2,WS_ST2)
    srd(a,48,PWS,PWS+1,SZ_CS,WS_CS)
    a(f"s_lshl_b32 s72, s{SI}, 2")
    a("s_add_u32 s72, s72, s74")
    a(f"s_add_u32 s72, s72, {F4}")
    a(f"s_add_u32 s62, s74, {F3}")
    a(f"v_mul_u32_u24 v16, {FN-F3}, v4")
    a(f"v_add_u32 v16, v16, v{VL4}")
    a(f"s_cmp_eq_u32 s{SX}, 7")
    a("s_cselect_b32 s63, 0, -1")
    poll(a,16,"s62",0x0fffffff,"s63","w3")
    BFR=64; ACC=176; AF=32; STR=240
    def hb(c,s_):
        def f():
            if s_==0 and c>0:
                a("s_add_u32 s55, s55, 4096")
                a("s_cmp_eq_u32 s55, s54")
                a("s_cselect_b32 s55, s57, s55")
            a(f"buffer_load_dwordx4 {v(BFR+16*c+4*s_,4)}, v{VL16}, s[36:39], s55 offen offset:{1024*s_}"); vm.issue(("h",c,s_))
        return f
    hq=[hb(c,s_) for c in range(7) for s_ in range(4)]
    NPRE=E('P4_NPRE',6)
    for f in hq[:NPRE]: f()
    steps=[(c,s_,t) for c in range(5) for s_ in range(4) for t in range(4)]
    steps+=[(c,s_,t) for t in range(4) for c in (5,6) for s_ in range(4)]
    NS=len(steps); PF=6
    def rd(i):
        c,s_,t=steps[i]
        b=AF+4*(i%8); o=CH(c)+s_*2048
        ar=12+t
        if o>=KVB: o-=KVB; ar=(25,26,27,29)[t]
        a(f"ds_read_b64_tr_b16 {v(b,2)}, v{ar} offset:{o}"); lg.issue(("A",i))
        a(f"ds_read_b64_tr_b16 {v(b+2,2)}, v{ar} offset:{o+512}"); lg.issue(("A",i))
    fill={i:[] for i in range(NS)}
    HSP=float(os.environ.get('P4_HSP','3'))
    for k,f in enumerate(hq[NPRE:]): fill[int(1+HSP*k)].append(f)
    for sl in range(4):
        def f(sl=sl):
            a(f"s_add_u32 s62, s58, {sl*2*S*8}")
            a(f"buffer_load_dwordx2 {v(STR+2*sl,2)}, v17, s[44:47], s62 offen"); vm.issue("st")
        fill[2+3*sl].append(f)
    for k in range(6): fill[3+6*k].append(lambda k=k: gu_dma(a,4+k//2,k%2,vm))
    def atouch():
        a("v_and_b32 v30, 31, v1")
        a("v_lshlrev_b32 v30, 7, v30")
        a(f"s_cmp_ge_u32 s{SI}, 21")
        a("s_cselect_b32 s62, s59, 0x40000000")
        a("buffer_load_dword v31, v30, s[40:43], s62 offen sc1"); vm.issue("t")
    if TOUCH: fill[E('P4_AT',36)].append(atouch)
    def stats_math():
        vm.wait("st")
        for sl in range(1,4):
            a(f"v_add_f32 v{STR}, v{STR}, v{STR+2*sl}")
            a(f"v_add_f32 v{STR+1}, v{STR+1}, v{STR+2*sl+1}")
        a(f"v_mov_b32 v18, v{STR}")
        a(f"v_mov_b32 v19, v{STR+1}")
        a("s_nop 1")
        a(f"v_permlane32_swap_b32 v18, v{STR}")
        a(f"v_permlane32_swap_b32 v19, v{STR+1}")
        a(f"v_add_f32 v18, v18, v{STR}")
        a(f"v_add_f32 v19, v19, v{STR+1}")
        a(f"v_mul_f32 v18, {f32bits(1.0/D)}, v18")
        a(f"v_mul_f32 v19, {f32bits(1.0/D)}, v19")
        a("v_fma_f32 v19, -v18, v18, v19")
        a("v_max_f32 v19, 0, v19")
        a(f"v_add_f32 v24, {f32bits(1e-5)}, v19")
        a("v_rsq_f32 v20, v24")
        a("v_sub_f32 v22, 0, v18")
        a(f"v_mul_f32 v20, {f32bits(-LOG2E)}, v20")
    fill[40].append(stats_math)
    def rdcs(t):
        CS=64+16*t
        for q,o in enumerate((64*t,64*t+16,256+64*t,256+64*t+16)):
            a(f"ds_read_b128 {v(CS+4*q,4)}, v28 offset:{MISC+o}"); lg.issue(("cs",t))
    for t in range(4): fill[70+2*t].append(lambda t=t: rdcs(t))
    for n in range(NEARLY): fill[42+6*n].append(lambda n=n: wd_dma(a,n,vm))
    def epi_ops(t):
        CS=64+16*t; T0=CS; OB=CS+8
        A0=ACC+16*t
        ops=[]
        ops.append(lambda: a("s_nop 3"))
        for r in range(8): ops.append(lambda r=r: a(f"v_fmac_f32 v{A0+r}, v22, v{CS+r}"))
        for r in range(8): ops.append(lambda r=r: a(f"v_mul_f32 v{T0+r}, v20, v{A0+r}"))
        for r in range(8):
            ops.append(lambda r=r: a(f"v_exp_f32 v{T0+r}, v{T0+r}"))
            ops.append(lambda r=r: a(f"v_fmac_f32 v{A0+8+r}, v22, v{CS+8+r}"))
        for r in range(8): ops.append(lambda r=r: a(f"v_fma_f32 v{T0+r}, v{T0+r}, v24, v24"))
        for r in range(8):
            ops.append(lambda r=r: a(f"v_rcp_f32 v{T0+r}, v{T0+r}"))
            ops.append(lambda r=r: a(f"v_mul_f32 v{A0+r}, v{A0+r}, v{A0+8+r}"))
        for r in range(8): ops.append(lambda r=r: a(f"v_mul_f32 v{A0+r}, v{A0+r}, v{T0+r}"))
        for p in range(4): ops.append(lambda p=p: a(f"v_cvt_pk_bf16_f32 v{OB+p}, v{A0+2*p}, v{A0+2*p+1}"))
        def stv():
            hstore(a,[f"buffer_store_dwordx4 {v(OB,4)}, v{VL16}, s[40:43], s59 offen offset:{1024*t}"]); vm.issue("out")
        ops.append(stv)
        return ops
    tail_ops=[]
    for t in range(4):
        ops=epi_ops(t)
        base=80+8*t
        if t<3:
            nb=base+8
            per=-(-len(ops)//7)
            for k,f in enumerate(ops): fill[nb+1+k//per].append(f)
        else: tail_ops=ops
    fill[80].insert(0,lambda: a("s_barrier"))
    for n in range(NEARLY,15): fill[81+(n-NEARLY)].append(lambda n=n: wd_dma(a,n,vm))
    for i in range(PF): rd(i)
    landed=2
    for i in range(NS):
        c,s_,t=steps[i]
        vm.wait(("h",c,s_))
        lg.wait(("A",i))
        cin="0" if (c==0 and s_==0) else v(ACC+16*t,16)
        a(f"v_mfma_f32_32x32x16_bf16 {v(ACC+16*t,16)}, {v(AF+4*(i%8),4)}, {v(BFR+16*c+4*s_,4)}, {cin}")
        for f in fill[i]: f()
        if i+PF<NS:
            nc=steps[i+PF][0]
            if nc>landed:
                tgt = nc if nc<5 else 6
                vm.wait(("W",tgt)); a("s_barrier"); landed=tgt
            rd(i+PF)
        if STAMP and i in (0,15,31,47,63,79,95,111): lg.waitall(); st(a,f"p4_i{i}")
    a("s_nop 7")
    a("s_nop 1")
    for f in tail_ops: f()
    signal(a,72,"s4")

def gen_kb(name):
    KN[0]="kb"
    a=Asm(); prologue(a,name)
    kb_phase2(a)
    a("s_memrealtime s[64:65]")
    a("s_waitcnt lgkmcnt(0)")
    a("v_writelane_b32 v248, s64, 3")
    kb_phase35(a,3)
    a("s_memrealtime s[64:65]")
    a("s_waitcnt lgkmcnt(0)")
    a("v_writelane_b32 v248, s64, 4")
    kb_phase4(a)
    a("s_memrealtime s[64:65]")
    a("s_waitcnt lgkmcnt(0)")
    a("v_writelane_b32 v248, s64, 5")
    kb_phase35(a,5)
    a("s_waitcnt vmcnt(0)")
    a("s_memrealtime s[64:65]")
    a("s_waitcnt lgkmcnt(0)")
    a("v_writelane_b32 v248, s64, 6")
    a("s_cmp_lg_u32 s2, 0")
    a(f"s_cbranch_scc1 {P('end')}")
    a(f"s_cmp_lg_u32 s{SW}, 0")
    a(f"s_cbranch_scc1 {P('end')}")
    srd(a,48,PWS,PWS+1,256,WS_DBG)
    srd(a,52,PDBG,PDBG+1,256)
    a("v_mov_b32 v4, 0")
    a("buffer_load_dwordx2 v[2:3], v4, s[48:51], 0 offen")
    a("v_writelane_b32 v248, s34, 2")
    a("s_waitcnt vmcnt(0)")
    a("v_readfirstlane_b32 s36, v2")
    a("v_readfirstlane_b32 s37, v3")
    a("s_nop 3")
    a.label(P('pad'))
    a("s_memrealtime s[98:99]")
    a("s_waitcnt lgkmcnt(0)")
    a("s_sub_u32 s98, s98, s36")
    a(f"s_cmp_lt_u32 s98, {E('PADT',0)}")
    a(f"s_cbranch_scc1 {P('pad')}")
    a("v_writelane_b32 v248, s36, 0")
    a("v_writelane_b32 v248, s37, 1")
    a("v_subrev_u32 v5, s36, v248")
    a(f"buffer_store_dword v5, v{VL4}, s[52:55], 0 offen")
    a.label(P('end'))
    a("s_endpgm")
    a.label(P('spare2'))
    if SP_TOUCH:
        a("v_lshlrev_b32 v9, 7, v1")
        a(f"s_sub_u32 s36, s{SI}, 28")
        a("s_lshl_b32 s36, s36, 3")
        a(f"s_add_u32 s36, s36, s{SW}")
        a("s_bitcmp1_b32 s36, 0")
        a(f"s_cselect_b32 s{SRD_G}, s{SRD_U}, s{SRD_G}")
        a(f"s_cselect_b32 s{SRD_G+1}, s{SRD_U+1}, s{SRD_G+1}")
        a("s_lshr_b32 s37, s36, 1")
        a("s_lshl_b32 s37, s37, 13")
        q0=256*3584//8192
        for i in range(6):
            a(f"s_add_u32 s38, s37, {(q0+16*i)*8192}")
            a(f"buffer_load_dword v{30+i}, v9, s[{SRD_G}:{SRD_G+3}], s38 offen")
        srd(a,SRD_WD,PWD,PWD+1,F*D*2)
        a("s_lshl_b32 s37, s36, 13")
        for i in range(7):
            a(f"s_add_u32 s38, s37, {i*32*8192}")
            a(f"buffer_load_dword v{40+i}, v9, s[{SRD_WD}:{SRD_WD+3}], s38 offen")
    dump(a)
    a("s_endpgm")
    return a.text(), kdesc(name,256)

def build(path):
    hdr=open("sequential_preLN__sliding_block__swiglu_ffn__prompt.s.ref").read().split("; Override launch")[0]
    ta,da=gen_ka("ka_kernel"); tb,db=gen_kb("kb_kernel")
    L=[hdr.rstrip(), f"; @launch kernel=ka_kernel grid=({NWG},1,1) block=({THREADS},1,1) lds=155648",
       f"; @launch kernel=kb_kernel grid=({NWG},1,1) block=({THREADS},1,1) lds={LDS}",
       '.amdgcn_target "amdgcn-amd-amdhsa--gfx950"\n.text', ta, tb, '.section .rodata,"a"', da, db]
    open(path,"w").write("\n".join(L)+"\n")
    if STAMP: open(path+".names","w").write(" ".join(STN))
if __name__=="__main__":
    build(sys.argv[1])
```

```python
from common import *
import sys
NWG=256; THREADS=512; LDS=163840
WS_FLAG=0x1300000; SZ_FLAG=8192
FID=0; F2=1024; F3=2048; F4=3072
WS_ST2=0x1210000; SZ_ST2=7*S*8
PX,PWQKV,PWO,PBX,PWG,PWU,PWD,POUT,PDBG,PWS=4,6,8,10,12,14,16,18,20,22
SW,SX,SI=24,25,26
SMODE=27; SXC=3
SRD_FLAG=28
UB=57344; KVB=114688
SPIN_MAX=200000
NEG=f32bits(-1e30)
E=lambda k,d: int(os.environ.get(k,str(d)))
FORCE_SLOW=E('FORCE_SLOW',0); P1_ROT=E('P1_ROT',3); CS_DEPTH=E('CS_DEPTH',4); SLEEP2=E('SLEEP2',1); NOW=E('NOW',0)
CS_KB=E('CS_KB',0); FC=5120; XBAR=E('XBAR',1); XTR=E('XTR',1); HOIST=E('HOIST',0); P5_REG=E('P5_REG',1); W1LATE=E('W1LATE',1); KA_WPRE=E('KA_WPRE',0); KA_WMID=E('KA_WMID',3); KA_TOUCH_AT=E('KA_TOUCH_AT',4); TOUCH=E('TOUCH',1); P2_CH=E('P2_CH',2); SP_TOUCH=E('SP_TOUCH',1); ROT4=E('ROT4',1); ROTB=E('ROTB',1)
TBS=114688; SZ_QA=64*TBS; WS_QA=WS_ACT
FN=4096
KN=["ka"]
def P(name): return f"L_{KN[0]}_{name}"
WS_DBG=0x1400000
STN=[]
def st(a,name,rt=False):
    if not STAMP: return
    name=KN[0]+"."+name
    if name not in STN: STN.append(name)
    i=[n for n in STN if n.startswith(KN[0])].index(name)
    a(f"s_mem{'real' if rt else ''}time s[64:65]")
    a("s_waitcnt lgkmcnt(0)")
    a(f"v_writelane_b32 v255, s64, {i}")
def dump(a):
    if not STAMP: return
    a("s_waitcnt vmcnt(0)")
    st(a,"end"); st(a,"rt1",True)
    a("s_getreg_b32 s64, hwreg(HW_REG_XCC_ID)")
    a("v_writelane_b32 v255, s64, 62")
    a("s_getreg_b32 s64, hwreg(HW_REG_HW_ID)")
    a("v_writelane_b32 v255, s64, 63")
    srd(a,48,PWS,PWS+1,2*256*8*256,WS_DBG)
    a("v_lshlrev_b32 v2, 2, v0")
    a("s_lshl_b32 s36, s2, 11")
    if KN[0]=="kb": a(f"s_add_u32 s36, s36, {256*2048}")
    a("buffer_store_dword v255, v2, s[48:51], s36 offen")
_uid=[0]
def hstore(a, instrs):
    _uid[0]+=1; u=_uid[0]
    a(f"s_cmp_eq_u32 s{SMODE}, 0")
    a(f"s_cbranch_scc1 L_hs{u}a")
    for i in instrs: a(i)
    a(f"s_branch L_hs{u}b")
    a.label(f"L_hs{u}a")
    for i in instrs: a(i+" sc1")
    a.label(f"L_hs{u}b")
def signal(a, off_sgpr, tag):
    st(a,tag+"_pre")
    a("s_waitcnt vmcnt(0)")
    a("s_barrier")
    st(a,tag+"_bar")
    a(f"s_cmp_lg_u32 s{SW}, 1")
    a(f"s_cbranch_scc1 {P(tag+'_nosig')}")
    a("v_mov_b32 v2, 1")
    a("v_mov_b32 v3, 0")
    a("s_mov_b64 exec, 1")
    hstore(a,[f"buffer_store_dword v2, v3, s[{SRD_FLAG}:{SRD_FLAG+3}], s{off_sgpr} offen"])
    a("s_mov_b64 exec, -1")
    a.label(P(tag+'_nosig'))
def spin(a, voff, soff, mask_lo, mask_hi, tag, vd=2, sleep=None):
    a(f"s_mov_b32 exec_lo, {mask_lo}")
    a(f"s_mov_b32 exec_hi, {mask_hi}")
    a("s_mov_b32 s101, 0")
    a.label(P(tag+'_pl'))
    a(f"buffer_load_dword v{vd}, v{voff}, s[{SRD_FLAG}:{SRD_FLAG+3}], {soff} offen sc1")
    a("s_add_u32 s101, s101, 1")
    a("s_waitcnt vmcnt(0)")
    a(f"v_cmp_eq_u32 vcc, 0, v{vd}")
    a(f"s_cmp_gt_u32 s101, {SPIN_MAX}")
    a(f"s_cbranch_scc1 {P(tag+'_pd')}")
    a("s_nop 3")
    a(f"s_cbranch_vccz {P(tag+'_pd')}")
    a(f"s_sleep {SLEEP2 if sleep is None else sleep}")
    a(f"s_branch {P(tag+'_pl')}")
    a.label(P(tag+'_pd'))
    a("s_mov_b64 exec, -1")
def poll(a, voff, soff, mask_lo, mask_hi, tag):
    st(a,tag+"_pre")
    a(f"s_cmp_lg_u32 s{SW}, 0")
    a(f"s_cbranch_scc1 {P(tag+'_pw')}")
    spin(a,voff,soff,mask_lo,mask_hi,tag)
    a.label(P(tag+'_pw'))
    a("s_barrier")
    st(a,tag)
def rot_idx(a, sd, n, srot, mod):
    a(f"s_add_u32 s{sd}, s{srot}, {n}")
    a(f"s_sub_u32 s100, s{sd}, {mod}")
    a(f"s_cmp_ge_u32 s{sd}, {mod}")
    a(f"s_cselect_b32 s{sd}, s100, s{sd}")
def prologue(a,name):
    kstart(a,name)
    a(f"s_cmp_ge_u32 s2, {NWG}")
    a(f"s_cbranch_scc1 {P('end')}")
    if STAMP: a("v_mov_b32 v255, 0")
    st(a,"rt0",True); st(a,"start")
    a("s_load_dwordx16 s[4:19], s[0:1], 0")
    a("s_load_dwordx4 s[20:23], s[0:1], 64")
    a("v_and_b32 v1, 63, v0")
    a("v_lshrrev_b32 v2, 6, v0")
    a(f"s_and_b32 s{SX}, s2, 7")
    a(f"v_readfirstlane_b32 s{SW}, v2")
    a(f"s_lshr_b32 s{SI}, s2, 3")
    sdiv(a,92,89,SI,7,93)
    a(f"s_lshl_b32 s88, s{SX}, 2")
    a("s_add_u32 s88, s88, s92")

def colsum_ids(a):
    a(f"s_sub_u32 s36, s{SI}, 28")
    a("s_lshl_b32 s36, s36, 3")
    a(f"s_add_u32 s36, s36, s{SX}")
    sdiv(a,37,38,36,14,39)
    a("v_lshrrev_b32 v3, 4, v1")
    a(f"s_lshl_b32 s39, s{SW}, 2")
    a("v_add_u32 v3, s39, v3")
    a("v_mul_u32_u24 v4, 3584, v3")
    a("v_and_b32 v5, 15, v1")
    a("v_lshl_add_u32 v4, v5, 4, v4")
def colsum_body(a, stf):
    a("s_cmp_eq_u32 s37, 0")
    a(f"s_cselect_b32 s40, s{PWG}, s{PWU}")
    a(f"s_cselect_b32 s41, s{PWG+1}, s{PWU+1}")
    srd(a,48,40,41,D*F*2)
    srd(a,52,PWS,PWS+1,SZ_CS,WS_CS)
    a("s_lshl_b32 s42, s38, 8")
    def csl(i):
        a(f"s_add_u32 s43, s42, {i*32*3584}")
        a(f"buffer_load_dwordx4 {v(32+4*i,4)}, v4, s[48:51], s43 offen")
    for i in range(CS_DEPTH): csl(i)
    for r in range(8): a(f"v_mov_b32 v{16+r}, 0")
    for i in range(14):
        a(f"s_waitcnt vmcnt({min(13-i,CS_DEPTH-1)})")
        if i+CS_DEPTH<14: csl(i+CS_DEPTH)
        for d_ in range(4):
            a(f"v_lshlrev_b32 v{24+2*d_}, 16, v{32+4*i+d_}")
            a(f"v_and_b32 v{25+2*d_}, 0xffff0000, v{32+4*i+d_}")
        for d_ in range(4):
            a(f"v_pk_add_f32 {v(16+2*d_,2)}, {v(16+2*d_,2)}, {v(24+2*d_,2)}")
    a("v_lshlrev_b32 v6, 9, v3")
    a("v_lshl_add_u32 v6, v5, 5, v6")
    a("ds_write_b128 v6, v[16:19]")
    a("ds_write_b128 v6, v[20:23] offset:16")
    a("s_waitcnt lgkmcnt(0)")
    a("s_barrier")
    a(f"s_cmp_ge_u32 s{SW}, 2")
    a(f"s_cbranch_scc1 {P('cs_end')}")
    a("v_lshlrev_b32 v6, 2, v0")
    for i in range(32):
        a(f"ds_read_b32 v{32+i}, v6 offset:{512*i}")
        if i%8==7: a("s_waitcnt lgkmcnt(0)")
    a("v_mov_b32 v16, 0")
    a("v_mov_b32 v17, 0")
    for i in range(0,32,2):
        a(f"v_pk_add_f32 v[16:17], v[16:17], {v(32+i,2)}")
    a("v_add_f32 v16, v16, v17")
    a(f"s_mul_i32 s42, s37, {F*4}")
    a("s_lshl_b32 s43, s38, 9")
    a("s_add_u32 s42, s42, s43")
    a("buffer_store_dword v16, v6, s[52:55], s42 offen"+stf)
    a.label(P('cs_end'))

def gen_ka(name):
    KN[0]="ka"
    a=Asm(); prologue(a,name)
    a(f"s_cmp_ge_u32 s{SI}, 28")
    a(f"s_cbranch_scc1 {P('spare')}")
    XB=0; WB=57344; WSLOT=24576
    RB,CB=88,89
    if P1_ROT==0: a("s_mov_b32 s76, 0")
    elif P1_ROT==9: a("s_lshl_b32 s76, s92, 1")
    else:
        a("s_lshr_b32 s76, s92, 1")
        a(f"s_mul_i32 s76, s76, {P1_ROT}")
    for u in range(3):
        a(f"v_add_u32 v9, {64*u}, v1")
        a("v_mul_u32_u24 v10, 2731, v9")
        a("v_lshrrev_b32 v10, 16, v10")
        a("v_mul_u32_u24 v11, 24, v10")
        a("v_sub_u32 v11, v9, v11")
        a("v_lshrrev_b32 v12, 2, v11")
        a("v_bfe_u32 v13, v10, 1, 1")
        a("v_xor_b32 v12, v12, v13")
        a("v_and_b32 v11, 3, v11")
        a("v_lshlrev_b32 v11, 4, v11")
        a("v_lshl_add_u32 v11, v12, 6, v11")
        a("v_mul_u32_u24 v10, 2688, v10")
        a(f"v_add_u32 v{16+u}, v10, v11")
    a(f"s_mul_i32 s40, s{CB}, 384")
    a(f"s_and_b32 s43, s{SW}, 3")
    a(f"s_mul_i32 s44, s43, {16*2688}")
    a("s_add_u32 s44, s44, s40")
    a(f"s_mul_i32 s45, s43, 6144")
    a(f"s_add_u32 s45, s45, {WB}")
    for c in range(7): rot_idx(a,66+c,c,76,7)
    def w_ops(c,vm):
        slot=c%4
        a(f"s_mul_i32 s47, s{66+c}, {64*2688}")
        a("s_add_u32 s47, s47, s44")
        a(f"s_add_u32 s46, s47, {8*2688}")
        for u in range(6):
            a(f"s_add_u32 m0, s45, {slot*WSLOT+u*1024}")
            a("s_nop 0")
            a(f"buffer_load_dwordx4 v{16+u%3}, s[52:55], s{47 if u<3 else 46} offen lds"); vm.issue(("W",c))
    a(f"s_mul_i32 s41, s{SW}, {8*2688}")
    a("s_add_u32 s41, s41, s40")
    a(f"s_mul_i32 s42, s{SW}, 3072")
    a(f"s_add_u32 s42, s42, {WB}")
    def w8(c,vm):
        a(f"s_mul_i32 s47, s{66+c}, {64*2688}")
        a("s_add_u32 s47, s47, s41")
        for u in range(3):
            a(f"s_add_u32 m0, s42, {(c%4)*WSLOT+u*1024}")
            a("s_nop 0")
            a(f"buffer_load_dwordx4 v{16+u}, s[52:55], s47 offen lds"); vm.issue(("W",c))
    a("v_lshrrev_b32 v5, 3, v1")
    a(f"s_add_u32 s38, s{SW}, s{CB}" if XTR else f"s_mov_b32 s38, s{SW}")
    a("s_and_b32 s38, s38, 7")
    a("s_lshl_b32 s38, s38, 3")
    a("v_add_u32 v5, s38, v5")
    a("v_mul_u32_u24 v6, 896, v5")
    a("v_and_b32 v7, 7, v1")
    a("v_lshl_add_u32 v6, v7, 4, v6")
    a(f"s_mul_i32 s38, s{RB}, {64*896}")
    a("v_bfe_u32 v8, v5, 1, 3")
    a("v_xor_b32 v8, v8, v7")
    a("v_lshlrev_b32 v8, 4, v8")
    a("v_lshl_add_u32 v8, v5, 7, v8")
    for i in range(7):
        a(f"s_lshl_b32 s{78+i}, s{66+i}, 7")
        a(f"s_add_u32 s{78+i}, s{78+i}, s38")
    a("v_mov_b32 v19, 0x3f803f80")
    a("s_mov_b32 s39, 0xffff0000")
    for r in range(20,24): a(f"v_mov_b32 v{r}, 0")
    a("s_waitcnt lgkmcnt(0)")
    st(a,"kernarg")
    srd(a,48,PX,PX+1,S*D*2)
    vm=Cnt(a,"vmcnt")
    XR=32; FR=96
    for i in range(7):
        a(f"buffer_load_dwordx4 {v(XR+4*i,4)}, v6, s[48:51], s{78+i} offen"); vm.issue(("x",i))
    srd(a,52,PWQKV,PWQKV+1,D*NQKV*2)
    for c in range(KA_WPRE): w8(c,vm)
    for i in range(7):
        vm.wait(("x",i))
        for d_ in range(4):
            x=XR+4*i+d_
            a(f"v_dot2c_f32_bf16 v{20+(d_&1)}, v{x}, v19")
            a(f"v_dot2c_f32_bf16 v{22+(d_&1)}, v{x}, v{x}")
    st(a,"x")
    vmC=Cnt(a,"vmcnt"); vmL=Cnt(a,"vmcnt")
    if XBAR: a("s_barrier")
    a(f"s_cmp_lt_u32 s{SW}, 4")
    a(f"s_cbranch_scc1 {P('nw01')}")
    w_ops(0,vmC)
    if not W1LATE: w_ops(1,vmC)
    a.label(P('nw01'))
    a("v_add_f32 v20, v20, v21")
    a("v_add_f32 v22, v22, v23")
    for dpp in ("quad_perm:[1,0,3,2]","quad_perm:[2,3,0,1]","row_half_mirror"):
        a("s_nop 1")
        for r in (20,22):
            a(f"v_add_f32_dpp v{r}, v{r}, v{r} {dpp} row_mask:0xf bank_mask:0xf")
    m=20; q=22
    a(f"v_mul_f32 v{m}, {f32bits(1.0/D)}, v{m}")
    a(f"v_mul_f32 v{q}, {f32bits(1.0/D)}, v{q}")
    a(f"v_fma_f32 v{q}, -v{m}, v{m}, v{q}")
    a(f"v_max_f32 v{q}, 0, v{q}")
    a(f"v_add_f32 v{q}, {f32bits(1e-5)}, v{q}")
    a(f"v_rsq_f32 v{q}, v{q}")
    a("s_nop 0")
    a(f"v_mul_f32 v{m}, v{m}, v{q}")
    a(f"v_sub_f32 v{m}, 0, v{m}")
    for i in range(7):
        fb=FR+8*(i&1)
        for d_ in range(4):
            x=XR+4*i+d_
            a(f"v_lshlrev_b32 v{fb+2*d_}, 16, v{x}")
            a(f"v_and_b32 v{fb+2*d_+1}, s39, v{x}")
        for d_ in range(4):
            a(f"v_pk_fma_f32 {v(fb+2*d_,2)}, {v(fb+2*d_,2)}, {v(q,2)}, {v(m,2)} op_sel_hi:[1,0,0]")
        for d_ in range(4):
            a(f"v_cvt_pk_bf16_f32 v{XR+4*i+d_}, v{fb+2*d_}, v{fb+2*d_+1}")
        a(f"ds_write_b128 v8, {v(XR+4*i,4)} offset:{XB+8192*i}")
    st(a,"ln")
    ops0=list(vmC.ops)
    a(f"s_cmp_ge_u32 s{SW}, 4")
    a(f"s_cbranch_scc1 {P('C')}")
    vm=vmL
    a("s_waitcnt lgkmcnt(0)")
    sched={c:[] for c in range(7)}
    for c in range(7):
        for i in sched[c]: norm(i)
        if sched[c]: a("s_waitcnt lgkmcnt(0)")
        vm.wait(("W",c))
        st(a,f"L{c}")
        a("s_barrier")
        if c+2<7: w_ops(c+2,vm)
        if c==KA_TOUCH_AT:
            srd(a,56,PWS,PWS+1,SZ_QA,WS_QA)
            a("v_lshlrev_b32 v9, 7, v1")
            a("v_mov_b32 v10, 0x40000000")
            a("v_cmp_gt_u32 vcc, 48, v1")
            a(f"s_lshl_b32 s60, s{RB}, 1")
            a("s_lshr_b32 s61, s43, 1")
            a("v_cndmask_b32 v9, v10, v9, vcc")
            a("s_add_u32 s60, s60, s61")
            a(f"s_mul_i32 s60, s60, {TBS}")
            a(f"s_mul_i32 s61, s{CB}, 12288")
            a("s_add_u32 s60, s60, s61")
            a("s_and_b32 s61, s43, 1")
            a("s_mul_i32 s61, s61, 6144")
            a("s_add_u32 s60, s60, s61")
            a("buffer_load_dword v30, v9, s[56:59], s60 offen sc1"); vm.issue("t")
    dump(a)
    a("s_endpgm")
    a.label(P('C'))
    vm=Cnt(a,"vmcnt"); lg=Cnt(a,"lgkmcnt"); vm.ops=list(ops0)
    if W1LATE: w_ops(1,vm)
    a("s_and_b32 s36, s43, 1")
    a("s_lshr_b32 s37, s43, 1")
    srd(a,56,PWS,PWS+1,SZ_QA,WS_QA)
    a("v_and_b32 v3, 31, v1")
    a("s_lshl_b32 s60, s36, 5")
    a("v_add_u32 v3, s60, v3")
    a("v_lshrrev_b32 v4, 5, v1")
    a("v_bfe_u32 v5, v3, 1, 3")
    a("v_xor_b32 v5, v5, v4")
    a("v_lshlrev_b32 v5, 4, v5")
    a("v_lshl_add_u32 v10, v3, 7, v5")
    for s_ in range(1,4): a(f"v_xor_b32 v{10+s_}, {32*s_}, v10")
    a("v_bfe_u32 v5, v1, 2, 2")
    a("v_lshl_add_u32 v6, v4, 3, v5")
    a("v_mul_u32_u24 v6, 384, v6")
    a("v_bfe_u32 v7, v1, 4, 1")
    a("v_lshl_add_u32 v6, v7, 5, v6")
    a("v_and_b32 v7, 1, v1")
    a("v_lshl_add_u32 v6, v7, 4, v6")
    a("v_bfe_u32 v7, v1, 1, 1")
    a("v_lshl_add_u32 v6, v7, 3, v6")
    a(f"v_add_u32 v6, {WB}, v6")
    a("v_lshrrev_b32 v5, 1, v5")
    a("s_mul_i32 s60, s37, 3")
    for jj in range(3):
        a(f"s_add_u32 s61, s60, {jj}")
        a("v_xor_b32 v7, s61, v5")
        a(f"v_lshl_add_u32 v{20+jj}, v7, 6, v6")
        a(f"v_add_u32 v{24+jj}, {2*WSLOT}, v{20+jj}")
    a(f"s_mul_i32 s60, s{CB}, 192")
    a("s_mul_i32 s61, s37, 96")
    a("s_add_u32 s60, s60, s61")
    a(f"s_lshl_b32 s62, s{RB}, 1")
    a("s_add_u32 s62, s62, s36")
    a(f"s_mul_i32 s62, s62, {TBS}")
    a("s_lshl_b32 s61, s60, 6")
    a("s_add_u32 s62, s62, s61")
    a("s_add_u32 s63, s62, 4096")
    for jj in range(3):
        a(f"s_add_u32 s61, s60, {32*jj}")
        a("s_cmp_lt_u32 s61, 448")
        a(f"s_cselect_b32 s{78+2*jj}, {f32bits(DH**-0.5*LOG2E)}, {f32bits(1.0)}")
        a(f"s_mov_b32 s{79+2*jj}, s{78+2*jj}")
    a("v_lshlrev_b32 v5, 4, v1")
    ACC=32; BFq=96; AFq=112
    NK=28
    def rdB(k):
        c=k//4; s_=k%4; b=k%3
        a(f"ds_read_b128 {v(BFq+4*b,4)}, v{10+s_} offset:{XB+c*8192}"); lg.issue(("f",k,0))
    def rdA(k,jj):
        c=k//4; s_=k%4; slot=c%4; b=k%3
        ab=(20 if slot<2 else 24)+jj
        o=(slot&1)*WSLOT+s_*16*384
        a(f"ds_read_b64_tr_b16 {v(AFq+12*b+4*jj,2)}, v{ab} offset:{o}"); lg.issue(("f",k,jj))
        a(f"ds_read_b64_tr_b16 {v(AFq+12*b+4*jj+2,2)}, v{ab} offset:{o+4*384}"); lg.issue(("f",k,jj))
    vm.wait(("W",0))
    a("s_waitcnt lgkmcnt(0)")
    st(a,"C0")
    a("s_barrier")
    st(a,"B0")
    for k in (0,1):
        rdB(k)
        for jj in range(3): rdA(k,jj)
    for k in range(NK):
        b=k%3
        for jj in range(3):
            lg.wait(("f",k,jj))
            cin="0" if k==0 else v(ACC+16*jj,16)
            a(f"v_mfma_f32_32x32x16_bf16 {v(ACC+16*jj,16)}, {v(AFq+12*b+4*jj,4)}, {v(BFq+4*b,4)}, {cin}")
            if k+2<NK:
                if jj==0:
                    if (k+2)%4==0:
                        vm.wait(("W",(k+2)//4))
                        a("s_barrier")
                    rdB(k+2)
                rdA(k+2,jj)
    st(a,"mfma")
    a("s_nop 7")
    a("s_nop 1")
    OB=160
    for jj in range(3):
        for r in range(8): a(f"v_pk_mul_f32 {v(ACC+16*jj+2*r,2)}, {v(ACC+16*jj+2*r,2)}, s[{78+2*jj}:{79+2*jj}]")
        for r in range(8): a(f"v_cvt_pk_bf16_f32 v{OB+8*jj+r}, v{ACC+16*jj+2*r}, v{ACC+16*jj+2*r+1}")
        sb=62 if jj<2 else 63; o=2048*(jj%2)
        a(f"buffer_store_dwordx4 {v(OB+8*jj,4)}, v5, s[56:59], s{sb} offen offset:{o}")
        a(f"buffer_store_dwordx4 {v(OB+8*jj+4,4)}, v5, s[56:59], s{sb} offen offset:{o+1024}")
    st(a,"epi")
    dump(a)
    a("s_endpgm")
    a.label(P('spare'))
    a(f"s_sub_u32 s36, s{SI}, 28")
    a("s_lshl_b32 s36, s36, 3")
    a(f"s_add_u32 s36, s36, s{SX}")
    sdiv(a,37,38,36,14,39)
    a("v_lshrrev_b32 v3, 4, v1")
    a(f"s_lshl_b32 s39, s{SW}, 2")
    a("v_add_u32 v3, s39, v3")
    a("v_mul_u32_u24 v4, 3584, v3")
    a("v_and_b32 v5, 15, v1")
    a("v_lshl_add_u32 v4, v5, 4, v4")
    a("s_waitcnt lgkmcnt(0)")
    a("s_cmp_lt_u32 s36, 28")
    a(f"s_cbranch_scc1 {P('cs')}")
    a("s_cmp_lg_u32 s36, 31")
    a(f"s_cbranch_scc1 {P('end')}")
    srd(a,SRD_FLAG,PWS,PWS+1,SZ_FLAG,WS_FLAG)
    a("v_lshlrev_b32 v3, 4, v0")
    for r in range(4,8): a(f"v_mov_b32 v{r}, 0")
    a(f"buffer_store_dwordx4 v[4:7], v3, s[{SRD_FLAG}:{SRD_FLAG+3}], 0 offen")
    a("s_endpgm")
    a.label(P('cs'))
    if not CS_KB: colsum_body(a,'')
    dump(a)
    a.label(P('end'))
    a("s_endpgm")
    return a.text(), kdesc(name,256 if STAMP else 192)

def CH(c): return 16384*c if c<3 else (KVB+16384*(c-3) if c<6 else UB)
MISC=49152
NEARLY=5; NRES=19
def p5_group_addr(n):
    if n<5: return UB+16384+8192*n
    if n<19:
        k=n-5; return CH(k//2)+8192*(k%2)
    return p5_group_addr(n-19)
VW=254; VG=252; VU=253; VL16=251; VL4=250; VRES=240
S_GU=94; S_W1K=95; S_WD=78; S_WDROT=93; S_WOROT=77
SRD_G=80; SRD_U=84; SRD_WD=96
def gu_dma(a, c, m, vm=None):
    a(f"s_add_u32 m0, s{S_W1K}, {CH(c)+8192*m}")
    if m==1: a(f"s_add_u32 s92, s90, {64*3584}")
    else: a("s_nop 0")
    if not NOW:
        a(f"buffer_load_dwordx4 v{VG+m}, s[{SRD_G+4*m}:{SRD_G+3+4*m}], s90 offen lds")
        if vm: vm.issue(("W",c))
    if m==1:
        a("s_cmp_eq_u32 s92, s91")
        a(f"s_cselect_b32 s90, s{S_GU}, s92")
def wd_dma(a, n, vm=None):
    a(f"s_add_u32 m0, s{S_W1K}, {p5_group_addr(n)}")
    a(f"s_add_u32 s92, s79, {64*896}")
    if not NOW:
        a(f"buffer_load_dwordx4 v{VW}, s[{SRD_WD}:{SRD_WD+3}], s79 offen lds")
        if vm: vm.issue(("wd",n))
    a("s_cmp_eq_u32 s92, s75")
    a(f"s_cselect_b32 s79, s{S_WD}, s92")

def csdma(a,vm=None):
    srd(a,68,PWS,PWS+1,SZ_CS,WS_CS)
    a(f"s_mul_i32 s66, s{SW}, {F*4}")
    a(f"s_lshl_b32 s67, s{SI}, 8")
    a("s_add_u32 s66, s66, s67")
    a(f"s_min_u32 s67, s{SW}, 2")
    a("s_lshl_b32 s67, s67, 8")
    a(f"s_add_u32 m0, s67, {MISC}")
    a("s_nop 0")
    a(f"buffer_load_dword v{VL4}, s[68:71], s66 offen sc1 lds")
    if vm: vm.issue("cs")

PEND=[]
def run_pending():
    while PEND: PEND.pop(0)()

def kb_phase2(a):
    KB=KVB; VB=KVB+24576
    HD,QB=36,37
    a(f"s_getreg_b32 s{SXC}, hwreg(HW_REG_XCC_ID)")
    a(f"s_lshr_b32 s{HD}, s{SI}, 1")
    a(f"s_and_b32 s38, s{SI}, 1")
    a(f"s_lshl_b32 s{QB}, s{SX}, 1")
    a(f"s_add_u32 s{QB}, s{QB}, s38")
    a(f"s_mul_i32 s40, s{HD}, 7")
    a("s_lshr_b32 s40, s40, 1")
    a(f"s_and_b32 s41, s{HD}, 1")
    a("v_and_b32 v3, 15, v1")
    a("v_lshrrev_b32 v4, 4, v1")
    a("v_lshlrev_b32 v5, 9, v4")
    a("v_lshl_add_u32 v6, v3, 4, v5")
    a("v_and_b32 v7, 1, v4")
    a("v_lshlrev_b32 v7, 3, v7")
    a("v_xor_b32 v7, v7, v3")
    a("v_lshl_add_u32 v7, v7, 4, v5")
    a(f"s_lshl_b32 s42, s{QB}, 3")
    a(f"s_add_u32 s42, s42, s{SW}")
    a("s_lshr_b32 s43, s42, 1")
    a(f"s_mul_i32 s43, s43, {TBS}")
    a("s_and_b32 s44, s42, 1")
    a("s_lshl_b32 s44, s44, 8")
    a("s_add_u32 s43, s43, s44")
    a("s_lshl_b32 s45, s40, 9")
    a("s_add_u32 s46, s43, s45")
    for u in range(3):
        a(f"s_mul_i32 s56, s{SW}, 3")
        a(f"s_add_u32 s56, s56, {u}")
        a(f"s_lshl_b32 s57, s{QB}, 3")
        a("s_add_u32 s57, s57, s56")
        a("s_sub_u32 s57, s57, 16")
        a("s_lshr_b32 s58, s57, 1")
        a(f"s_mul_i32 s58, s58, {TBS}")
        a("s_and_b32 s59, s57, 1")
        a("s_lshl_b32 s59, s59, 8")
        a("s_add_u32 s58, s58, s59")
        a("s_add_u32 s58, s58, s45")
        a("s_cmp_lt_i32 s57, 0")
        a("s_cselect_b32 s58, 0x40000000, s58")
        a(f"s_add_u32 s{66+2*u}, s58, {56*512}")
        a(f"s_add_u32 s{67+2*u}, s58, {112*512}")
    a(f"s_mul_i32 s60, s{SW}, 3072")
    a(f"s_add_u32 s60, s60, {KB}")
    a(f"s_and_b32 s{SXC}, s{SXC}, 15")
    a(f"s_add_u32 s{SXC}, s{SXC}, 1")
    QF=12
    a("s_waitcnt lgkmcnt(0)")
    st(a,"kernarg")
    srd(a,48,PWS,PWS+1,SZ_QA,WS_QA)
    a(f"buffer_load_dwordx4 {v(QF,4)}, v6, s[48:51], s46 offen sc1")
    for u in range(3):
        a(f"s_add_u32 m0, s60, {1024*u}")
        a("s_nop 0")
        a(f"buffer_load_dwordx4 v6, s[48:51], s{66+2*u} offen sc1 lds")
    for u in range(3):
        a(f"s_add_u32 m0, s60, {VB-KB+1024*u}")
        a("s_nop 0")
        a(f"buffer_load_dwordx4 v7, s[48:51], s{67+2*u} offen sc1 lds")
    srd(a,SRD_FLAG,PWS,PWS+1,SZ_FLAG,WS_FLAG)
    a(f"s_lshl_b32 s74, s{SX}, 7")
    a(f"s_lshl_b32 s56, s{SI}, 2")
    a("s_add_u32 s56, s56, s74")
    a(f"s_cmp_eq_u32 s{SW}, 7")
    a("s_cselect_b32 s56, s56, 0x40000000")
    a(f"v_mov_b32 v2, s{SXC}")
    a("v_mov_b32 v8, 0")
    a("s_mov_b64 exec, 1")
    a(f"buffer_store_dword v2, v8, s[{SRD_FLAG}:{SRD_FLAG+3}], s56 offen sc1")
    a("s_mov_b64 exec, -1")
    M0R=16; M16=20
    a("v_lshlrev_b32 v8, 2, v4")
    a(f"v_mov_b32 v9, {NEG}")
    for r in range(4):
        a(f"v_add_u32 v10, {r}, v8")
        a("v_cmp_lt_u32 vcc, v3, v10")
        a("s_nop 1")
        a(f"v_cndmask_b32_e64 v{M0R+r}, v9, 0, vcc")
        a(f"v_cndmask_b32_e64 v{M16+r}, 0, v9, vcc")
    a(f"v_lshlrev_b32 v{VL16}, 4, v1")
    a(f"v_lshlrev_b32 v{VL4}, 2, v1")
    a(f"s_lshl_b32 s{S_W1K}, s{SW}, 10")
    a(f"s_add_u32 s47, s{S_W1K}, {KB}")
    a(f"v_add_u32 v10, s47, v{VL16}")
    a("v_bfe_u32 v24, v1, 2, 2")
    a("v_add_u32 v24, v24, v8")
    a("v_bfe_u32 v25, v1, 1, 1")
    a("v_lshlrev_b32 v26, 3, v25")
    a("v_xor_b32 v24, v24, v26")
    a("v_lshlrev_b32 v24, 4, v24")
    a("v_lshl_add_u32 v24, v25, 8, v24")
    a("v_and_b32 v25, 1, v1")
    a("v_lshl_add_u32 v24, v25, 3, v24")
    a(f"v_add_u32 v24, {VB-KB}, v24")
    a("v_add_u32 v11, s47, v24")
    a("v_lshrrev_b32 v28, 1, v4")
    a("v_lshlrev_b32 v28, 9, v28")
    a("v_lshl_add_u32 v28, v3, 4, v28")
    a("v_and_b32 v29, 1, v4")
    a("v_lshl_add_u32 v28, v29, 3, v28")
    a("v_add_u32 v29, 1024, v28")
    a("v_mov_b32 v30, 0x40000000")
    a("s_cmp_eq_u32 s41, 0")
    a("s_cselect_b32 s62, 64, 0")
    a("s_cselect_b32 s63, 3, 64")
    a("v_cmp_eq_u32 vcc, s62, v4")
    a("s_nop 1")
    a("v_cndmask_b32 v28, v28, v30, vcc")
    a("v_cmp_eq_u32 vcc, s63, v4")
    a("s_nop 1")
    a("v_cndmask_b32 v29, v29, v30, vcc")
    a(f"s_lshl_b32 s33, s{QB}, 4")
    a(f"s_add_u32 s33, s33, s{HD}")
    a("s_lshl_b32 s33, s33, 2")
    a(f"s_add_u32 s33, s33, {F2}")
    a(f"v_lshrrev_b32 v{VW}, 3, v1")
    a(f"v_mul_u32_u24 v150, 3584, v{VW}")
    a(f"v_mul_u32_u24 v{VW}, 896, v{VW}")
    a("v_bfe_u32 v151, v1, 2, 1")
    a("v_bfe_u32 v152, v1, 4, 1")
    a("v_xor_b32 v151, v151, v152")
    a(f"v_lshl_add_u32 v{VW}, v151, 6, v{VW}")
    a("v_and_b32 v151, 3, v1")
    a(f"v_lshl_add_u32 v{VW}, v151, 4, v{VW}")
    a("v_bfe_u32 v151, v1, 1, 2")
    a("v_xor_b32 v151, v151, v152")
    a("v_and_b32 v152, 1, v1")
    a("v_lshl_add_u32 v150, v152, 4, v150")
    a(f"v_lshl_add_u32 v{VG}, v151, 5, v150")
    a("v_xor_b32 v151, 2, v151")
    a(f"v_lshl_add_u32 v{VU}, v151, 5, v150")
    srd(a,SRD_G,PWG,PWG+1,D*F*2)
    srd(a,SRD_U,PWU,PWU+1,D*F*2)
    srd(a,SRD_WD,PWO,PWO+1,D*D*2)
    a(f"s_mul_i32 s{S_GU}, s{SW}, {8*3584}")
    a(f"s_lshl_b32 s56, s{SI}, 7")
    a(f"s_add_u32 s{S_GU}, s{S_GU}, s56")
    a(f"s_mul_i32 s{S_WD}, s{SW}, {8*896}")
    a("s_lshl_b32 s56, s89, 7")
    a(f"s_add_u32 s{S_WD}, s{S_WD}, s56")
    a(f"s_lshl_b32 s56, s92, 1")
    if ROTB: rot_idx(a,S_WOROT,"s56",89,7)
    else: a(f"s_mov_b32 s{S_WOROT}, s56")
    a("s_mul_i32 s56, s92, 7")
    a("s_lshl_b32 s57, s89, 2")
    if ROTB: rot_idx(a,S_WDROT,"s56",57,28)
    else: a(f"s_mov_b32 s{S_WDROT}, s56")
    a(f"s_cmp_ge_u32 s{SI}, 28")
    a(f"s_cselect_b32 s{S_GU}, 0x40000000, s{S_GU}")
    a(f"s_cselect_b32 s{S_WD}, 0x40000000, s{S_WD}")
    a(f"s_mul_i32 s90, s89, {64*3584 if ROT4 else 0}")
    a(f"s_add_u32 s90, s90, s{S_GU}")
    a(f"s_add_u32 s91, s{S_GU}, {7*64*3584}")
    a(f"s_mul_i32 s79, s{S_WOROT}, {64*896}")
    a(f"s_add_u32 s79, s79, s{S_WD}")
    a(f"s_add_u32 s75, s{S_WD}, {7*64*896}")
    a(f"s_and_b32 s56, s{SW}, 3")
    a(f"s_lshr_b32 s57, s{SW}, 2")
    a("s_lshl_b32 s58, s88, 1")
    a("s_add_u32 s58, s58, s57")
    a(f"s_mul_i32 s58, s58, {32*896}")
    a("s_lshl_b32 s59, s89, 7")
    a("s_add_u32 s58, s58, s59")
    a("s_lshl_b32 s59, s56, 5")
    a("s_add_u32 s73, s58, s59")
    a(f"s_cmp_ge_u32 s{SI}, 28")
    a("s_cselect_b32 s73, 0x40000000, s73")
    a("v_and_b32 v150, 31, v1")
    a("v_mul_u32_u24 v150, 896, v150")
    a("v_lshrrev_b32 v151, 5, v1")
    a("v_lshl_add_u32 v249, v151, 4, v150")
    srd(a,56,PX,PX+1,S*D*2)
    a("s_waitcnt vmcnt(7)")
    a("s_cmp_eq_u32 s41, 0")
    a(f"s_cbranch_scc0 {P('p2_odd')}")
    a("v_cmp_gt_u32 vcc, 48, v1")
    a("s_nop 1")
    a(f"v_cndmask_b32 v{QF+2}, 0, v{QF+2}, vcc")
    a(f"v_cndmask_b32 v{QF+3}, 0, v{QF+3}, vcc")
    a(f"s_branch {P('p2_qd')}")
    a.label(P('p2_odd'))
    a("v_cmp_le_u32 vcc, 16, v1")
    a("s_nop 1")
    a(f"v_cndmask_b32 v{QF+0}, 0, v{QF+0}, vcc")
    a(f"v_cndmask_b32 v{QF+1}, 0, v{QF+1}, vcc")
    a.label(P('p2_qd'))
    st(a,"setup")
    a("s_waitcnt vmcnt(1)")
    a("s_barrier")
    st(a,"kv")
    def wo_dma(n):
        a(f"s_add_u32 m0, s{S_W1K}, {UB+8192*n}")
        a(f"s_add_u32 s92, s79, {64*896}")
        if not NOW: a(f"buffer_load_dwordx4 v{VW}, s[{SRD_WD}:{SRD_WD+3}], s79 offen lds")
        a("s_cmp_eq_u32 s92, s75")
        a(f"s_cselect_b32 s79, s{S_WD}, s92")
    pf=[lambda n=n: wo_dma(n) for n in range(7)]
    pf+=[lambda: a(f"buffer_load_dwordx4 {v(VRES,4)}, v249, s[56:59], s73 offen")]
    pf+=[lambda k=k: gu_dma(a,k//2,k%2) for k in range(2*P2_CH)]
    def htouch():
        srd(a,68,PWS,PWS+1,SZ_H,WS_H)
        a(f"s_lshr_b32 s66, s{SW}, 2")
        a("s_lshl_b32 s67, s88, 1")
        a("s_add_u32 s66, s66, s67")
        a(f"s_mul_i32 s67, s66, {56*512}")
        a("s_lshl_b32 s72, s89, 12")
        a("s_add_u32 s67, s67, s72")
        a(f"s_and_b32 s72, s{SW}, 3")
        a("s_lshl_b32 s72, s72, 10")
        a("s_add_u32 s67, s67, s72")
        a(f"s_cmp_ge_u32 s{SI}, 28")
        a("s_cselect_b32 s67, 0x40000000, s67")
        a(f"buffer_load_dwordx4 v[144:147], v{VL16}, s[68:71], s67 offen sc1")
        srd(a,68,PWS,PWS+1,SZ_ST2,WS_ST2)
        a(f"s_mul_i32 s67, s89, {S*8}")
        a("s_lshl_b32 s66, s66, 8")
        a("s_add_u32 s67, s67, s66")
        a(f"buffer_load_dword v148, v{VL4}, s[68:71], s67 offen sc1")
    if TOUCH: htouch()
    if not CS_KB: csdma(a)
    SR=32; KF=100; NB=6
    for t in range(NB):
        a(f"ds_read_b128 {v(KF+4*(t%NB),4)}, v10 offset:{1024*t}")
    for t in range(17):
        outstanding=min(17,t+NB)-t-1
        a(f"s_waitcnt lgkmcnt({outstanding})")
        cin = v(M0R,4) if t==0 else (v(M16,4) if t==16 else "0")
        a(f"v_mfma_f32_16x16x32_bf16 {v(SR+4*t,4)}, {v(KF+4*(t%NB),4)}, {v(QF,4)}, {cin}")
        if t+NB<17:
            a(f"ds_read_b128 {v(KF+4*(t%NB),4)}, v10 offset:{1024*(t+NB)}")
        if t%3==2 and pf: pf.pop(0)()
    VF=100
    def vread(j):
        b=VF+8*(j%3)
        for dt in range(2):
            a(f"ds_read_b64_tr_b16 {v(b+4*dt,2)}, v11 offset:{1024*(2*j)+512*dt}")
            if 2*j+1<17:
                a(f"ds_read_b64_tr_b16 {v(b+4*dt+2,2)}, v11 offset:{1024*(2*j+1)+512*dt}")
    vread(0); vread(1); vread(2)
    a("s_cmp_ge_u32 s42, 16")
    a(f"s_cbranch_scc1 {P('p2_nomask')}")
    a("s_sub_u32 s63, 16, s42")
    for t in range(16):
        a(f"s_cmp_le_u32 s63, {t}")
        a(f"s_cbranch_scc1 {P('p2_nomask')}")
        for r in range(4): a(f"v_mov_b32 v{SR+4*t+r}, v9")
    a.label(P('p2_nomask'))
    st(a,"qk")
    a(f"v_max3_f32 v24, v{SR}, v{SR+1}, v{SR+2}")
    a(f"v_max3_f32 v25, v{SR+3}, v{SR+4}, v{SR+5}")
    i=6; k=0
    while i+1<68:
        a(f"v_max3_f32 v{24+k}, v{24+k}, v{SR+i}, v{SR+i+1}")
        i+=2; k^=1
    a("v_max_f32 v24, v24, v25")
    a("v_mov_b32 v25, v24")
    a("s_nop 1")
    a("v_permlane32_swap_b32 v24, v25")
    a("v_max_f32 v24, v24, v25")
    a("v_mov_b32 v25, v24")
    a("s_nop 1")
    a("v_permlane16_swap_b32 v24, v25")
    a("v_max_f32 v24, v24, v25")
    a("v_mov_b32 v25, v24")
    a("v_mov_b32 v26, 0\nv_mov_b32 v27, 0")
    O0=124; O1=128; PP=132
    after_id=[0]
    for j in range(9):
        nt = 2 if 2*j+1<17 else 1
        pb=PP+4*(j%2)
        regs=[SR+8*j+r for r in range(4*nt)]
        for r in regs[::2]: a(f"v_pk_add_f32 {v(r,2)}, {v(r,2)}, v[24:25] neg_lo:[0,1] neg_hi:[0,1]")
        for r in regs: a(f"v_exp_f32 v{r}, v{r}")
        if pf:
            pf.pop(0)()
            if j>4: after_id[0]+=1
        else: a("s_nop 0")
        for q,r in enumerate(regs[::2]):
            a(f"v_cvt_pk_bf16_f32 v{pb+q}, v{r}, v{r+1}")
        for r in regs[::2]: a(f"v_pk_add_f32 v[26:27], v[26:27], {v(r,2)}")
        rem=0
        for jj in range(j+1,min(9,j+3)):
            rem += 4 if 2*jj+1<17 else 2
        a(f"s_waitcnt lgkmcnt({rem})")
        b=VF+8*(j%3)
        c0 = "0" if j==0 else v(O0,4)
        c1 = "0" if j==0 else v(O1,4)
        if nt==2:
            a(f"v_mfma_f32_16x16x32_bf16 {v(O0,4)}, {v(b,4)}, {v(pb,4)}, {c0}")
            a(f"v_mfma_f32_16x16x32_bf16 {v(O1,4)}, {v(b+4,4)}, {v(pb,4)}, {c1}")
        else:
            a(f"v_mfma_f32_16x16x16_bf16 {v(O0,4)}, {v(b,2)}, {v(pb,2)}, {c0}")
            a(f"v_mfma_f32_16x16x16_bf16 {v(O1,4)}, {v(b+4,2)}, {v(pb,2)}, {c1}")
        if j+3<9: vread(j+3)
        if j==4:
            a(f"buffer_load_dword v31, v{VL4}, s[{SRD_FLAG}:{SRD_FLAG+3}], s74 offen sc1")
    while pf: pf.pop(0)(); after_id[0]+=1
    a("v_add_f32 v26, v26, v27")
    a("v_mov_b32 v27, v26")
    a("s_nop 1")
    a("v_permlane32_swap_b32 v26, v27")
    a("v_add_f32 v26, v26, v27")
    a("v_mov_b32 v27, v26")
    a("s_nop 1")
    a("v_permlane16_swap_b32 v26, v27")
    a("v_add_f32 v26, v26, v27")
    a("v_rcp_f32 v26, v26")
    a("s_nop 0")
    for r in range(8): a(f"v_mul_f32 v{O0+r}, v26, v{O0+r}")
    for r in range(4): a(f"v_cvt_pk_bf16_f32 v{PP+r}, v{O0+2*r}, v{O0+2*r+1}")
    a(f"s_waitcnt vmcnt({0 if NOW else after_id[0]})")
    a("v_cmp_eq_u32 vcc, 0, v31")
    a("s_nop 3")
    a("s_cmp_eq_u32 vcc_lo, 0")
    a(f"s_cbranch_scc1 {P('idok')}")
    spin(a,VL4,"s74",-1,0,"wid",vd=31)
    a.label(P('idok'))
    a(f"v_cmp_ne_u32 vcc, s{SXC}, v31")
    a("s_nop 3")
    a("s_cmp_eq_u32 vcc_lo, 0")
    a(f"s_cselect_b32 s{SMODE}, {0 if FORCE_SLOW else 1}, 0")
    hstore(a,[f"buffer_store_dwordx2 {v(PP,2)}, v28, s[48:51], s46 offen",
              f"buffer_store_dwordx2 {v(PP+2,2)}, v29, s[48:51], s46 offen"])
    def fin():
        signal(a,33,"s2")
        a(f"s_cmp_lg_u32 s{SW}, 2")
        a(f"s_cbranch_scc1 {P('nofn')}")
        a(f"s_lshl_b32 s33, s{SI}, 2")
        a("s_add_u32 s33, s33, s74")
        a(f"s_add_u32 s33, s33, {FN}")
        a("v_mov_b32 v2, 1")
        a("v_mov_b32 v3, 0")
        a("s_mov_b64 exec, 1")
        a(f"buffer_store_dword v2, v3, s[{SRD_FLAG}:{SRD_FLAG+3}], s33 offen sc1")
        a("s_mov_b64 exec, -1")
        a.label(P('nofn'))
        a(f"s_cmp_ge_u32 s{SI}, 28")
        a(f"s_cbranch_scc1 {P('spare2')}")
    PEND.append(fin)
    if not HOIST: run_pending()

def kb_phase35(a, mode):
    k3=(mode==3); tag=f"p{mode}"
    KD=D if k3 else F
    NST=KD//64
    vm=Cnt(a,"vmcnt"); lg=Cnt(a,"lgkmcnt")
    KS,TG=36,37
    a(f"s_and_b32 s{KS}, s{SW}, 3")
    a(f"s_lshr_b32 s{TG}, s{SW}, 2")
    a(f"s_lshr_b32 s38, s{KS}, 1")
    a(f"s_and_b32 s39, s{KS}, 1")
    a("v_lshrrev_b32 v4, 5, v1")
    a("v_bfe_u32 v5, v1, 2, 2")
    a("v_lshl_add_u32 v8, v4, 3, v5")
    a("v_lshlrev_b32 v8, 7, v8")
    a("v_lshrrev_b32 v5, 1, v5")
    a("v_xor_b32 v5, s38, v5")
    a("v_lshl_add_u32 v8, v5, 6, v8")
    a("v_bfe_u32 v5, v1, 4, 1")
    a("v_xor_b32 v5, s39, v5")
    a("v_lshl_add_u32 v8, v5, 5, v8")
    a("v_and_b32 v5, 1, v1")
    a("v_lshl_add_u32 v8, v5, 4, v8")
    a("v_bfe_u32 v5, v1, 1, 1")
    a("v_lshl_add_u32 v8, v5, 3, v8")
    a(f"s_lshl_b32 s40, s{KS}, 11")
    a("v_add_u32 v8, s40, v8")
    a("v_xor_b32 v9, 64, v8")
    a("v_add_u32 v10, 0x10000, v8")
    a("v_add_u32 v11, 0x10000, v9")
    if not k3:
        a("v_add_u32 v12, 0x20000, v8")
        a("v_add_u32 v13, 0x20000, v9")
    if k3:
        srd(a,56,PWS,PWS+1,SZ_H,WS_H)
        srd(a,60,PWS,PWS+1,SZ_ST2,WS_ST2)
    else:
        srd(a,48,PWS,PWS+1,SZ_QA,WS_QA)
        srd(a,52,PWS,PWS+1,SZ_H,WS_H)
        srd(a,56,POUT,POUT+1,S*D*2)
    a("s_lshl_b32 s40, s88, 1")
    a(f"s_add_u32 s40, s40, s{TG}")
    a(f"s_mul_i32 s41, s40, {TBS}")
    a(f"s_lshl_b32 s42, s{KS}, 10")
    a("s_add_u32 s41, s41, s42")
    a(f"s_add_u32 s43, s41, {NST*4096}")
    a(f"s_lshl_b32 s42, s{S_WOROT if k3 else S_WDROT}, 12")
    a("s_add_u32 s42, s42, s41")
    a(f"s_mul_i32 s45, s40, {56*512}")
    a("s_lshl_b32 s46, s89, 12")
    a("s_add_u32 s45, s45, s46")
    a(f"s_lshl_b32 s46, s{KS}, 10")
    a("s_add_u32 s45, s45, s46")
    if k3: b0,b1=KVB,KVB+24576
    else: b0,b1=KVB,KVB+24576
    a(f"s_mul_i32 s46, s{TG}, {b1-b0}")
    a(f"s_add_u32 s46, s46, {b0}")
    a(f"s_mul_i32 s47, s{KS}, 6144")
    a("s_add_u32 s47, s47, s46")
    a(f"v_add_u32 v24, s47, v{VL16}")
    for j in (1,2,3):
        a(f"s_xor_b32 s47, s{KS}, {j}")
        a("s_mul_i32 s47, s47, 6144")
        a("s_add_u32 s47, s47, s46")
        a(f"v_add_u32 v{24+j}, s47, v{VL16}")
    RES=VRES if k3 else 16; ACC=32; AF=64; BF=96
    RB_=(16 if P5_REG else 28) if not k3 else 7
    NREG=9; AREG=160
    if k3:
        a(f"s_mul_i32 s44, s89, {S*8}")
        a(f"s_lshl_b32 s47, s{SW}, 9")
        a(f"s_add_u32 s47, s47, {MISC+1024}")
        a("v_lshlrev_b32 v28, 3, v1")
        a("v_add_u32 v28, s47, v28")
        a(f"s_lshl_b32 s47, s{TG}, 11")
        a(f"s_add_u32 s47, s47, {MISC+1024}")
        a("v_and_b32 v29, 31, v1")
        a("v_lshlrev_b32 v29, 3, v29")
        a("v_add_u32 v29, s47, v29")
        a("s_lshl_b32 s47, s40, 8")
        a("s_add_u32 s44, s44, s47")
        a("v_lshlrev_b32 v14, 3, v1")
        a("v_mov_b32 v15, 0x40000000")
        a("v_cmp_gt_u32 vcc, 32, v1")
        a("s_nop 1")
        a("v_cndmask_b32 v14, v15, v14, vcc")
        a(f"s_lshl_b32 s47, s{SI}, 2")
        a("s_add_u32 s34, s74, s47")
        a(f"s_add_u32 s34, s34, {F3}")
        a("s_lshr_b32 s46, s88, 1")
        a("s_lshl_b32 s46, s46, 6")
        a(f"s_add_u32 s46, s46, {F2}")
        a("s_mov_b32 s47, 0xffff0000")
        run_pending()
        poll(a,VL4,"s46",0xffff,0,"w2")
    else:
        run_pending()
        a(f"buffer_load_dwordx4 {v(RES,4)}, v{VL16}, s[52:55], s45 offen"); vm.issue("res")
        if P5_REG:
            for n in range(15,19): wd_dma(a,n,vm)
            for n in range(NREG):
                ga=p5_group_addr(n); hi=ga>>16; o=ga&0xffff; r0=8+2*hi; b=AREG+8*n
                for sl in range(2):
                    a(f"ds_read_b64_tr_b16 {v(b+4*sl,2)}, v{r0+sl} offset:{o}")
                    a(f"ds_read_b64_tr_b16 {v(b+4*sl+2,2)}, v{r0+sl} offset:{o+512}")
                if n%3==2: a("s_waitcnt lgkmcnt(0)")
            a("s_barrier")
            for n in range(19,28): wd_dma(a,n,vm)
        a(f"s_add_u32 s46, s74, {F4}")
        a("s_mov_b32 s47, 0xffff0000")
        poll(a,VL4,"s46",0x0fffffff,0,"w4")
    def bload(n):
        a("s_add_u32 s46, s42, 4096")
        a(f"buffer_load_dwordx4 {v(BF+4*(n%RB_),4)}, v{VL16}, s[48:51], s42 offen sc1"); vm.issue(("B",n))
        a("s_cmp_eq_u32 s46, s43")
        a("s_cselect_b32 s42, s41, s46")
    def inreg(n): return (not k3) and P5_REG and n<NREG
    def aread(n):
        if inreg(n): return
        ga = UB+8192*n if k3 else p5_group_addr(n)
        hi=ga>>16; o=ga&0xffff
        r0=8+2*hi
        b=AF+8*(n%2)
        for sl in range(2):
            a(f"ds_read_b64_tr_b16 {v(b+4*sl,2)}, v{r0+sl} offset:{o}"); lg.issue(("A",n))
            a(f"ds_read_b64_tr_b16 {v(b+4*sl+2,2)}, v{r0+sl} offset:{o+512}"); lg.issue(("A",n))
    LA0=7 if k3 else E('P5_LA0',6)
    for n in range(LA0): bload(n)
    nb=LA0
    if k3:
        for c in range(P2_CH,3):
            for m in range(2): gu_dma(a,c,m,vm)
    aread(0)
    pend=[]
    NB1=15; NB2=NRES
    for n in range(NST):
        if n+1<NST:
            if not k3 and n+1==NB1:
                vm.wait(("wd",NRES-1 if not P5_REG else 27)); a("s_barrier")
            if not k3 and n+1==NB2:
                if not P5_REG: vm.wait(("wd",27))
                a("s_barrier")
            aread(n+1)
        vm.wait(("B",n)); lg.wait(("A",n))
        for sl in range(2):
            cin="0" if n==0 else v(ACC+16*sl,16)
            a(f"v_mfma_f32_32x32x16_bf16 {v(ACC+16*sl,16)}, {v((AREG+8*n if inreg(n) else AF+8*(n%2))+4*sl,4)}, {v(BF+4*(n%RB_),4)}, {cin}")
        for _ in range(E('P5_BPS',1)):
            if nb<NST and nb-n<=E('P5_LAM',10): bload(nb); nb+=1
        if STAMP==1 and n in (0,8,18): lg.waitall(); st(a,f"{tag}_n{n}")
        if not k3 and not P5_REG:
            if n==3: pend=list(range(NB1,NRES))
            if n==8:
                a("s_barrier")
                pend+=list(range(NRES,28))
            for _ in range(1 if n<8 else 2):
                if pend: wd_dma(a,pend.pop(0),vm)
    st(a,tag+"_mfma")
    a("s_nop 7")
    a("s_nop 3")
    for j in (1,2,3):
        for q in range(2): a(f"ds_write_b128 v24, {v(ACC+8*j+4*q,4)} offset:{(j-1)*2048+q*1024}")
    vm.wait("res")
    UBr=AF
    for d_ in range(4):
        a(f"v_lshlrev_b32 v{UBr+2*d_}, 16, v{RES+d_}")
        a(f"v_and_b32 v{UBr+2*d_+1}, s47, v{RES+d_}")
    for d_ in range(4):
        a(f"v_pk_add_f32 {v(ACC+2*d_,2)}, {v(ACC+2*d_,2)}, {v(UBr+2*d_,2)}")
    a("s_waitcnt lgkmcnt(0)")
    a("s_barrier")
    st(a,tag+"_red")
    PR=BF
    for j in (1,2,3):
        for q in range(2): a(f"ds_read_b128 {v(PR+8*j+4*q,4)}, v{24+j} offset:{(j-1)*2048+q*1024}")
    for j in (1,2,3):
        a(f"s_waitcnt lgkmcnt({2*(3-j)})")
        for d_ in range(4):
            a(f"v_pk_add_f32 {v(ACC+2*d_,2)}, {v(ACC+2*d_,2)}, {v(PR+8*j+2*d_,2)}")
    OB=16
    for d_ in range(4): a(f"v_cvt_pk_bf16_f32 v{OB+d_}, v{ACC+2*d_}, v{ACC+2*d_+1}")
    if k3:
        hstore(a,[f"buffer_store_dwordx4 {v(OB,4)}, v{VL16}, s[56:59], s45 offen"])
        a("v_mov_b32 v22, 0x3f803f80")
        a("v_mov_b32 v20, 0")
        a("v_mov_b32 v21, 0")
        for d_ in range(4):
            a(f"v_dot2c_f32_bf16 v20, v{OB+d_}, v22")
            a(f"v_dot2c_f32_bf16 v21, v{OB+d_}, v{OB+d_}")
        a("s_nop 2")
        a("ds_write_b64 v28, v[20:21]")
        a("s_waitcnt lgkmcnt(0)")
        a("s_barrier")
        a(f"s_cmp_lg_u32 s{KS}, 0")
        a(f"s_cbranch_scc1 {P('p3_nost')}")
        for q in range(8): a(f"ds_read_b64 {v(32+2*q,2)}, v29 offset:{256*q}")
        a("s_waitcnt lgkmcnt(0)")
        for q in (0,2,4,6): a(f"v_pk_add_f32 {v(32+2*q,2)}, {v(32+2*q,2)}, {v(34+2*q,2)}")
        a("v_pk_add_f32 v[32:33], v[32:33], v[36:37]")
        a("v_pk_add_f32 v[40:41], v[40:41], v[44:45]")
        a("v_pk_add_f32 v[32:33], v[32:33], v[40:41]")
        hstore(a,[f"buffer_store_dwordx2 v[32:33], v14, s[60:63], s44 offen"])
        a.label(P('p3_nost'))
        PEND.append(lambda: signal(a,34,"s3"))
        if not HOIST: run_pending()
    else:
        a(f"buffer_store_dwordx4 {v(OB,4)}, v249, s[56:59], s73 offen"+os.environ.get("OUTF",""))

def kb_phase4(a):
    vm=Cnt(a,"vmcnt"); lg=Cnt(a,"lgkmcnt")
    srd(a,SRD_WD,PWD,PWD+1,F*D*2)
    a(f"s_mul_i32 s79, s{S_WDROT}, {64*896}")
    a(f"s_add_u32 s79, s79, s{S_WD}")
    a(f"s_add_u32 s75, s{S_WD}, {28*64*896}")
    a("v_lshrrev_b32 v4, 5, v1")
    a("v_bfe_u32 v5, v1, 2, 2")
    a("v_lshl_add_u32 v9, v4, 3, v5")
    a("v_lshlrev_b32 v9, 7, v9")
    a("v_bfe_u32 v10, v1, 4, 1")
    a("v_and_b32 v11, 1, v1")
    a("v_lshl_add_u32 v9, v11, 4, v9")
    a("v_bfe_u32 v11, v1, 1, 1")
    a("v_lshl_add_u32 v9, v11, 3, v9")
    a("v_lshrrev_b32 v5, 1, v5")
    a("v_lshl_add_u32 v5, v10, 1, v5")
    a("v_lshl_add_u32 v9, v5, 5, v9")
    a("v_lshl_add_u32 v12, v10, 13, v9")
    for t in range(1,4): a(f"v_xor_b32 v{12+t}, {32*t}, v12")
    a(f"v_add_u32 v25, {KVB}, v12")
    a("v_xor_b32 v26, 32, v25")
    a("v_xor_b32 v27, 64, v25")
    a("v_xor_b32 v29, 96, v25")
    a("v_and_b32 v17, 31, v1")
    a("v_lshlrev_b32 v17, 3, v17")
    a(f"v_mul_u32_u24 v16, {S*8}, v4")
    a("v_add_u32 v17, v17, v16")
    a("v_lshlrev_b32 v28, 5, v4")
    a(f"s_lshl_b32 s56, s{SX}, 3")
    a(f"s_add_u32 s56, s56, s{SW}")
    a(f"s_mul_i32 s57, s56, {28*1024}")
    a(f"s_add_u32 s54, s57, {7*4096}")
    a(f"s_mul_i32 s55, s89, {4096 if ROT4 else 0}")
    a("s_add_u32 s55, s55, s57")
    a("s_lshl_b32 s58, s56, 8")
    a(f"s_mul_i32 s59, s56, {112*1024}")
    a(f"s_lshl_b32 s60, s{SI}, 12")
    a("s_add_u32 s59, s59, s60")
    a(f"s_lshl_b32 s60, s{SI}, 8")
    a(f"s_add_u32 s61, s60, {F*4}")
    srd(a,36,PWS,PWS+1,SZ_H,WS_H)
    srd(a,40,PWS,PWS+1,SZ_QA,WS_QA)
    srd(a,44,PWS,PWS+1,SZ_ST2,WS_ST2)
    srd(a,48,PWS,PWS+1,SZ_CS,WS_CS)
    a(f"s_lshl_b32 s35, s{SI}, 2")
    a("s_add_u32 s35, s35, s74")
    a(f"s_add_u32 s35, s35, {F4}")
    a(f"s_add_u32 s62, s74, {F3}")
    a(f"v_mul_u32_u24 v16, {FN-F3}, v4")
    a(f"v_add_u32 v16, v16, v{VL4}")
    if CS_KB:
        a(f"s_lshr_b32 s63, s{SI}, 1")
        a("s_lshl_b32 s63, s63, 2")
        a(f"s_add_u32 s63, s63, {FC}")
        a("s_sub_u32 s63, s63, s62")
        a("v_mov_b32 v18, s63")
        a(f"v_add_u32 v19, {14*4}, v18")
        a("v_cmp_eq_u32 vcc, 28, v1")
        a("s_nop 1")
        a("v_cndmask_b32 v16, v16, v18, vcc")
        a("v_cmp_eq_u32 vcc, 29, v1")
        a("s_nop 1")
        a("v_cndmask_b32 v16, v16, v19, vcc")
    a(f"s_cmp_eq_u32 s{SX}, 7")
    a("s_cselect_b32 s63, 0, -1")
    run_pending()
    for m in range(2): gu_dma(a,3,m)
    poll(a,16,"s62",0x3fffffff if CS_KB else 0x0fffffff,"s63","w3")
    BFR=64; ACC=176; AF=32; STR=240
    def hb(c,s_):
        def f():
            if s_==0 and c>0:
                a("s_add_u32 s55, s55, 4096")
                a("s_cmp_eq_u32 s55, s54")
                a("s_cselect_b32 s55, s57, s55")
            if E('NOH',0): return
            a(f"buffer_load_dwordx4 {v(BFR+16*c+4*s_,4)}, v{VL16}, s[36:39], s55 offen offset:{1024*s_}"); vm.issue(("h",c,s_))
        return f
    hq=[hb(c,s_) for c in range(7) for s_ in range(4)]
    NPRE=E('P4_NPRE',6)
    for f in hq[:NPRE]: f()
    steps=[(c,s_,t) for c in range(5) for s_ in range(4) for t in range(4)]
    steps+=[(c,s_,t) for t in range(4) for c in (5,6) for s_ in range(4)]
    NS=len(steps); PF=6
    def rd(i):
        c,s_,t=steps[i]
        b=AF+4*(i%8); o=CH(c)+s_*2048
        ar=12+t
        if o>=KVB: o-=KVB; ar=(25,26,27,29)[t]
        a(f"ds_read_b64_tr_b16 {v(b,2)}, v{ar} offset:{o}"); lg.issue(("A",i))
        a(f"ds_read_b64_tr_b16 {v(b+2,2)}, v{ar} offset:{o+512}"); lg.issue(("A",i))
    fill={i:[] for i in range(NS)}
    HSP=float(os.environ.get('P4_HSP','3'))
    for k,f in enumerate(hq[NPRE:]): fill[int(1+HSP*k)].append(f)
    for sl in range(4):
        def f(sl=sl):
            a(f"s_add_u32 s62, s58, {sl*2*S*8}")
            a(f"buffer_load_dwordx2 {v(STR+2*sl,2)}, v17, s[44:47], s62 offen"); vm.issue("st")
        fill[2+3*sl].append(f)
    for k in range(6): fill[E('GU0',3)+E('GUS',6)*k].append(lambda k=k: gu_dma(a,4+k//2,k%2,vm))
    def atouch():
        a("v_and_b32 v30, 31, v1")
        a("v_lshlrev_b32 v30, 7, v30")
        a(f"s_cmp_ge_u32 s{SI}, {0 if E('ATALL',1) else 21}")
        a("s_cselect_b32 s62, s59, 0x40000000")
        a("buffer_load_dword v31, v30, s[40:43], s62 offen"+os.environ.get("ATF"," sc1")); vm.issue("t")
    if TOUCH: fill[E('P4_AT',36)].append(atouch)
    if CS_KB: fill[5].append(lambda: csdma(a,vm))
    def stats_math():
        vm.wait("st")
        for sl in range(1,4):
            a(f"v_add_f32 v{STR}, v{STR}, v{STR+2*sl}")
            a(f"v_add_f32 v{STR+1}, v{STR+1}, v{STR+2*sl+1}")
        a(f"v_mov_b32 v18, v{STR}")
        a(f"v_mov_b32 v19, v{STR+1}")
        a("s_nop 1")
        a(f"v_permlane32_swap_b32 v18, v{STR}")
        a(f"v_permlane32_swap_b32 v19, v{STR+1}")
        a(f"v_add_f32 v18, v18, v{STR}")
        a(f"v_add_f32 v19, v19, v{STR+1}")
        a(f"v_mul_f32 v18, {f32bits(1.0/D)}, v18")
        a(f"v_mul_f32 v19, {f32bits(1.0/D)}, v19")
        a("v_fma_f32 v19, -v18, v18, v19")
        a("v_max_f32 v19, 0, v19")
        a(f"v_add_f32 v24, {f32bits(1e-5)}, v19")
        a("v_rsq_f32 v20, v24")
        a("v_sub_f32 v22, 0, v18")
        a(f"v_mul_f32 v20, {f32bits(-LOG2E)}, v20")
    fill[40].append(stats_math)
    def rdcs(t):
        CS=64+16*t
        for q,o in enumerate((64*t,64*t+16,256+64*t,256+64*t+16)):
            a(f"ds_read_b128 {v(CS+4*q,4)}, v28 offset:{MISC+o}"); lg.issue(("cs",t))
    for t in range(4): fill[70+2*t].append(lambda t=t: rdcs(t))
    for n in range(NEARLY): fill[42+6*n].append(lambda n=n: wd_dma(a,n,vm))
    def epi_ops(t):
        CS=64+16*t; T0=CS; OB=CS+8
        A0=ACC+16*t
        ops=[]
        ops.append(lambda: a("s_nop 3"))
        for r in range(8): ops.append(lambda r=r: a(f"v_fmac_f32 v{A0+r}, v22, v{CS+r}"))
        for r in range(8): ops.append(lambda r=r: a(f"v_mul_f32 v{T0+r}, v20, v{A0+r}"))
        for r in range(8):
            ops.append(lambda r=r: a(f"v_exp_f32 v{T0+r}, v{T0+r}"))
            ops.append(lambda r=r: a(f"v_fmac_f32 v{A0+8+r}, v22, v{CS+8+r}"))
        for r in range(8): ops.append(lambda r=r: a(f"v_fma_f32 v{T0+r}, v{T0+r}, v24, v24"))
        for r in range(8):
            ops.append(lambda r=r: a(f"v_rcp_f32 v{T0+r}, v{T0+r}"))
            ops.append(lambda r=r: a(f"v_mul_f32 v{A0+r}, v{A0+r}, v{A0+8+r}"))
        for r in range(8): ops.append(lambda r=r: a(f"v_mul_f32 v{A0+r}, v{A0+r}, v{T0+r}"))
        for p in range(4): ops.append(lambda p=p: a(f"v_cvt_pk_bf16_f32 v{OB+p}, v{A0+2*p}, v{A0+2*p+1}"))
        def stv():
            hstore(a,[f"buffer_store_dwordx4 {v(OB,4)}, v{VL16}, s[40:43], s59 offen offset:{1024*t}"]); vm.issue("out")
        ops.append(stv)
        return ops
    tail_ops=[]
    for t in range(4):
        ops=epi_ops(t)
        base=80+8*t
        if t<3:
            nb=base+8
            per=-(-len(ops)//7)
            for k,f in enumerate(ops): fill[nb+1+k//per].append(f)
        else: tail_ops=ops
    fill[80].insert(0,lambda: a("s_barrier"))
    for n in range(NEARLY,15): fill[81+E('WDSP',1)*(n-NEARLY)].append(lambda n=n: wd_dma(a,n,vm))
    for i in range(PF): rd(i)
    landed=2
    for i in range(NS):
        c,s_,t=steps[i]
        vm.wait(("h",c,s_))
        lg.wait(("A",i))
        cin="0" if (c==0 and s_==0) else v(ACC+16*t,16)
        a(f"v_mfma_f32_32x32x16_bf16 {v(ACC+16*t,16)}, {v(AF+4*(i%8),4)}, {v(BFR+16*c+4*s_,4)}, {cin}")
        for f in fill[i]: f()
        if i+PF<NS:
            nc=steps[i+PF][0]
            if nc>landed:
                tgt = nc if nc<5 else 6
                vm.wait(("W",tgt))
                if not E('NOBAR',0): a("s_barrier")
                landed=tgt
            rd(i+PF)
        if STAMP==1 and i in (0,15,31,47,63,79,95,111): lg.waitall(); st(a,f"p4_i{i}")
        if STAMP==2 and i in (79,111): lg.waitall(); st(a,f"p4_i{i}")
    a("s_nop 7")
    a("s_nop 1")
    for f in tail_ops: f()
    a("s_nop 1")
    PEND.append(lambda: signal(a,35,"s4"))
    if not HOIST: run_pending()

def gen_kb(name):
    KN[0]="kb"
    a=Asm(); prologue(a,name)
    if E('PRIO',0):
        a(f"s_cmp_lt_u32 s{SW}, 4")
        a(f"s_cbranch_scc1 {P('noprio')}")
        a("s_setprio 1")
        a.label(P('noprio'))
    kb_phase2(a)
    kb_phase35(a,3)
    kb_phase4(a)
    kb_phase35(a,5)
    dump(a)
    a.label(P('end'))
    a("s_endpgm")
    a.label(P('spare2'))
    if CS_KB:
        colsum_ids(a)
        a("s_cmp_ge_u32 s36, 28")
        a(f"s_cbranch_scc1 {P('cs_skip')}")
        colsum_body(a," sc1")
        a("s_waitcnt vmcnt(0)")
        a("s_barrier")
        a(f"s_cmp_lg_u32 s{SW}, 1")
        a(f"s_cbranch_scc1 {P('cs_skip')}")
        a("s_lshl_b32 s60, s36, 2")
        a(f"s_add_u32 s60, s60, {FC}")
        a("v_mov_b32 v2, 1")
        a("v_mov_b32 v3, 0")
        a("s_mov_b64 exec, 1")
        a(f"buffer_store_dword v2, v3, s[{SRD_FLAG}:{SRD_FLAG+3}], s60 offen sc1")
        a("s_mov_b64 exec, -1")
        a.label(P('cs_skip'))
    if SP_TOUCH:
        a("v_lshlrev_b32 v9, 7, v1")
        a(f"s_sub_u32 s36, s{SI}, 28")
        a("s_lshl_b32 s36, s36, 3")
        a(f"s_add_u32 s36, s36, s{SW}")
        a("s_bitcmp1_b32 s36, 0")
        a(f"s_cselect_b32 s{SRD_G}, s{SRD_U}, s{SRD_G}")
        a(f"s_cselect_b32 s{SRD_G+1}, s{SRD_U+1}, s{SRD_G+1}")
        a("s_lshr_b32 s37, s36, 1")
        a("s_lshl_b32 s37, s37, 13")
        q0=256*3584//8192
        for i in range(6):
            a(f"s_add_u32 s38, s37, {(q0+16*i)*8192}")
            a(f"buffer_load_dword v{30+i}, v9, s[{SRD_G}:{SRD_G+3}], s38 offen")
        srd(a,SRD_WD,PWD,PWD+1,F*D*2)
        a("s_lshl_b32 s37, s36, 13")
        for i in range(7):
            a(f"s_add_u32 s38, s37, {i*32*8192}")
            a(f"buffer_load_dword v{40+i}, v9, s[{SRD_WD}:{SRD_WD+3}], s38 offen")
    if E('WBL2',0):
        a(f"s_cmp_lg_u32 s{SI}, 28")
        a(f"s_cbranch_scc1 {P('nowb')}")
        a(f"s_cmp_lg_u32 s{SW}, 0")
        a(f"s_cbranch_scc1 {P('nowb')}")
        a(f"s_add_u32 s46, s74, {F4}")
        spin(a,VL4,"s46",0x0fffffff,0,"wwb",sleep=16)
        a("buffer_wbl2 sc1")
        a("s_waitcnt vmcnt(0)")
        a.label(P('nowb'))
    dump(a)
    a("s_endpgm")
    return a.text(), kdesc(name,256)

def build(path):
    hdr=open("sequential_preLN__sliding_block__swiglu_ffn__prompt.s.ref").read().split("; Override launch")[0]
    ta,da=gen_ka("ka_kernel"); tb,db=gen_kb("kb_kernel")
    L=[hdr.rstrip(), f"; @launch kernel=ka_kernel grid=({NWG},1,1) block=({THREADS},1,1) lds=155648",
       f"; @launch kernel=kb_kernel grid=({NWG},1,1) block=({THREADS},1,1) lds={LDS}",
       '.amdgcn_target "amdgcn-amd-amdhsa--gfx950"\n.text', ta, tb, '.section .rodata,"a"', da, db]
    open(path,"w").write("\n".join(L)+"\n")
    if STAMP: open(path+".names","w").write(" ".join(STN))
if __name__=="__main__":
    build(sys.argv[1])
```

```python
from common import *
import sys
NWG=256; THREADS=512; LDS=163840
WS_FLAG=0x1300000; SZ_FLAG=8192
FID=0; F2=1024; F3=2048; F4=3072
WS_ST2=0x1210000; SZ_ST2=7*S*8
PX,PWQKV,PWO,PBX,PWG,PWU,PWD,POUT,PDBG,PWS=4,6,8,10,12,14,16,18,20,22
SW,SX,SI=24,25,26
SMODE=27; SXC=3
SRD_FLAG=28
UB=57344; KVB=114688
SPIN_MAX=200000
NEG=f32bits(-1e30)
E=lambda k,d: int(os.environ.get(k,str(d)))
FORCE_SLOW=E('FORCE_SLOW',0); P1_ROT=E('P1_ROT',3); CS_DEPTH=E('CS_DEPTH',4); SLEEP2=E('SLEEP2',1); NOW=E('NOW',0)
CS_KB=E('CS_KB',0); FC=5120; XBAR=E('XBAR',1); XTR=E('XTR',1); EARLYPF=E('EARLYPF',0); LATEB=E('LATEB',0); TMC=E('TMC',2); P3_LAST=E('P3_LAST',2); S3_LAST=E('S3_LAST',3); HOIST=E('HOIST',0); P5_REG=E('P5_REG',1); W1LATE=E('W1LATE',1); KA_WPRE=E('KA_WPRE',0); KA_WMID=E('KA_WMID',3); KA_TOUCH_AT=E('KA_TOUCH_AT',4); TOUCH=E('TOUCH',1); P2_CH=E('P2_CH',2); SP_TOUCH=E('SP_TOUCH',1); ROT4=E('ROT4',1); ROTB=E('ROTB',1)
TBS=114688; SZ_QA=64*TBS; WS_QA=WS_ACT
FN=4096
KN=["ka"]
def P(name): return f"L_{KN[0]}_{name}"
WS_DBG=0x1400000
STN=[]
def st(a,name,rt=False):
    if not STAMP: return
    name=KN[0]+"."+name
    if name not in STN: STN.append(name)
    i=[n for n in STN if n.startswith(KN[0])].index(name)
    a(f"s_mem{'real' if rt else ''}time s[64:65]")
    a("s_waitcnt lgkmcnt(0)")
    a(f"v_writelane_b32 v255, s64, {i}")
def dump(a):
    if not STAMP: return
    a("s_waitcnt vmcnt(0)")
    st(a,"end"); st(a,"rt1",True)
    a("s_getreg_b32 s64, hwreg(HW_REG_XCC_ID)")
    a("v_writelane_b32 v255, s64, 62")
    a("s_getreg_b32 s64, hwreg(HW_REG_HW_ID)")
    a("v_writelane_b32 v255, s64, 63")
    srd(a,48,PWS,PWS+1,2*256*8*256,WS_DBG)
    a("v_lshlrev_b32 v2, 2, v0")
    a("s_lshl_b32 s36, s2, 11")
    if KN[0]=="kb": a(f"s_add_u32 s36, s36, {256*2048}")
    a("buffer_store_dword v255, v2, s[48:51], s36 offen")
_uid=[0]
def hstore(a, instrs):
    _uid[0]+=1; u=_uid[0]
    a(f"s_cmp_eq_u32 s{SMODE}, 0")
    a(f"s_cbranch_scc1 L_hs{u}a")
    for i in instrs: a(i)
    a(f"s_branch L_hs{u}b")
    a.label(f"L_hs{u}a")
    for i in instrs: a(i+" sc1")
    a.label(f"L_hs{u}b")
def signal(a, off_sgpr, tag):
    st(a,tag+"_pre")
    a("s_waitcnt vmcnt(0)")
    a("s_barrier")
    st(a,tag+"_bar")
    a(f"s_cmp_lg_u32 s{SW}, 1")
    a(f"s_cbranch_scc1 {P(tag+'_nosig')}")
    a("v_mov_b32 v2, 1")
    a("v_mov_b32 v3, 0")
    a("s_mov_b64 exec, 1")
    hstore(a,[f"buffer_store_dword v2, v3, s[{SRD_FLAG}:{SRD_FLAG+3}], s{off_sgpr} offen"])
    a("s_mov_b64 exec, -1")
    a.label(P(tag+'_nosig'))
def spin(a, voff, soff, mask_lo, mask_hi, tag, vd=2, sleep=None):
    a(f"s_mov_b32 exec_lo, {mask_lo}")
    a(f"s_mov_b32 exec_hi, {mask_hi}")
    a("s_mov_b32 s101, 0")
    a.label(P(tag+'_pl'))
    a(f"buffer_load_dword v{vd}, v{voff}, s[{SRD_FLAG}:{SRD_FLAG+3}], {soff} offen sc1")
    a("s_add_u32 s101, s101, 1")
    a("s_waitcnt vmcnt(0)")
    a(f"v_cmp_eq_u32 vcc, 0, v{vd}")
    a(f"s_cmp_gt_u32 s101, {SPIN_MAX}")
    a(f"s_cbranch_scc1 {P(tag+'_pd')}")
    a("s_nop 3")
    a(f"s_cbranch_vccz {P(tag+'_pd')}")
    a(f"s_sleep {SLEEP2 if sleep is None else sleep}")
    a(f"s_branch {P(tag+'_pl')}")
    a.label(P(tag+'_pd'))
    a("s_mov_b64 exec, -1")
def poll(a, voff, soff, mask_lo, mask_hi, tag):
    st(a,tag+"_pre")
    a(f"s_cmp_lg_u32 s{SW}, 0")
    a(f"s_cbranch_scc1 {P(tag+'_pw')}")
    spin(a,voff,soff,mask_lo,mask_hi,tag)
    a.label(P(tag+'_pw'))
    a("s_barrier")
    st(a,tag)
def rot_idx(a, sd, n, srot, mod):
    a(f"s_add_u32 s{sd}, s{srot}, {n}")
    a(f"s_sub_u32 s100, s{sd}, {mod}")
    a(f"s_cmp_ge_u32 s{sd}, {mod}")
    a(f"s_cselect_b32 s{sd}, s100, s{sd}")
def prologue(a,name):
    kstart(a,name)
    a(f"s_cmp_ge_u32 s2, {NWG}")
    a(f"s_cbranch_scc1 {P('end')}")
    if STAMP: a("v_mov_b32 v255, 0")
    st(a,"rt0",True); st(a,"start")
    a("s_load_dwordx16 s[4:19], s[0:1], 0")
    a("s_load_dwordx4 s[20:23], s[0:1], 64")
    a("v_and_b32 v1, 63, v0")
    a("v_lshrrev_b32 v2, 6, v0")
    a(f"s_and_b32 s{SX}, s2, 7")
    a(f"v_readfirstlane_b32 s{SW}, v2")
    a(f"s_lshr_b32 s{SI}, s2, 3")
    sdiv(a,92,89,SI,7,93)
    a(f"s_lshl_b32 s88, s{SX}, 2")
    a("s_add_u32 s88, s88, s92")

def colsum_ids(a):
    a(f"s_sub_u32 s36, s{SI}, 28")
    a("s_lshl_b32 s36, s36, 3")
    a(f"s_add_u32 s36, s36, s{SX}")
    sdiv(a,37,38,36,14,39)
    a("v_lshrrev_b32 v3, 4, v1")
    a(f"s_lshl_b32 s39, s{SW}, 2")
    a("v_add_u32 v3, s39, v3")
    a("v_mul_u32_u24 v4, 3584, v3")
    a("v_and_b32 v5, 15, v1")
    a("v_lshl_add_u32 v4, v5, 4, v4")
def colsum_body(a, stf):
    a("s_cmp_eq_u32 s37, 0")
    a(f"s_cselect_b32 s40, s{PWG}, s{PWU}")
    a(f"s_cselect_b32 s41, s{PWG+1}, s{PWU+1}")
    srd(a,48,40,41,D*F*2)
    srd(a,52,PWS,PWS+1,SZ_CS,WS_CS)
    a("s_lshl_b32 s42, s38, 8")
    def csl(i):
        a(f"s_add_u32 s43, s42, {i*32*3584}")
        a(f"buffer_load_dwordx4 {v(32+4*i,4)}, v4, s[48:51], s43 offen")
    for i in range(CS_DEPTH): csl(i)
    for r in range(8): a(f"v_mov_b32 v{16+r}, 0")
    for i in range(14):
        a(f"s_waitcnt vmcnt({min(13-i,CS_DEPTH-1)})")
        if i+CS_DEPTH<14: csl(i+CS_DEPTH)
        for d_ in range(4):
            a(f"v_lshlrev_b32 v{24+2*d_}, 16, v{32+4*i+d_}")
            a(f"v_and_b32 v{25+2*d_}, 0xffff0000, v{32+4*i+d_}")
        for d_ in range(4):
            a(f"v_pk_add_f32 {v(16+2*d_,2)}, {v(16+2*d_,2)}, {v(24+2*d_,2)}")
    a("v_lshlrev_b32 v6, 9, v3")
    a("v_lshl_add_u32 v6, v5, 5, v6")
    a("ds_write_b128 v6, v[16:19]")
    a("ds_write_b128 v6, v[20:23] offset:16")
    a("s_waitcnt lgkmcnt(0)")
    a("s_barrier")
    a(f"s_cmp_ge_u32 s{SW}, 2")
    a(f"s_cbranch_scc1 {P('cs_end')}")
    a("v_lshlrev_b32 v6, 2, v0")
    for i in range(32):
        a(f"ds_read_b32 v{32+i}, v6 offset:{512*i}")
        if i%8==7: a("s_waitcnt lgkmcnt(0)")
    a("v_mov_b32 v16, 0")
    a("v_mov_b32 v17, 0")
    for i in range(0,32,2):
        a(f"v_pk_add_f32 v[16:17], v[16:17], {v(32+i,2)}")
    a("v_add_f32 v16, v16, v17")
    a(f"s_mul_i32 s42, s37, {F*4}")
    a("s_lshl_b32 s43, s38, 9")
    a("s_add_u32 s42, s42, s43")
    a("buffer_store_dword v16, v6, s[52:55], s42 offen"+stf)
    a.label(P('cs_end'))

def gen_ka(name):
    KN[0]="ka"
    a=Asm(); prologue(a,name)
    a(f"s_cmp_ge_u32 s{SI}, 28")
    a(f"s_cbranch_scc1 {P('spare')}")
    XB=0; WB=57344; WSLOT=24576
    RB,CB=88,89
    if P1_ROT==0: a("s_mov_b32 s76, 0")
    elif P1_ROT==9: a("s_lshl_b32 s76, s92, 1")
    else:
        a("s_lshr_b32 s76, s92, 1")
        a(f"s_mul_i32 s76, s76, {P1_ROT}")
    for u in range(3):
        a(f"v_add_u32 v9, {64*u}, v1")
        a("v_mul_u32_u24 v10, 2731, v9")
        a("v_lshrrev_b32 v10, 16, v10")
        a("v_mul_u32_u24 v11, 24, v10")
        a("v_sub_u32 v11, v9, v11")
        a("v_lshrrev_b32 v12, 2, v11")
        a("v_bfe_u32 v13, v10, 1, 1")
        a("v_xor_b32 v12, v12, v13")
        a("v_and_b32 v11, 3, v11")
        a("v_lshlrev_b32 v11, 4, v11")
        a("v_lshl_add_u32 v11, v12, 6, v11")
        a("v_mul_u32_u24 v10, 2688, v10")
        a(f"v_add_u32 v{16+u}, v10, v11")
    a(f"s_mul_i32 s40, s{CB}, 384")
    a(f"s_and_b32 s43, s{SW}, 3")
    a(f"s_mul_i32 s44, s43, {16*2688}")
    a("s_add_u32 s44, s44, s40")
    a(f"s_mul_i32 s45, s43, 6144")
    a(f"s_add_u32 s45, s45, {WB}")
    for c in range(7): rot_idx(a,66+c,c,76,7)
    def w_ops(c,vm):
        slot=c%4
        a(f"s_mul_i32 s47, s{66+c}, {64*2688}")
        a("s_add_u32 s47, s47, s44")
        a(f"s_add_u32 s46, s47, {8*2688}")
        for u in range(6):
            a(f"s_add_u32 m0, s45, {slot*WSLOT+u*1024}")
            a("s_nop 0")
            a(f"buffer_load_dwordx4 v{16+u%3}, s[52:55], s{47 if u<3 else 46} offen lds"); vm.issue(("W",c))
    a(f"s_mul_i32 s41, s{SW}, {8*2688}")
    a("s_add_u32 s41, s41, s40")
    a(f"s_mul_i32 s42, s{SW}, 3072")
    a(f"s_add_u32 s42, s42, {WB}")
    def w8(c,vm):
        a(f"s_mul_i32 s47, s{66+c}, {64*2688}")
        a("s_add_u32 s47, s47, s41")
        for u in range(3):
            a(f"s_add_u32 m0, s42, {(c%4)*WSLOT+u*1024}")
            a("s_nop 0")
            a(f"buffer_load_dwordx4 v{16+u}, s[52:55], s47 offen lds"); vm.issue(("W",c))
    a("v_lshrrev_b32 v5, 3, v1")
    a(f"s_add_u32 s38, s{SW}, s{CB}" if XTR else f"s_mov_b32 s38, s{SW}")
    a("s_and_b32 s38, s38, 7")
    a("s_lshl_b32 s38, s38, 3")
    a("v_add_u32 v5, s38, v5")
    a("v_mul_u32_u24 v6, 896, v5")
    a("v_and_b32 v7, 7, v1")
    a("v_lshl_add_u32 v6, v7, 4, v6")
    a(f"s_mul_i32 s38, s{RB}, {64*896}")
    a("v_bfe_u32 v8, v5, 1, 3")
    a("v_xor_b32 v8, v8, v7")
    a("v_lshlrev_b32 v8, 4, v8")
    a("v_lshl_add_u32 v8, v5, 7, v8")
    for i in range(7):
        a(f"s_lshl_b32 s{78+i}, s{66+i}, 7")
        a(f"s_add_u32 s{78+i}, s{78+i}, s38")
    a("v_mov_b32 v19, 0x3f803f80")
    a("s_mov_b32 s39, 0xffff0000")
    for r in range(20,24): a(f"v_mov_b32 v{r}, 0")
    a("s_waitcnt lgkmcnt(0)")
    st(a,"kernarg")
    srd(a,48,PX,PX+1,S*D*2)
    vm=Cnt(a,"vmcnt")
    XR=32; FR=96
    for i in range(7):
        a(f"buffer_load_dwordx4 {v(XR+4*i,4)}, v6, s[48:51], s{78+i} offen"); vm.issue(("x",i))
    srd(a,52,PWQKV,PWQKV+1,D*NQKV*2)
    for c in range(KA_WPRE): w8(c,vm)
    for i in range(7):
        vm.wait(("x",i))
        for d_ in range(4):
            x=XR+4*i+d_
            a(f"v_dot2c_f32_bf16 v{20+(d_&1)}, v{x}, v19")
            a(f"v_dot2c_f32_bf16 v{22+(d_&1)}, v{x}, v{x}")
    st(a,"x")
    vmC=Cnt(a,"vmcnt"); vmL=Cnt(a,"vmcnt")
    if XBAR: a("s_barrier")
    a(f"s_cmp_lt_u32 s{SW}, 4")
    a(f"s_cbranch_scc1 {P('nw01')}")
    w_ops(0,vmC)
    if not W1LATE: w_ops(1,vmC)
    a.label(P('nw01'))
    a("v_add_f32 v20, v20, v21")
    a("v_add_f32 v22, v22, v23")
    for dpp in ("quad_perm:[1,0,3,2]","quad_perm:[2,3,0,1]","row_half_mirror"):
        a("s_nop 1")
        for r in (20,22):
            a(f"v_add_f32_dpp v{r}, v{r}, v{r} {dpp} row_mask:0xf bank_mask:0xf")
    m=20; q=22
    a(f"v_mul_f32 v{m}, {f32bits(1.0/D)}, v{m}")
    a(f"v_mul_f32 v{q}, {f32bits(1.0/D)}, v{q}")
    a(f"v_fma_f32 v{q}, -v{m}, v{m}, v{q}")
    a(f"v_max_f32 v{q}, 0, v{q}")
    a(f"v_add_f32 v{q}, {f32bits(1e-5)}, v{q}")
    a(f"v_rsq_f32 v{q}, v{q}")
    a("s_nop 0")
    a(f"v_mul_f32 v{m}, v{m}, v{q}")
    a(f"v_sub_f32 v{m}, 0, v{m}")
    for i in range(7):
        fb=FR+8*(i&1)
        for d_ in range(4):
            x=XR+4*i+d_
            a(f"v_lshlrev_b32 v{fb+2*d_}, 16, v{x}")
            a(f"v_and_b32 v{fb+2*d_+1}, s39, v{x}")
        for d_ in range(4):
            a(f"v_pk_fma_f32 {v(fb+2*d_,2)}, {v(fb+2*d_,2)}, {v(q,2)}, {v(m,2)} op_sel_hi:[1,0,0]")
        for d_ in range(4):
            a(f"v_cvt_pk_bf16_f32 v{XR+4*i+d_}, v{fb+2*d_}, v{fb+2*d_+1}")
        a(f"ds_write_b128 v8, {v(XR+4*i,4)} offset:{XB+8192*i}")
    st(a,"ln")
    ops0=list(vmC.ops)
    a(f"s_cmp_ge_u32 s{SW}, 4")
    a(f"s_cbranch_scc1 {P('C')}")
    vm=vmL
    a("s_waitcnt lgkmcnt(0)")
    sched={c:[] for c in range(7)}
    for c in range(7):
        for i in sched[c]: norm(i)
        if sched[c]: a("s_waitcnt lgkmcnt(0)")
        vm.wait(("W",c))
        st(a,f"L{c}")
        a("s_barrier")
        if c+2<7: w_ops(c+2,vm)
        if c==KA_TOUCH_AT:
            srd(a,56,PWS,PWS+1,SZ_QA,WS_QA)
            a("v_lshlrev_b32 v9, 7, v1")
            a("v_mov_b32 v10, 0x40000000")
            a("v_cmp_gt_u32 vcc, 48, v1")
            a(f"s_lshl_b32 s60, s{RB}, 1")
            a("s_lshr_b32 s61, s43, 1")
            a("v_cndmask_b32 v9, v10, v9, vcc")
            a("s_add_u32 s60, s60, s61")
            a(f"s_mul_i32 s60, s60, {TBS}")
            a(f"s_mul_i32 s61, s{CB}, 12288")
            a("s_add_u32 s60, s60, s61")
            a("s_and_b32 s61, s43, 1")
            a("s_mul_i32 s61, s61, 6144")
            a("s_add_u32 s60, s60, s61")
            a("buffer_load_dword v30, v9, s[56:59], s60 offen sc1"); vm.issue("t")
        if c==E('KA_PF_AT',4) and E('KA_PF',0):
            srd(a,56,PWG,PWG+1,D*F*2)
            srd(a,60,PWU,PWU+1,D*F*2)
            a("v_lshrrev_b32 v9, 3, v1")
            a("v_mul_u32_u24 v9, 3584, v9")
            a("v_and_b32 v10, 7, v1")
            a("v_lshl_add_u32 v9, v10, 4, v9")
            a(f"s_mul_i32 s36, s43, {16*3584}")
            a(f"s_lshl_b32 s37, s{SI}, 7")
            a("s_add_u32 s36, s36, s37")
            for k in range(E('KA_PF',0)):
                rot_idx(a,37,k+E('KA_PF0',0),89,7)
                if not ROT4: a(f"s_mov_b32 s37, {k+E('KA_PF0',0)}")
                a(f"s_mul_i32 s37, s37, {64*3584}")
                a("s_add_u32 s37, s37, s36")
                a(f"s_add_u32 s38, s37, {8*3584}")
                for m in range(2):
                    for sr in (37,38):
                        a(f"buffer_load_dwordx4 v[100:103], v9, s[{56+4*m}:{59+4*m}], s{sr} offen sc1"); vm.issue("t")
    dump(a)
    a("s_endpgm")
    a.label(P('C'))
    vm=Cnt(a,"vmcnt"); lg=Cnt(a,"lgkmcnt"); vm.ops=list(ops0)
    if W1LATE: w_ops(1,vm)
    a("s_and_b32 s36, s43, 1")
    a("s_lshr_b32 s37, s43, 1")
    srd(a,56,PWS,PWS+1,SZ_QA,WS_QA)
    a("v_and_b32 v3, 31, v1")
    a("s_lshl_b32 s60, s36, 5")
    a("v_add_u32 v3, s60, v3")
    a("v_lshrrev_b32 v4, 5, v1")
    a("v_bfe_u32 v5, v3, 1, 3")
    a("v_xor_b32 v5, v5, v4")
    a("v_lshlrev_b32 v5, 4, v5")
    a("v_lshl_add_u32 v10, v3, 7, v5")
    for s_ in range(1,4): a(f"v_xor_b32 v{10+s_}, {32*s_}, v10")
    a("v_bfe_u32 v5, v1, 2, 2")
    a("v_lshl_add_u32 v6, v4, 3, v5")
    a("v_mul_u32_u24 v6, 384, v6")
    a("v_bfe_u32 v7, v1, 4, 1")
    a("v_lshl_add_u32 v6, v7, 5, v6")
    a("v_and_b32 v7, 1, v1")
    a("v_lshl_add_u32 v6, v7, 4, v6")
    a("v_bfe_u32 v7, v1, 1, 1")
    a("v_lshl_add_u32 v6, v7, 3, v6")
    a(f"v_add_u32 v6, {WB}, v6")
    a("v_lshrrev_b32 v5, 1, v5")
    a("s_mul_i32 s60, s37, 3")
    for jj in range(3):
        a(f"s_add_u32 s61, s60, {jj}")
        a("v_xor_b32 v7, s61, v5")
        a(f"v_lshl_add_u32 v{20+jj}, v7, 6, v6")
        a(f"v_add_u32 v{24+jj}, {2*WSLOT}, v{20+jj}")
    a(f"s_mul_i32 s60, s{CB}, 192")
    a("s_mul_i32 s61, s37, 96")
    a("s_add_u32 s60, s60, s61")
    a(f"s_lshl_b32 s62, s{RB}, 1")
    a("s_add_u32 s62, s62, s36")
    a(f"s_mul_i32 s62, s62, {TBS}")
    a("s_lshl_b32 s61, s60, 6")
    a("s_add_u32 s62, s62, s61")
    a("s_add_u32 s63, s62, 4096")
    for jj in range(3):
        a(f"s_add_u32 s61, s60, {32*jj}")
        a("s_cmp_lt_u32 s61, 448")
        a(f"s_cselect_b32 s{78+2*jj}, {f32bits(DH**-0.5*LOG2E)}, {f32bits(1.0)}")
        a(f"s_mov_b32 s{79+2*jj}, s{78+2*jj}")
    a("v_lshlrev_b32 v5, 4, v1")
    ACC=32; BFq=96; AFq=112
    NK=28
    def rdB(k):
        c=k//4; s_=k%4; b=k%3
        a(f"ds_read_b128 {v(BFq+4*b,4)}, v{10+s_} offset:{XB+c*8192}"); lg.issue(("f",k,0))
    def rdA(k,jj):
        c=k//4; s_=k%4; slot=c%4; b=k%3
        ab=(20 if slot<2 else 24)+jj
        o=(slot&1)*WSLOT+s_*16*384
        a(f"ds_read_b64_tr_b16 {v(AFq+12*b+4*jj,2)}, v{ab} offset:{o}"); lg.issue(("f",k,jj))
        a(f"ds_read_b64_tr_b16 {v(AFq+12*b+4*jj+2,2)}, v{ab} offset:{o+4*384}"); lg.issue(("f",k,jj))
    vm.wait(("W",0))
    a("s_waitcnt lgkmcnt(0)")
    st(a,"C0")
    a("s_barrier")
    st(a,"B0")
    for k in (0,1):
        rdB(k)
        for jj in range(3): rdA(k,jj)
    for k in range(NK):
        b=k%3
        for jj in range(3):
            lg.wait(("f",k,jj))
            cin="0" if k==0 else v(ACC+16*jj,16)
            a(f"v_mfma_f32_32x32x16_bf16 {v(ACC+16*jj,16)}, {v(AFq+12*b+4*jj,4)}, {v(BFq+4*b,4)}, {cin}")
            if k+2<NK:
                if jj==0:
                    if (k+2)%4==0:
                        vm.wait(("W",(k+2)//4))
                        a("s_barrier")
                    rdB(k+2)
                rdA(k+2,jj)
    st(a,"mfma")
    a("s_nop 7")
    a("s_nop 1")
    OB=160
    for jj in range(3):
        for r in range(8): a(f"v_pk_mul_f32 {v(ACC+16*jj+2*r,2)}, {v(ACC+16*jj+2*r,2)}, s[{78+2*jj}:{79+2*jj}]")
        for r in range(8): a(f"v_cvt_pk_bf16_f32 v{OB+8*jj+r}, v{ACC+16*jj+2*r}, v{ACC+16*jj+2*r+1}")
        sb=62 if jj<2 else 63; o=2048*(jj%2)
        a(f"buffer_store_dwordx4 {v(OB+8*jj,4)}, v5, s[56:59], s{sb} offen offset:{o}")
        a(f"buffer_store_dwordx4 {v(OB+8*jj+4,4)}, v5, s[56:59], s{sb} offen offset:{o+1024}")
    st(a,"epi")
    dump(a)
    a("s_endpgm")
    a.label(P('spare'))
    a(f"s_sub_u32 s36, s{SI}, 28")
    a("s_lshl_b32 s36, s36, 3")
    a(f"s_add_u32 s36, s36, s{SX}")
    sdiv(a,37,38,36,14,39)
    a("v_lshrrev_b32 v3, 4, v1")
    a(f"s_lshl_b32 s39, s{SW}, 2")
    a("v_add_u32 v3, s39, v3")
    a("v_mul_u32_u24 v4, 3584, v3")
    a("v_and_b32 v5, 15, v1")
    a("v_lshl_add_u32 v4, v5, 4, v4")
    a("s_waitcnt lgkmcnt(0)")
    a("s_cmp_lt_u32 s36, 28")
    a(f"s_cbranch_scc1 {P('cs')}")
    a("s_cmp_lg_u32 s36, 31")
    a(f"s_cbranch_scc1 {P('end')}")
    srd(a,SRD_FLAG,PWS,PWS+1,SZ_FLAG,WS_FLAG)
    a("v_lshlrev_b32 v3, 4, v0")
    for r in range(4,8): a(f"v_mov_b32 v{r}, 0")
    a(f"buffer_store_dwordx4 v[4:7], v3, s[{SRD_FLAG}:{SRD_FLAG+3}], 0 offen")
    a("s_endpgm")
    a.label(P('cs'))
    if not CS_KB: colsum_body(a,'')
    dump(a)
    a.label(P('end'))
    a("s_endpgm")
    return a.text(), kdesc(name,256 if STAMP else 192)

def CH(c): return 16384*c if c<3 else (KVB+16384*(c-3) if c<6 else UB)
MISC=49152
NEARLY=5; NRES=19
def p5_group_addr(n):
    if n<5: return UB+16384+8192*n
    if n<19:
        k=n-5; return CH(k//2)+8192*(k%2)
    return p5_group_addr(n-19)
VW=254; VG=252; VU=253; VL16=251; VL4=250; VRES=240
S_GU=94; S_W1K=95; S_WD=78; S_WDROT=93; S_WOROT=77
SRD_G=80; SRD_U=84; SRD_WD=96
def gu_dma(a, c, m, vm=None):
    a(f"s_add_u32 m0, s{S_W1K}, {CH(c)+8192*m}")
    if m==1: a(f"s_add_u32 s92, s90, {64*3584}")
    else: a("s_nop 0")
    if not NOW and not (E('NOGU4',0) and c>=3):
        a(f"buffer_load_dwordx4 v{VG+m}, s[{SRD_G+4*m}:{SRD_G+3+4*m}], s90 offen"+os.environ.get("GUF","")+" lds")
        if vm: vm.issue(("W",c))
    if m==1:
        a("s_cmp_eq_u32 s92, s91")
        a(f"s_cselect_b32 s90, s{S_GU}, s92")
def wd_dma(a, n, vm=None):
    a(f"s_add_u32 m0, s{S_W1K}, {p5_group_addr(n)}")
    a(f"s_add_u32 s92, s79, {64*896}")
    if not NOW and not (E('NOWD4',0) and n<E('NOWD4',0)):
        a(f"buffer_load_dwordx4 v{VW}, s[{SRD_WD}:{SRD_WD+3}], s79 offen lds")
        if vm: vm.issue(("wd",n))
    a("s_cmp_eq_u32 s92, s75")
    a(f"s_cselect_b32 s79, s{S_WD}, s92")

def csdma(a,vm=None):
    srd(a,68,PWS,PWS+1,SZ_CS,WS_CS)
    a(f"s_mul_i32 s66, s{SW}, {F*4}")
    a(f"s_lshl_b32 s67, s{SI}, 8")
    a("s_add_u32 s66, s66, s67")
    a(f"s_min_u32 s67, s{SW}, 2")
    a("s_lshl_b32 s67, s67, 8")
    a(f"s_add_u32 m0, s67, {MISC}")
    a("s_nop 0")
    a(f"buffer_load_dword v{VL4}, s[68:71], s66 offen sc1 lds")
    if vm: vm.issue("cs")

PEND=[]
def run_pending():
    while PEND: PEND.pop(0)()

def kb_phase2(a):
    KB=KVB; VB=KVB+24576
    HD,QB=36,37
    a(f"s_getreg_b32 s{SXC}, hwreg(HW_REG_XCC_ID)")
    a(f"s_lshr_b32 s{HD}, s{SI}, 1")
    a(f"s_and_b32 s38, s{SI}, 1")
    a(f"s_lshl_b32 s{QB}, s{SX}, 1")
    a(f"s_add_u32 s{QB}, s{QB}, s38")
    a(f"s_mul_i32 s40, s{HD}, 7")
    a("s_lshr_b32 s40, s40, 1")
    a(f"s_and_b32 s41, s{HD}, 1")
    a("v_and_b32 v3, 15, v1")
    a("v_lshrrev_b32 v4, 4, v1")
    a("v_lshlrev_b32 v5, 9, v4")
    a("v_lshl_add_u32 v6, v3, 4, v5")
    a("v_and_b32 v7, 1, v4")
    a("v_lshlrev_b32 v7, 3, v7")
    a("v_xor_b32 v7, v7, v3")
    a("v_lshl_add_u32 v7, v7, 4, v5")
    a(f"s_lshl_b32 s42, s{QB}, 3")
    a(f"s_add_u32 s42, s42, s{SW}")
    a("s_lshr_b32 s43, s42, 1")
    a(f"s_mul_i32 s43, s43, {TBS}")
    a("s_and_b32 s44, s42, 1")
    a("s_lshl_b32 s44, s44, 8")
    a("s_add_u32 s43, s43, s44")
    a("s_lshl_b32 s45, s40, 9")
    a("s_add_u32 s46, s43, s45")
    for u in range(3):
        a(f"s_mul_i32 s56, s{SW}, 3")
        a(f"s_add_u32 s56, s56, {u}")
        a(f"s_lshl_b32 s57, s{QB}, 3")
        a("s_add_u32 s57, s57, s56")
        a("s_sub_u32 s57, s57, 16")
        a("s_lshr_b32 s58, s57, 1")
        a(f"s_mul_i32 s58, s58, {TBS}")
        a("s_and_b32 s59, s57, 1")
        a("s_lshl_b32 s59, s59, 8")
        a("s_add_u32 s58, s58, s59")
        a("s_add_u32 s58, s58, s45")
        a("s_cmp_lt_i32 s57, 0")
        a("s_cselect_b32 s58, 0x40000000, s58")
        a(f"s_add_u32 s{66+2*u}, s58, {56*512}")
        a(f"s_add_u32 s{67+2*u}, s58, {112*512}")
    a(f"s_mul_i32 s60, s{SW}, 3072")
    a(f"s_add_u32 s60, s60, {KB}")
    a(f"s_and_b32 s{SXC}, s{SXC}, 15")
    a(f"s_add_u32 s{SXC}, s{SXC}, 1")
    QF=12
    a("s_waitcnt lgkmcnt(0)")
    st(a,"kernarg")
    srd(a,48,PWS,PWS+1,SZ_QA,WS_QA)
    a(f"buffer_load_dwordx4 {v(QF,4)}, v6, s[48:51], s46 offen sc1")
    for u in range(3):
        a(f"s_add_u32 m0, s60, {1024*u}")
        a("s_nop 0")
        a(f"buffer_load_dwordx4 v6, s[48:51], s{66+2*u} offen sc1 lds")
    for u in range(3):
        a(f"s_add_u32 m0, s60, {VB-KB+1024*u}")
        a("s_nop 0")
        a(f"buffer_load_dwordx4 v7, s[48:51], s{67+2*u} offen sc1 lds")
    srd(a,SRD_FLAG,PWS,PWS+1,SZ_FLAG,WS_FLAG)
    a(f"s_lshl_b32 s74, s{SX}, 7")
    a(f"s_lshl_b32 s56, s{SI}, 2")
    a("s_add_u32 s56, s56, s74")
    a(f"s_cmp_eq_u32 s{SW}, 7")
    a("s_cselect_b32 s56, s56, 0x40000000")
    a(f"v_mov_b32 v2, s{SXC}")
    a("v_mov_b32 v8, 0")
    a("s_mov_b64 exec, 1")
    a(f"buffer_store_dword v2, v8, s[{SRD_FLAG}:{SRD_FLAG+3}], s56 offen sc1")
    a("s_mov_b64 exec, -1")
    M0R=16; M16=20
    a("v_lshlrev_b32 v8, 2, v4")
    a(f"v_mov_b32 v9, {NEG}")
    for r in range(4):
        a(f"v_add_u32 v10, {r}, v8")
        a("v_cmp_lt_u32 vcc, v3, v10")
        a("s_nop 1")
        a(f"v_cndmask_b32_e64 v{M0R+r}, v9, 0, vcc")
        a(f"v_cndmask_b32_e64 v{M16+r}, 0, v9, vcc")
    a(f"v_lshlrev_b32 v{VL16}, 4, v1")
    a(f"v_lshlrev_b32 v{VL4}, 2, v1")
    a(f"s_lshl_b32 s{S_W1K}, s{SW}, 10")
    a(f"s_add_u32 s47, s{S_W1K}, {KB}")
    a(f"v_add_u32 v10, s47, v{VL16}")
    a("v_bfe_u32 v24, v1, 2, 2")
    a("v_add_u32 v24, v24, v8")
    a("v_bfe_u32 v25, v1, 1, 1")
    a("v_lshlrev_b32 v26, 3, v25")
    a("v_xor_b32 v24, v24, v26")
    a("v_lshlrev_b32 v24, 4, v24")
    a("v_lshl_add_u32 v24, v25, 8, v24")
    a("v_and_b32 v25, 1, v1")
    a("v_lshl_add_u32 v24, v25, 3, v24")
    a(f"v_add_u32 v24, {VB-KB}, v24")
    a("v_add_u32 v11, s47, v24")
    def setupB():
        a("v_lshrrev_b32 v28, 1, v4")
        a("v_lshlrev_b32 v28, 9, v28")
        a("v_lshl_add_u32 v28, v3, 4, v28")
        a("v_and_b32 v29, 1, v4")
        a("v_lshl_add_u32 v28, v29, 3, v28")
        a("v_add_u32 v29, 1024, v28")
        a("v_mov_b32 v30, 0x40000000")
        a("s_cmp_eq_u32 s41, 0")
        a("s_cselect_b32 s62, 64, 0")
        a("s_cselect_b32 s63, 3, 64")
        a("v_cmp_eq_u32 vcc, s62, v4")
        a("s_nop 1")
        a("v_cndmask_b32 v28, v28, v30, vcc")
        a("v_cmp_eq_u32 vcc, s63, v4")
        a("s_nop 1")
        a("v_cndmask_b32 v29, v29, v30, vcc")
        a(f"s_lshl_b32 s33, s{QB}, 4")
        a(f"s_add_u32 s33, s33, s{HD}")
        a("s_lshl_b32 s33, s33, 2")
        a(f"s_add_u32 s33, s33, {F2}")
        a(f"v_lshrrev_b32 v{VW}, 3, v1")
        a(f"v_mul_u32_u24 v150, 3584, v{VW}")
        a(f"v_mul_u32_u24 v{VW}, 896, v{VW}")
        a("v_bfe_u32 v151, v1, 2, 1")
        a("v_bfe_u32 v152, v1, 4, 1")
        a("v_xor_b32 v151, v151, v152")
        a(f"v_lshl_add_u32 v{VW}, v151, 6, v{VW}")
        a("v_and_b32 v151, 3, v1")
        a(f"v_lshl_add_u32 v{VW}, v151, 4, v{VW}")
        a("v_bfe_u32 v151, v1, 1, 2")
        a("v_xor_b32 v151, v151, v152")
        a("v_and_b32 v152, 1, v1")
        a("v_lshl_add_u32 v150, v152, 4, v150")
        a(f"v_lshl_add_u32 v{VG}, v151, 5, v150")
        a("v_xor_b32 v151, 2, v151")
        a(f"v_lshl_add_u32 v{VU}, v151, 5, v150")
        srd(a,SRD_G,PWG,PWG+1,D*F*2)
        srd(a,SRD_U,PWU,PWU+1,D*F*2)
        srd(a,SRD_WD,PWO,PWO+1,D*D*2)
        a(f"s_mul_i32 s{S_GU}, s{SW}, {8*3584}")
        a(f"s_lshl_b32 s56, s{SI}, 7")
        a(f"s_add_u32 s{S_GU}, s{S_GU}, s56")
        a(f"s_mul_i32 s{S_WD}, s{SW}, {8*896}")
        a("s_lshl_b32 s56, s89, 7")
        a(f"s_add_u32 s{S_WD}, s{S_WD}, s56")
        a(f"s_lshl_b32 s56, s92, 1")
        if ROTB: rot_idx(a,S_WOROT,"s56",89,7)
        else: a(f"s_mov_b32 s{S_WOROT}, s56")
        a("s_mul_i32 s56, s92, 7")
        a("s_lshl_b32 s57, s89, 2")
        if ROTB: rot_idx(a,S_WDROT,"s56",57,28)
        else: a(f"s_mov_b32 s{S_WDROT}, s56")
        a(f"s_cmp_ge_u32 s{SI}, 28")
        a(f"s_cselect_b32 s{S_GU}, 0x40000000, s{S_GU}")
        a(f"s_cselect_b32 s{S_WD}, 0x40000000, s{S_WD}")
        a(f"s_mul_i32 s90, s89, {64*3584 if ROT4 else 0}")
        a(f"s_add_u32 s90, s90, s{S_GU}")
        a(f"s_add_u32 s91, s{S_GU}, {7*64*3584}")
        a(f"s_mul_i32 s79, s{S_WOROT}, {64*896}")
        a(f"s_add_u32 s79, s79, s{S_WD}")
        a(f"s_add_u32 s75, s{S_WD}, {7*64*896}")
        a(f"s_and_b32 s56, s{SW}, 3")
        a(f"s_lshr_b32 s57, s{SW}, 2")
        a("s_lshl_b32 s58, s88, 1")
        a("s_add_u32 s58, s58, s57")
        a(f"s_mul_i32 s58, s58, {32*896}")
        a("s_lshl_b32 s59, s89, 7")
        a("s_add_u32 s58, s58, s59")
        a("s_lshl_b32 s59, s56, 5")
        a("s_add_u32 s73, s58, s59")
        a(f"s_cmp_ge_u32 s{SI}, 28")
        a("s_cselect_b32 s73, 0x40000000, s73")
        a("v_and_b32 v150, 31, v1")
        a("v_mul_u32_u24 v150, 896, v150")
        a("v_lshrrev_b32 v151, 5, v1")
        a("v_lshl_add_u32 v249, v151, 4, v150")
        srd(a,56,PX,PX+1,S*D*2)

    if not LATEB: setupB()
    a("s_waitcnt vmcnt(7)")
    a("s_cmp_eq_u32 s41, 0")
    a(f"s_cbranch_scc0 {P('p2_odd')}")
    a("v_cmp_gt_u32 vcc, 48, v1")
    a("s_nop 1")
    a(f"v_cndmask_b32 v{QF+2}, 0, v{QF+2}, vcc")
    a(f"v_cndmask_b32 v{QF+3}, 0, v{QF+3}, vcc")
    a(f"s_branch {P('p2_qd')}")
    a.label(P('p2_odd'))
    a("v_cmp_le_u32 vcc, 16, v1")
    a("s_nop 1")
    a(f"v_cndmask_b32 v{QF+0}, 0, v{QF+0}, vcc")
    a(f"v_cndmask_b32 v{QF+1}, 0, v{QF+1}, vcc")
    a.label(P('p2_qd'))
    st(a,"setup")
    def kvbar(n):
        a(f"s_waitcnt vmcnt({1+n})")
        a("s_barrier")
        st(a,"kv")
    if not EARLYPF: kvbar(0)
    def wo_dma(n):
        a(f"s_add_u32 m0, s{S_W1K}, {UB+8192*n}")
        a(f"s_add_u32 s92, s79, {64*896}")
        if not NOW: a(f"buffer_load_dwordx4 v{VW}, s[{SRD_WD}:{SRD_WD+3}], s79 offen lds")
        a("s_cmp_eq_u32 s92, s75")
        a(f"s_cselect_b32 s79, s{S_WD}, s92")
    pf=[lambda n=n: wo_dma(n) for n in range(7)]
    pf+=[lambda: a(f"buffer_load_dwordx4 {v(VRES,4)}, v249, s[56:59], s73 offen")]
    pf+=[lambda k=k: gu_dma(a,k//2,k%2) for k in range(2*P2_CH)]
    def htouch():
        srd(a,68,PWS,PWS+1,SZ_H,WS_H)
        a(f"s_lshr_b32 s66, s{SW}, 2")
        a("s_lshl_b32 s67, s88, 1")
        a("s_add_u32 s66, s66, s67")
        a(f"s_mul_i32 s67, s66, {56*512}")
        a("s_lshl_b32 s72, s89, 12")
        a("s_add_u32 s67, s67, s72")
        a(f"s_and_b32 s72, s{SW}, 3")
        a("s_lshl_b32 s72, s72, 10")
        a("s_add_u32 s67, s67, s72")
        a(f"s_cmp_ge_u32 s{SI}, 28")
        a("s_cselect_b32 s67, 0x40000000, s67")
        a(f"buffer_load_dwordx4 v[144:147], v{VL16}, s[68:71], s67 offen sc1")
        srd(a,68,PWS,PWS+1,SZ_ST2,WS_ST2)
        a(f"s_mul_i32 s67, s89, {S*8}")
        a("s_lshl_b32 s66, s66, 8")
        a("s_add_u32 s67, s67, s66")
        a(f"buffer_load_dword v148, v{VL4}, s[68:71], s67 offen sc1")
    if not LATEB:
        if TOUCH: htouch()
        if not CS_KB: csdma(a)
    if EARLYPF:
        for _ in range(EARLYPF): pf.pop(0)()
        kvbar((2 if TOUCH else 0)+(0 if CS_KB else 1)+(0 if NOW else EARLYPF))
    SR=32; KF=100; NB=6
    for t in range(NB):
        a(f"ds_read_b128 {v(KF+4*(t%NB),4)}, v10 offset:{1024*t}")
    for t in range(17):
        outstanding=min(17,t+NB)-t-1
        a(f"s_waitcnt lgkmcnt({outstanding})")
        cin = v(M0R,4) if t==0 else (v(M16,4) if t==16 else "0")
        a(f"v_mfma_f32_16x16x32_bf16 {v(SR+4*t,4)}, {v(KF+4*(t%NB),4)}, {v(QF,4)}, {cin}")
        if t+NB<17:
            a(f"ds_read_b128 {v(KF+4*(t%NB),4)}, v10 offset:{1024*(t+NB)}")
        if t%3==2 and pf and not LATEB: pf.pop(0)()
    VF=100
    def vread(j):
        b=VF+8*(j%3)
        for dt in range(2):
            a(f"ds_read_b64_tr_b16 {v(b+4*dt,2)}, v11 offset:{1024*(2*j)+512*dt}")
            if 2*j+1<17:
                a(f"ds_read_b64_tr_b16 {v(b+4*dt+2,2)}, v11 offset:{1024*(2*j+1)+512*dt}")
    vread(0); vread(1); vread(2)
    if LATEB:
        setupB()
        for _ in range(5): pf.pop(0)()
        if TOUCH: htouch()
        if not CS_KB: csdma(a)
    a("s_cmp_ge_u32 s42, 16")
    a(f"s_cbranch_scc1 {P('p2_nomask')}")
    a("s_sub_u32 s63, 16, s42")
    for t in range(16):
        a(f"s_cmp_le_u32 s63, {t}")
        a(f"s_cbranch_scc1 {P('p2_nomask')}")
        for r in range(4): a(f"v_mov_b32 v{SR+4*t+r}, v9")
    a.label(P('p2_nomask'))
    st(a,"qk")
    a(f"v_max3_f32 v24, v{SR}, v{SR+1}, v{SR+2}")
    a(f"v_max3_f32 v25, v{SR+3}, v{SR+4}, v{SR+5}")
    i=6; k=0
    while i+1<68:
        a(f"v_max3_f32 v{24+k}, v{24+k}, v{SR+i}, v{SR+i+1}")
        i+=2; k^=1
    a("v_max_f32 v24, v24, v25")
    a("v_mov_b32 v25, v24")
    a("s_nop 1")
    a("v_permlane32_swap_b32 v24, v25")
    a("v_max_f32 v24, v24, v25")
    a("v_mov_b32 v25, v24")
    a("s_nop 1")
    a("v_permlane16_swap_b32 v24, v25")
    a("v_max_f32 v24, v24, v25")
    a("v_mov_b32 v25, v24")
    a("v_mov_b32 v26, 0\nv_mov_b32 v27, 0")
    O0=124; O1=128; PP=132
    after_id=[0]
    for j in range(9):
        nt = 2 if 2*j+1<17 else 1
        pb=PP+4*(j%2)
        regs=[SR+8*j+r for r in range(4*nt)]
        for r in regs[::2]: a(f"v_pk_add_f32 {v(r,2)}, {v(r,2)}, v[24:25] neg_lo:[0,1] neg_hi:[0,1]")
        for r in regs: a(f"v_exp_f32 v{r}, v{r}")
        if pf:
            pf.pop(0)()
            if j>4: after_id[0]+=1
        else: a("s_nop 0")
        for q,r in enumerate(regs[::2]):
            a(f"v_cvt_pk_bf16_f32 v{pb+q}, v{r}, v{r+1}")
        for r in regs[::2]: a(f"v_pk_add_f32 v[26:27], v[26:27], {v(r,2)}")
        rem=0
        for jj in range(j+1,min(9,j+3)):
            rem += 4 if 2*jj+1<17 else 2
        a(f"s_waitcnt lgkmcnt({rem})")
        b=VF+8*(j%3)
        c0 = "0" if j==0 else v(O0,4)
        c1 = "0" if j==0 else v(O1,4)
        if nt==2:
            a(f"v_mfma_f32_16x16x32_bf16 {v(O0,4)}, {v(b,4)}, {v(pb,4)}, {c0}")
            a(f"v_mfma_f32_16x16x32_bf16 {v(O1,4)}, {v(b+4,4)}, {v(pb,4)}, {c1}")
        else:
            a(f"v_mfma_f32_16x16x16_bf16 {v(O0,4)}, {v(b,2)}, {v(pb,2)}, {c0}")
            a(f"v_mfma_f32_16x16x16_bf16 {v(O1,4)}, {v(b+4,2)}, {v(pb,2)}, {c1}")
        if j+3<9: vread(j+3)
        if j==4:
            a(f"buffer_load_dword v31, v{VL4}, s[{SRD_FLAG}:{SRD_FLAG+3}], s74 offen sc1")
    while pf: pf.pop(0)(); after_id[0]+=1
    a("v_add_f32 v26, v26, v27")
    a("v_mov_b32 v27, v26")
    a("s_nop 1")
    a("v_permlane32_swap_b32 v26, v27")
    a("v_add_f32 v26, v26, v27")
    a("v_mov_b32 v27, v26")
    a("s_nop 1")
    a("v_permlane16_swap_b32 v26, v27")
    a("v_add_f32 v26, v26, v27")
    a("v_rcp_f32 v26, v26")
    a("s_nop 0")
    for r in range(8): a(f"v_mul_f32 v{O0+r}, v26, v{O0+r}")
    for r in range(4): a(f"v_cvt_pk_bf16_f32 v{PP+r}, v{O0+2*r}, v{O0+2*r+1}")
    a(f"s_waitcnt vmcnt({0 if NOW else after_id[0]})")
    a("v_cmp_eq_u32 vcc, 0, v31")
    a("s_nop 3")
    a("s_cmp_eq_u32 vcc_lo, 0")
    a(f"s_cbranch_scc1 {P('idok')}")
    spin(a,VL4,"s74",-1,0,"wid",vd=31)
    a.label(P('idok'))
    a(f"v_cmp_ne_u32 vcc, s{SXC}, v31")
    a("s_nop 3")
    a("s_cmp_eq_u32 vcc_lo, 0")
    a(f"s_cselect_b32 s{SMODE}, {0 if FORCE_SLOW else 1}, 0")
    hstore(a,[f"buffer_store_dwordx2 {v(PP,2)}, v28, s[48:51], s46 offen",
              f"buffer_store_dwordx2 {v(PP+2,2)}, v29, s[48:51], s46 offen"])
    def fin():
        signal(a,33,"s2")
        a(f"s_cmp_lg_u32 s{SW}, 2")
        a(f"s_cbranch_scc1 {P('nofn')}")
        a(f"s_lshl_b32 s33, s{SI}, 2")
        a("s_add_u32 s33, s33, s74")
        a(f"s_add_u32 s33, s33, {FN}")
        a("v_mov_b32 v2, 1")
        a("v_mov_b32 v3, 0")
        a("s_mov_b64 exec, 1")
        a(f"buffer_store_dword v2, v3, s[{SRD_FLAG}:{SRD_FLAG+3}], s33 offen sc1")
        a("s_mov_b64 exec, -1")
        a.label(P('nofn'))
        a(f"s_cmp_ge_u32 s{SI}, 28")
        a(f"s_cbranch_scc1 {P('spare2')}")
    PEND.append(fin)
    if not HOIST: run_pending()

def kb_phase35(a, mode):
    k3=(mode==3); tag=f"p{mode}"
    KD=D if k3 else F
    NST=KD//64
    vm=Cnt(a,"vmcnt"); lg=Cnt(a,"lgkmcnt")
    KS,TG=36,37
    a(f"s_and_b32 s{KS}, s{SW}, 3")
    a(f"s_lshr_b32 s{TG}, s{SW}, 2")
    a(f"s_lshr_b32 s38, s{KS}, 1")
    a(f"s_and_b32 s39, s{KS}, 1")
    a("v_lshrrev_b32 v4, 5, v1")
    a("v_bfe_u32 v5, v1, 2, 2")
    a("v_lshl_add_u32 v8, v4, 3, v5")
    a("v_lshlrev_b32 v8, 7, v8")
    a("v_lshrrev_b32 v5, 1, v5")
    a("v_xor_b32 v5, s38, v5")
    a("v_lshl_add_u32 v8, v5, 6, v8")
    a("v_bfe_u32 v5, v1, 4, 1")
    a("v_xor_b32 v5, s39, v5")
    a("v_lshl_add_u32 v8, v5, 5, v8")
    a("v_and_b32 v5, 1, v1")
    a("v_lshl_add_u32 v8, v5, 4, v8")
    a("v_bfe_u32 v5, v1, 1, 1")
    a("v_lshl_add_u32 v8, v5, 3, v8")
    a(f"s_lshl_b32 s40, s{KS}, 11")
    a("v_add_u32 v8, s40, v8")
    a("v_xor_b32 v9, 64, v8")
    a("v_add_u32 v10, 0x10000, v8")
    a("v_add_u32 v11, 0x10000, v9")
    if not k3:
        a("v_add_u32 v12, 0x20000, v8")
        a("v_add_u32 v13, 0x20000, v9")
    if k3:
        srd(a,56,PWS,PWS+1,SZ_H,WS_H)
        srd(a,60,PWS,PWS+1,SZ_ST2,WS_ST2)
    else:
        srd(a,48,PWS,PWS+1,SZ_QA,WS_QA)
        srd(a,52,PWS,PWS+1,SZ_H,WS_H)
        srd(a,56,POUT,POUT+1,S*D*2)
    a("s_lshl_b32 s40, s88, 1")
    a(f"s_add_u32 s40, s40, s{TG}")
    a(f"s_mul_i32 s41, s40, {TBS}")
    a(f"s_lshl_b32 s42, s{KS}, 10")
    a("s_add_u32 s41, s41, s42")
    a(f"s_add_u32 s43, s41, {NST*4096}")
    a(f"s_lshl_b32 s42, s{S_WOROT if k3 else S_WDROT}, 12")
    a("s_add_u32 s42, s42, s41")
    a(f"s_mul_i32 s45, s40, {56*512}")
    a("s_lshl_b32 s46, s89, 12")
    a("s_add_u32 s45, s45, s46")
    a(f"s_lshl_b32 s46, s{KS}, 10")
    a("s_add_u32 s45, s45, s46")
    if k3: b0,b1=(KVB,KVB+24576) if P3_LAST<3 else (UB,UB+24576)
    else: b0,b1=KVB,KVB+24576
    a(f"s_mul_i32 s46, s{TG}, {b1-b0}")
    a(f"s_add_u32 s46, s46, {b0}")
    a(f"s_mul_i32 s47, s{KS}, 6144")
    a("s_add_u32 s47, s47, s46")
    a(f"v_add_u32 v24, s47, v{VL16}")
    for j in (1,2,3):
        a(f"s_xor_b32 s47, s{KS}, {j}")
        a("s_mul_i32 s47, s47, 6144")
        a("s_add_u32 s47, s47, s46")
        a(f"v_add_u32 v{24+j}, s47, v{VL16}")
    RES=VRES if k3 else 16; ACC=32; AF=64; BF=96
    RB_=(16 if P5_REG else 28) if not k3 else 7
    NREG=9; AREG=160
    if k3:
        a(f"s_mul_i32 s44, s89, {S*8}")
        a(f"s_lshl_b32 s47, s{SW}, 9")
        a(f"s_add_u32 s47, s47, {MISC+1024}")
        a("v_lshlrev_b32 v28, 3, v1")
        a("v_add_u32 v28, s47, v28")
        a(f"s_lshl_b32 s47, s{TG}, 11")
        a(f"s_add_u32 s47, s47, {MISC+1024}")
        a("v_and_b32 v29, 31, v1")
        a("v_lshlrev_b32 v29, 3, v29")
        a("v_add_u32 v29, s47, v29")
        a("s_lshl_b32 s47, s40, 8")
        a("s_add_u32 s44, s44, s47")
        a("v_lshlrev_b32 v14, 3, v1")
        a("v_mov_b32 v15, 0x40000000")
        a("v_cmp_gt_u32 vcc, 32, v1")
        a("s_nop 1")
        a("v_cndmask_b32 v14, v15, v14, vcc")
        a(f"s_lshl_b32 s47, s{SI}, 2")
        a("s_add_u32 s34, s74, s47")
        a(f"s_add_u32 s34, s34, {F3}")
        a("s_lshr_b32 s46, s88, 1")
        a("s_lshl_b32 s46, s46, 6")
        a(f"s_add_u32 s46, s46, {F2}")
        a("s_mov_b32 s47, 0xffff0000")
        run_pending()
        poll(a,VL4,"s46",0xffff,0,"w2")
    else:
        run_pending()
        a(f"buffer_load_dwordx4 {v(RES,4)}, v{VL16}, s[52:55], s45 offen"); vm.issue("res")
        if P5_REG:
            for n in range(NEARLY+2*(7-TMC),19): wd_dma(a,n,vm)
            for n in range(NREG):
                ga=p5_group_addr(n); hi=ga>>16; o=ga&0xffff; r0=8+2*hi; b=AREG+8*n
                for sl in range(2):
                    a(f"ds_read_b64_tr_b16 {v(b+4*sl,2)}, v{r0+sl} offset:{o}")
                    a(f"ds_read_b64_tr_b16 {v(b+4*sl+2,2)}, v{r0+sl} offset:{o+512}")
                if n%3==2: a("s_waitcnt lgkmcnt(0)")
            a("s_barrier")
            for n in range(19,28): wd_dma(a,n,vm)
        a(f"s_add_u32 s46, s74, {F4}")
        a("s_mov_b32 s47, 0xffff0000")
        poll(a,VL4,"s46",0x0fffffff,0,"w4")
    def bload(n):
        a("s_add_u32 s46, s42, 4096")
        a(f"buffer_load_dwordx4 {v(BF+4*(n%RB_),4)}, v{VL16}, s[48:51], s42 offen sc1"); vm.issue(("B",n))
        a("s_cmp_eq_u32 s46, s43")
        a("s_cselect_b32 s42, s41, s46")
    def inreg(n): return (not k3) and P5_REG and n<NREG
    def aread(n):
        if inreg(n): return
        ga = UB+8192*n if k3 else p5_group_addr(n)
        hi=ga>>16; o=ga&0xffff
        r0=8+2*hi
        b=AF+8*(n%2)
        for sl in range(2):
            a(f"ds_read_b64_tr_b16 {v(b+4*sl,2)}, v{r0+sl} offset:{o}"); lg.issue(("A",n))
            a(f"ds_read_b64_tr_b16 {v(b+4*sl+2,2)}, v{r0+sl} offset:{o+512}"); lg.issue(("A",n))
    LA0=7 if k3 else E('P5_LA0',6)
    for n in range(LA0): bload(n)
    nb=LA0
    if k3:
        for c in range(P2_CH,P3_LAST+1):
            for m in range(2): gu_dma(a,c,m,vm)
    aread(0)
    pend=[]
    NB1=NEARLY+2*(7-TMC); NB2=NRES
    for n in range(NST):
        if n+1<NST:
            if not k3 and n+1==NB1:
                vm.wait(("wd",NRES-1 if not P5_REG else 27)); a("s_barrier")
            if not k3 and n+1==NB2:
                if not P5_REG: vm.wait(("wd",27))
                a("s_barrier")
            aread(n+1)
        vm.wait(("B",n)); lg.wait(("A",n))
        for sl in range(2):
            cin="0" if n==0 else v(ACC+16*sl,16)
            a(f"v_mfma_f32_32x32x16_bf16 {v(ACC+16*sl,16)}, {v((AREG+8*n if inreg(n) else AF+8*(n%2))+4*sl,4)}, {v(BF+4*(n%RB_),4)}, {cin}")
        for _ in range(E('P5_BPS',1)):
            if nb<NST and nb-n<=E('P5_LAM',10): bload(nb); nb+=1
        if STAMP==1 and n in (0,8,18): lg.waitall(); st(a,f"{tag}_n{n}")
        if not k3 and not P5_REG:
            if n==3: pend=list(range(NB1,NRES))
            if n==8:
                a("s_barrier")
                pend+=list(range(NRES,28))
            for _ in range(1 if n<8 else 2):
                if pend: wd_dma(a,pend.pop(0),vm)
    st(a,tag+"_mfma")
    if k3 and P3_LAST>=3: a("s_barrier")
    a("s_nop 7")
    a("s_nop 3")
    for j in (1,2,3):
        for q in range(2): a(f"ds_write_b128 v24, {v(ACC+8*j+4*q,4)} offset:{(j-1)*2048+q*1024}")
    vm.wait("res")
    UBr=AF
    for d_ in range(4):
        a(f"v_lshlrev_b32 v{UBr+2*d_}, 16, v{RES+d_}")
        a(f"v_and_b32 v{UBr+2*d_+1}, s47, v{RES+d_}")
    for d_ in range(4):
        a(f"v_pk_add_f32 {v(ACC+2*d_,2)}, {v(ACC+2*d_,2)}, {v(UBr+2*d_,2)}")
    a("s_waitcnt lgkmcnt(0)")
    a("s_barrier")
    st(a,tag+"_red")
    PR=BF
    for j in (1,2,3):
        for q in range(2): a(f"ds_read_b128 {v(PR+8*j+4*q,4)}, v{24+j} offset:{(j-1)*2048+q*1024}")
    for j in (1,2,3):
        a(f"s_waitcnt lgkmcnt({2*(3-j)})")
        for d_ in range(4):
            a(f"v_pk_add_f32 {v(ACC+2*d_,2)}, {v(ACC+2*d_,2)}, {v(PR+8*j+2*d_,2)}")
    OB=16
    for d_ in range(4): a(f"v_cvt_pk_bf16_f32 v{OB+d_}, v{ACC+2*d_}, v{ACC+2*d_+1}")
    if k3:
        hstore(a,[f"buffer_store_dwordx4 {v(OB,4)}, v{VL16}, s[56:59], s45 offen"])
        a("v_mov_b32 v22, 0x3f803f80")
        a("v_mov_b32 v20, 0")
        a("v_mov_b32 v21, 0")
        for d_ in range(4):
            a(f"v_dot2c_f32_bf16 v20, v{OB+d_}, v22")
            a(f"v_dot2c_f32_bf16 v21, v{OB+d_}, v{OB+d_}")
        a("s_nop 2")
        a("ds_write_b64 v28, v[20:21]")
        a("s_waitcnt lgkmcnt(0)")
        a("s_barrier")
        a(f"s_cmp_lg_u32 s{KS}, 0")
        a(f"s_cbranch_scc1 {P('p3_nost')}")
        for q in range(8): a(f"ds_read_b64 {v(32+2*q,2)}, v29 offset:{256*q}")
        a("s_waitcnt lgkmcnt(0)")
        for q in (0,2,4,6): a(f"v_pk_add_f32 {v(32+2*q,2)}, {v(32+2*q,2)}, {v(34+2*q,2)}")
        a("v_pk_add_f32 v[32:33], v[32:33], v[36:37]")
        a("v_pk_add_f32 v[40:41], v[40:41], v[44:45]")
        a("v_pk_add_f32 v[32:33], v[32:33], v[40:41]")
        hstore(a,[f"buffer_store_dwordx2 v[32:33], v14, s[60:63], s44 offen"])
        a.label(P('p3_nost'))
        PEND.append(lambda: signal(a,34,"s3"))
        if not HOIST: run_pending()
    else:
        a(f"buffer_store_dwordx4 {v(OB,4)}, v249, s[56:59], s73 offen"+os.environ.get("OUTF",""))

def kb_phase4(a):
    vm=Cnt(a,"vmcnt"); lg=Cnt(a,"lgkmcnt")
    srd(a,SRD_WD,PWD,PWD+1,F*D*2)
    a(f"s_mul_i32 s79, s{S_WDROT}, {64*896}")
    a(f"s_add_u32 s79, s79, s{S_WD}")
    a(f"s_add_u32 s75, s{S_WD}, {28*64*896}")
    a("v_lshrrev_b32 v4, 5, v1")
    a("v_bfe_u32 v5, v1, 2, 2")
    a("v_lshl_add_u32 v9, v4, 3, v5")
    a("v_lshlrev_b32 v9, 7, v9")
    a("v_bfe_u32 v10, v1, 4, 1")
    a("v_and_b32 v11, 1, v1")
    a("v_lshl_add_u32 v9, v11, 4, v9")
    a("v_bfe_u32 v11, v1, 1, 1")
    a("v_lshl_add_u32 v9, v11, 3, v9")
    a("v_lshrrev_b32 v5, 1, v5")
    a("v_lshl_add_u32 v5, v10, 1, v5")
    a("v_lshl_add_u32 v9, v5, 5, v9")
    a("v_lshl_add_u32 v12, v10, 13, v9")
    for t in range(1,4): a(f"v_xor_b32 v{12+t}, {32*t}, v12")
    a(f"v_add_u32 v25, {KVB}, v12")
    a("v_xor_b32 v26, 32, v25")
    a("v_xor_b32 v27, 64, v25")
    a("v_xor_b32 v29, 96, v25")
    a("v_and_b32 v17, 31, v1")
    a("v_lshlrev_b32 v17, 3, v17")
    a(f"v_mul_u32_u24 v16, {S*8}, v4")
    a("v_add_u32 v17, v17, v16")
    a("v_lshlrev_b32 v28, 5, v4")
    a(f"s_lshl_b32 s56, s{SX}, 3")
    a(f"s_add_u32 s56, s56, s{SW}")
    a(f"s_mul_i32 s57, s56, {28*1024}")
    a(f"s_add_u32 s54, s57, {7*4096}")
    a(f"s_mul_i32 s55, s89, {4096 if ROT4 else 0}")
    a("s_add_u32 s55, s55, s57")
    a("s_lshl_b32 s58, s56, 8")
    a(f"s_mul_i32 s59, s56, {112*1024}")
    a(f"s_lshl_b32 s60, s{SI}, 12")
    a("s_add_u32 s59, s59, s60")
    a(f"s_lshl_b32 s60, s{SI}, 8")
    a(f"s_add_u32 s61, s60, {F*4}")
    srd(a,36,PWS,PWS+1,SZ_H,WS_H)
    srd(a,40,PWS,PWS+1,SZ_QA,WS_QA)
    srd(a,44,PWS,PWS+1,SZ_ST2,WS_ST2)
    srd(a,48,PWS,PWS+1,SZ_CS,WS_CS)
    a(f"s_lshl_b32 s35, s{SI}, 2")
    a("s_add_u32 s35, s35, s74")
    a(f"s_add_u32 s35, s35, {F4}")
    a(f"s_add_u32 s62, s74, {F3}")
    a(f"v_mul_u32_u24 v16, {FN-F3}, v4")
    a(f"v_add_u32 v16, v16, v{VL4}")
    if CS_KB:
        a(f"s_lshr_b32 s63, s{SI}, 1")
        a("s_lshl_b32 s63, s63, 2")
        a(f"s_add_u32 s63, s63, {FC}")
        a("s_sub_u32 s63, s63, s62")
        a("v_mov_b32 v18, s63")
        a(f"v_add_u32 v19, {14*4}, v18")
        a("v_cmp_eq_u32 vcc, 28, v1")
        a("s_nop 1")
        a("v_cndmask_b32 v16, v16, v18, vcc")
        a("v_cmp_eq_u32 vcc, 29, v1")
        a("s_nop 1")
        a("v_cndmask_b32 v16, v16, v19, vcc")
    a(f"s_cmp_eq_u32 s{SX}, 7")
    a("s_cselect_b32 s63, 0, -1")
    run_pending()
    for c in range(P3_LAST+1,S3_LAST+1):
        for m in range(2): gu_dma(a,c,m)
    poll(a,16,"s62",0x3fffffff if CS_KB else 0x0fffffff,"s63","w3")
    BFR=64; ACC=176; AF=32; STR=240
    def hb(c,s_):
        def f():
            if s_==0 and c>0:
                a("s_add_u32 s55, s55, 4096")
                a("s_cmp_eq_u32 s55, s54")
                a("s_cselect_b32 s55, s57, s55")
            if E('NOH',0): return
            a(f"buffer_load_dwordx4 {v(BFR+16*c+4*s_,4)}, v{VL16}, s[36:39], s55 offen offset:{1024*s_}"); vm.issue(("h",c,s_))
        return f
    hq=[hb(c,s_) for c in range(7) for s_ in range(4)]
    NPRE=E('P4_NPRE',6)
    for f in hq[:NPRE]: f()
    CM=7-TMC; TB=16*CM; TL=4*TMC
    steps=[(c,s_,t) for c in range(CM) for s_ in range(4) for t in range(4)]
    steps+=[(c,s_,t) for t in range(4) for c in range(CM,7) for s_ in range(4)]
    NS=len(steps); PF=6
    def rd(i):
        c,s_,t=steps[i]
        b=AF+4*(i%8); o=CH(c)+s_*2048
        ar=12+t
        if o>=KVB: o-=KVB; ar=(25,26,27,29)[t]
        a(f"ds_read_b64_tr_b16 {v(b,2)}, v{ar} offset:{o}"); lg.issue(("A",i))
        a(f"ds_read_b64_tr_b16 {v(b+2,2)}, v{ar} offset:{o+512}"); lg.issue(("A",i))
    fill={i:[] for i in range(NS)}
    HSP=float(os.environ.get('P4_HSP','3' if TMC==2 else '2.5'))
    for k,f in enumerate(hq[NPRE:]): fill[int(1+HSP*k)].append(f)
    for sl in range(4):
        def f(sl=sl):
            a(f"s_add_u32 s62, s58, {sl*2*S*8}")
            a(f"buffer_load_dwordx2 {v(STR+2*sl,2)}, v17, s[44:47], s62 offen"); vm.issue("st")
        fill[2+3*sl].append(f)
    for k in range(2*(6-S3_LAST)): fill[E('GU0',3)+E('GUS',6)*k].append(lambda k=k: gu_dma(a,S3_LAST+1+k//2,k%2,vm))
    def atouch():
        a("v_and_b32 v30, 31, v1")
        a("v_lshlrev_b32 v30, 7, v30")
        a(f"s_cmp_ge_u32 s{SI}, {0 if E('ATALL',1) else 21}")
        a("s_cselect_b32 s62, s59, 0x40000000")
        a("buffer_load_dword v31, v30, s[40:43], s62 offen"+os.environ.get("ATF"," sc1")); vm.issue("t")
    if TOUCH: fill[E('P4_AT',36)].append(atouch)
    if CS_KB: fill[5].append(lambda: csdma(a,vm))
    def stats_math():
        vm.wait("st")
        for sl in range(1,4):
            a(f"v_add_f32 v{STR}, v{STR}, v{STR+2*sl}")
            a(f"v_add_f32 v{STR+1}, v{STR+1}, v{STR+2*sl+1}")
        a(f"v_mov_b32 v18, v{STR}")
        a(f"v_mov_b32 v19, v{STR+1}")
        a("s_nop 1")
        a(f"v_permlane32_swap_b32 v18, v{STR}")
        a(f"v_permlane32_swap_b32 v19, v{STR+1}")
        a(f"v_add_f32 v18, v18, v{STR}")
        a(f"v_add_f32 v19, v19, v{STR+1}")
        a(f"v_mul_f32 v18, {f32bits(1.0/D)}, v18")
        a(f"v_mul_f32 v19, {f32bits(1.0/D)}, v19")
        a("v_fma_f32 v19, -v18, v18, v19")
        a("v_max_f32 v19, 0, v19")
        a(f"v_add_f32 v24, {f32bits(1e-5)}, v19")
        a("v_rsq_f32 v20, v24")
        a("v_sub_f32 v22, 0, v18")
        a(f"v_mul_f32 v20, {f32bits(-LOG2E)}, v20")
    fill[40].append(stats_math)
    def rdcs(t):
        CS=64+16*t
        for q,o in enumerate((64*t,64*t+16,256+64*t,256+64*t+16)):
            a(f"ds_read_b128 {v(CS+4*q,4)}, v28 offset:{MISC+o}"); lg.issue(("cs",t))
    for t in range(4): fill[max(TB-10+2*t,16*t+16)].append(lambda t=t: rdcs(t))
    for n in range(NEARLY): fill[E('WD0',TB-5)+E('WD0S',1)*n].append(lambda n=n: wd_dma(a,n,vm))
    def epi_ops(t):
        CS=64+16*t; T0=CS; OB=CS+8
        A0=ACC+16*t
        ops=[]
        ops.append(lambda: a("s_nop 3"))
        for r in range(8): ops.append(lambda r=r: a(f"v_fmac_f32 v{A0+r}, v22, v{CS+r}"))
        for r in range(8): ops.append(lambda r=r: a(f"v_mul_f32 v{T0+r}, v20, v{A0+r}"))
        for r in range(8):
            ops.append(lambda r=r: a(f"v_exp_f32 v{T0+r}, v{T0+r}"))
            ops.append(lambda r=r: a(f"v_fmac_f32 v{A0+8+r}, v22, v{CS+8+r}"))
        for r in range(8): ops.append(lambda r=r: a(f"v_fma_f32 v{T0+r}, v{T0+r}, v24, v24"))
        for r in range(8):
            ops.append(lambda r=r: a(f"v_rcp_f32 v{T0+r}, v{T0+r}"))
            ops.append(lambda r=r: a(f"v_mul_f32 v{A0+r}, v{A0+r}, v{A0+8+r}"))
        for r in range(8): ops.append(lambda r=r: a(f"v_mul_f32 v{A0+r}, v{A0+r}, v{T0+r}"))
        for p in range(4): ops.append(lambda p=p: a(f"v_cvt_pk_bf16_f32 v{OB+p}, v{A0+2*p}, v{A0+2*p+1}"))
        def stv():
            hstore(a,[f"buffer_store_dwordx4 {v(OB,4)}, v{VL16}, s[40:43], s59 offen offset:{1024*t}"]); vm.issue("out")
        ops.append(stv)
        return ops
    tail_ops=[]
    for t in range(4):
        ops=epi_ops(t)
        base=TB+TL*t
        if t<3:
            nb=base+TL
            per=-(-len(ops)//(TL-1))
            for k,f in enumerate(ops): fill[nb+1+k//per].append(f)
        else: tail_ops=ops
    fill[TB].insert(0,lambda: a("s_barrier"))
    for n in range(NEARLY,NEARLY+2*CM): fill[TB+1+E('WDSP',1)*(n-NEARLY)].append(lambda n=n: wd_dma(a,n,vm))
    for i in range(PF): rd(i)
    landed=P3_LAST
    for i in range(NS):
        c,s_,t=steps[i]
        vm.wait(("h",c,s_))
        lg.wait(("A",i))
        cin="0" if (c==0 and s_==0) else v(ACC+16*t,16)
        a(f"v_mfma_f32_32x32x16_bf16 {v(ACC+16*t,16)}, {v(AF+4*(i%8),4)}, {v(BFR+16*c+4*s_,4)}, {cin}")
        for f in fill[i]: f()
        if i+PF<NS:
            nc=steps[i+PF][0]
            if nc>landed:
                tgt = nc if nc<CM else 6
                vm.wait(("W",tgt))
                if not E('NOBAR',0): a("s_barrier")
                landed=tgt
            rd(i+PF)
        if STAMP==1 and i in (0,15,31,47,63,79,95,111): lg.waitall(); st(a,f"p4_i{i}")
        if STAMP==2 and i in (79,111): lg.waitall(); st(a,f"p4_i{i}")
    a("s_nop 7")
    a("s_nop 1")
    for f in tail_ops: f()
    a("s_nop 1")
    PEND.append(lambda: signal(a,35,"s4"))
    if not HOIST: run_pending()

def gen_kb(name):
    KN[0]="kb"
    a=Asm(); prologue(a,name)
    if E('PRIO',0):
        a(f"s_cmp_lt_u32 s{SW}, 4")
        a(f"s_cbranch_scc1 {P('noprio')}")
        a("s_setprio 1")
        a.label(P('noprio'))
    kb_phase2(a)
    kb_phase35(a,3)
    kb_phase4(a)
    kb_phase35(a,5)
    dump(a)
    a.label(P('end'))
    a("s_endpgm")
    a.label(P('spare2'))
    if CS_KB:
        colsum_ids(a)
        a("s_cmp_ge_u32 s36, 28")
        a(f"s_cbranch_scc1 {P('cs_skip')}")
        colsum_body(a," sc1")
        a("s_waitcnt vmcnt(0)")
        a("s_barrier")
        a(f"s_cmp_lg_u32 s{SW}, 1")
        a(f"s_cbranch_scc1 {P('cs_skip')}")
        a("s_lshl_b32 s60, s36, 2")
        a(f"s_add_u32 s60, s60, {FC}")
        a("v_mov_b32 v2, 1")
        a("v_mov_b32 v3, 0")
        a("s_mov_b64 exec, 1")
        a(f"buffer_store_dword v2, v3, s[{SRD_FLAG}:{SRD_FLAG+3}], s60 offen sc1")
        a("s_mov_b64 exec, -1")
        a.label(P('cs_skip'))
    if SP_TOUCH:
        a("v_lshlrev_b32 v9, 7, v1")
        a(f"s_sub_u32 s36, s{SI}, 28")
        a("s_lshl_b32 s36, s36, 3")
        a(f"s_add_u32 s36, s36, s{SW}")
        a("s_bitcmp1_b32 s36, 0")
        a(f"s_cselect_b32 s{SRD_G}, s{SRD_U}, s{SRD_G}")
        a(f"s_cselect_b32 s{SRD_G+1}, s{SRD_U+1}, s{SRD_G+1}")
        a("s_lshr_b32 s37, s36, 1")
        a("s_lshl_b32 s37, s37, 13")
        q0=256*3584//8192
        def gut():
            for i in range(6):
                a(f"s_add_u32 s38, s37, {(q0+16*i)*8192}")
                a(f"buffer_load_dword v{30+i}, v9, s[{SRD_G}:{SRD_G+3}], s38 offen")
        def wdt():
            srd(a,SRD_WD,PWD,PWD+1,F*D*2)
            a("s_lshl_b32 s39, s36, 13")
            for i in range(7):
                a(f"s_add_u32 s38, s39, {i*32*8192}")
                a(f"buffer_load_dword v{40+i}, v9, s[{SRD_WD}:{SRD_WD+3}], s38 offen")
        if SP_TOUCH==1: gut(); wdt()
        elif SP_TOUCH==2: wdt(); gut()
        else: wdt()
    if E('WBL2',0):
        a(f"s_cmp_lg_u32 s{SI}, 28")
        a(f"s_cbranch_scc1 {P('nowb')}")
        a(f"s_cmp_lg_u32 s{SW}, 0")
        a(f"s_cbranch_scc1 {P('nowb')}")
        a(f"s_add_u32 s46, s74, {F4}")
        spin(a,VL4,"s46",0x0fffffff,0,"wwb",sleep=16)
        a("buffer_wbl2 sc1")
        a("s_waitcnt vmcnt(0)")
        a.label(P('nowb'))
    dump(a)
    a("s_endpgm")
    return a.text(), kdesc(name,256)

def build(path):
    hdr=open("sequential_preLN__sliding_block__swiglu_ffn__prompt.s.ref").read().split("; Override launch")[0]
    ta,da=gen_ka("ka_kernel"); tb,db=gen_kb("kb_kernel")
    L=[hdr.rstrip(), f"; @launch kernel=ka_kernel grid=({NWG},1,1) block=({THREADS},1,1) lds=155648",
       f"; @launch kernel=kb_kernel grid=({NWG},1,1) block=({THREADS},1,1) lds={LDS}",
       '.amdgcn_target "amdgcn-amd-amdhsa--gfx950"\n.text', ta, tb, '.section .rodata,"a"', da, db]
    open(path,"w").write("\n".join(L)+"\n")
    if STAMP: open(path+".names","w").write(" ".join(STN))
if __name__=="__main__":
    build(sys.argv[1])
```

```python
from common import *
import sys
NWG=256; THREADS=512; LDS=163840
WS_FLAG=0x1300000; SZ_FLAG=8192
FID=0; F2=1024; F3=2048; F4=3072
WS_ST2=0x1210000; SZ_ST2=7*S*8
PX,PWQKV,PWO,PBX,PWG,PWU,PWD,POUT,PDBG,PWS=4,6,8,10,12,14,16,18,20,22
SW,SX,SI=24,25,26
SMODE=27; SXC=3
SRD_FLAG=28
UB=57344; KVB=114688
SPIN_MAX=200000
NEG=f32bits(-1e30)
E=lambda k,d: int(os.environ.get(k,str(d)))
FORCE_SLOW=E('FORCE_SLOW',0); P1_ROT=E('P1_ROT',3); CS_DEPTH=E('CS_DEPTH',4); SLEEP2=E('SLEEP2',1); NOW=E('NOW',0)
CS_KB=E('CS_KB',0); FC=5120; XBAR=E('XBAR',1); XTR=E('XTR',1); P3_LAST=E('P3_LAST',2); S3_LAST=E('S3_LAST',3); HOIST=E('HOIST',0); P5_REG=E('P5_REG',1); W1LATE=E('W1LATE',1); KA_WPRE=E('KA_WPRE',0); KA_WMID=E('KA_WMID',3); KA_TOUCH_AT=E('KA_TOUCH_AT',4); TOUCH=E('TOUCH',1); P2_CH=E('P2_CH',2); SP_TOUCH=E('SP_TOUCH',1); ROT4=E('ROT4',1); ROTB=E('ROTB',1)
TBS=114688; SZ_QA=64*TBS; WS_QA=WS_ACT
FN=4096
KN=["ka"]
def P(name): return f"L_{KN[0]}_{name}"
WS_DBG=0x1400000
STN=[]
def st(a,name,rt=False):
    if not STAMP: return
    name=KN[0]+"."+name
    if name not in STN: STN.append(name)
    i=[n for n in STN if n.startswith(KN[0])].index(name)
    a(f"s_mem{'real' if rt else ''}time s[64:65]")
    a("s_waitcnt lgkmcnt(0)")
    a(f"v_writelane_b32 v255, s64, {i}")
def dump(a):
    if not STAMP: return
    a("s_waitcnt vmcnt(0)")
    st(a,"end"); st(a,"rt1",True)
    a("s_getreg_b32 s64, hwreg(HW_REG_XCC_ID)")
    a("v_writelane_b32 v255, s64, 62")
    a("s_getreg_b32 s64, hwreg(HW_REG_HW_ID)")
    a("v_writelane_b32 v255, s64, 63")
    srd(a,48,PWS,PWS+1,2*256*8*256,WS_DBG)
    a("v_lshlrev_b32 v2, 2, v0")
    a("s_lshl_b32 s36, s2, 11")
    if KN[0]=="kb": a(f"s_add_u32 s36, s36, {256*2048}")
    a("buffer_store_dword v255, v2, s[48:51], s36 offen")
_uid=[0]
def hstore(a, instrs):
    _uid[0]+=1; u=_uid[0]
    a(f"s_cmp_eq_u32 s{SMODE}, 0")
    a(f"s_cbranch_scc1 L_hs{u}a")
    for i in instrs: a(i)
    a(f"s_branch L_hs{u}b")
    a.label(f"L_hs{u}a")
    for i in instrs: a(i+" sc1")
    a.label(f"L_hs{u}b")
def signal(a, off_sgpr, tag):
    st(a,tag+"_pre")
    a("s_waitcnt vmcnt(0)")
    a("s_barrier")
    st(a,tag+"_bar")
    a(f"s_cmp_lg_u32 s{SW}, 1")
    a(f"s_cbranch_scc1 {P(tag+'_nosig')}")
    a("v_mov_b32 v2, 1")
    a("v_mov_b32 v3, 0")
    a("s_mov_b64 exec, 1")
    hstore(a,[f"buffer_store_dword v2, v3, s[{SRD_FLAG}:{SRD_FLAG+3}], s{off_sgpr} offen"])
    a("s_mov_b64 exec, -1")
    a.label(P(tag+'_nosig'))
def spin(a, voff, soff, mask_lo, mask_hi, tag, vd=2, sleep=None):
    a(f"s_mov_b32 exec_lo, {mask_lo}")
    a(f"s_mov_b32 exec_hi, {mask_hi}")
    a("s_mov_b32 s101, 0")
    a.label(P(tag+'_pl'))
    a(f"buffer_load_dword v{vd}, v{voff}, s[{SRD_FLAG}:{SRD_FLAG+3}], {soff} offen sc1")
    a("s_add_u32 s101, s101, 1")
    a("s_waitcnt vmcnt(0)")
    a(f"v_cmp_eq_u32 vcc, 0, v{vd}")
    a(f"s_cmp_gt_u32 s101, {SPIN_MAX}")
    a(f"s_cbranch_scc1 {P(tag+'_pd')}")
    a("s_nop 3")
    a(f"s_cbranch_vccz {P(tag+'_pd')}")
    a(f"s_sleep {SLEEP2 if sleep is None else sleep}")
    a(f"s_branch {P(tag+'_pl')}")
    a.label(P(tag+'_pd'))
    a("s_mov_b64 exec, -1")
def poll(a, voff, soff, mask_lo, mask_hi, tag):
    st(a,tag+"_pre")
    a(f"s_cmp_lg_u32 s{SW}, 0")
    a(f"s_cbranch_scc1 {P(tag+'_pw')}")
    spin(a,voff,soff,mask_lo,mask_hi,tag)
    a.label(P(tag+'_pw'))
    a("s_barrier")
    st(a,tag)
def rot_idx(a, sd, n, srot, mod):
    a(f"s_add_u32 s{sd}, s{srot}, {n}")
    a(f"s_sub_u32 s100, s{sd}, {mod}")
    a(f"s_cmp_ge_u32 s{sd}, {mod}")
    a(f"s_cselect_b32 s{sd}, s100, s{sd}")
def prologue(a,name):
    kstart(a,name)
    a(f"s_cmp_ge_u32 s2, {NWG}")
    a(f"s_cbranch_scc1 {P('end')}")
    if STAMP: a("v_mov_b32 v255, 0")
    st(a,"rt0",True); st(a,"start")
    a("s_load_dwordx16 s[4:19], s[0:1], 0")
    a("s_load_dwordx4 s[20:23], s[0:1], 64")
    a("v_and_b32 v1, 63, v0")
    a("v_lshrrev_b32 v2, 6, v0")
    a(f"s_and_b32 s{SX}, s2, 7")
    a(f"v_readfirstlane_b32 s{SW}, v2")
    a(f"s_lshr_b32 s{SI}, s2, 3")
    sdiv(a,92,89,SI,7,93)
    a(f"s_lshl_b32 s88, s{SX}, 2")
    a("s_add_u32 s88, s88, s92")

def colsum_ids(a):
    a(f"s_sub_u32 s36, s{SI}, 28")
    a("s_lshl_b32 s36, s36, 3")
    a(f"s_add_u32 s36, s36, s{SX}")
    sdiv(a,37,38,36,14,39)
    a("v_lshrrev_b32 v3, 4, v1")
    a(f"s_lshl_b32 s39, s{SW}, 2")
    a("v_add_u32 v3, s39, v3")
    a("v_mul_u32_u24 v4, 3584, v3")
    a("v_and_b32 v5, 15, v1")
    a("v_lshl_add_u32 v4, v5, 4, v4")
def colsum_body(a, stf):
    a("s_cmp_eq_u32 s37, 0")
    a(f"s_cselect_b32 s40, s{PWG}, s{PWU}")
    a(f"s_cselect_b32 s41, s{PWG+1}, s{PWU+1}")
    srd(a,48,40,41,D*F*2)
    srd(a,52,PWS,PWS+1,SZ_CS,WS_CS)
    a("s_lshl_b32 s42, s38, 8")
    def csl(i):
        a(f"s_add_u32 s43, s42, {i*32*3584}")
        a(f"buffer_load_dwordx4 {v(32+4*i,4)}, v4, s[48:51], s43 offen")
    for i in range(CS_DEPTH): csl(i)
    for r in range(8): a(f"v_mov_b32 v{16+r}, 0")
    for i in range(14):
        a(f"s_waitcnt vmcnt({min(13-i,CS_DEPTH-1)})")
        if i+CS_DEPTH<14: csl(i+CS_DEPTH)
        for d_ in range(4):
            a(f"v_lshlrev_b32 v{24+2*d_}, 16, v{32+4*i+d_}")
            a(f"v_and_b32 v{25+2*d_}, 0xffff0000, v{32+4*i+d_}")
        for d_ in range(4):
            a(f"v_pk_add_f32 {v(16+2*d_,2)}, {v(16+2*d_,2)}, {v(24+2*d_,2)}")
    a("v_lshlrev_b32 v6, 9, v3")
    a("v_lshl_add_u32 v6, v5, 5, v6")
    a("ds_write_b128 v6, v[16:19]")
    a("ds_write_b128 v6, v[20:23] offset:16")
    a("s_waitcnt lgkmcnt(0)")
    a("s_barrier")
    a(f"s_cmp_ge_u32 s{SW}, 2")
    a(f"s_cbranch_scc1 {P('cs_end')}")
    a("v_lshlrev_b32 v6, 2, v0")
    for i in range(32):
        a(f"ds_read_b32 v{32+i}, v6 offset:{512*i}")
        if i%8==7: a("s_waitcnt lgkmcnt(0)")
    a("v_mov_b32 v16, 0")
    a("v_mov_b32 v17, 0")
    for i in range(0,32,2):
        a(f"v_pk_add_f32 v[16:17], v[16:17], {v(32+i,2)}")
    a("v_add_f32 v16, v16, v17")
    a(f"s_mul_i32 s42, s37, {F*4}")
    a("s_lshl_b32 s43, s38, 9")
    a("s_add_u32 s42, s42, s43")
    a("buffer_store_dword v16, v6, s[52:55], s42 offen"+stf)
    a.label(P('cs_end'))

def gen_ka(name):
    KN[0]="ka"
    a=Asm(); prologue(a,name)
    a(f"s_cmp_ge_u32 s{SI}, 28")
    a(f"s_cbranch_scc1 {P('spare')}")
    XB=0; WB=57344; WSLOT=24576
    RB,CB=88,89
    if P1_ROT==0: a("s_mov_b32 s76, 0")
    elif P1_ROT==9: a("s_lshl_b32 s76, s92, 1")
    else:
        a("s_lshr_b32 s76, s92, 1")
        a(f"s_mul_i32 s76, s76, {P1_ROT}")
    for u in range(3):
        a(f"v_add_u32 v9, {64*u}, v1")
        a("v_mul_u32_u24 v10, 2731, v9")
        a("v_lshrrev_b32 v10, 16, v10")
        a("v_mul_u32_u24 v11, 24, v10")
        a("v_sub_u32 v11, v9, v11")
        a("v_lshrrev_b32 v12, 2, v11")
        a("v_bfe_u32 v13, v10, 1, 1")
        a("v_xor_b32 v12, v12, v13")
        a("v_and_b32 v11, 3, v11")
        a("v_lshlrev_b32 v11, 4, v11")
        a("v_lshl_add_u32 v11, v12, 6, v11")
        a("v_mul_u32_u24 v10, 2688, v10")
        a(f"v_add_u32 v{16+u}, v10, v11")
    a(f"s_mul_i32 s40, s{CB}, 384")
    a(f"s_and_b32 s43, s{SW}, 3")
    a(f"s_mul_i32 s44, s43, {16*2688}")
    a("s_add_u32 s44, s44, s40")
    a(f"s_mul_i32 s45, s43, 6144")
    a(f"s_add_u32 s45, s45, {WB}")
    for c in range(7): rot_idx(a,66+c,c,76,7)
    def w_ops(c,vm):
        slot=c%4
        a(f"s_mul_i32 s47, s{66+c}, {64*2688}")
        a("s_add_u32 s47, s47, s44")
        a(f"s_add_u32 s46, s47, {8*2688}")
        for u in range(6):
            a(f"s_add_u32 m0, s45, {slot*WSLOT+u*1024}")
            a("s_nop 0")
            a(f"buffer_load_dwordx4 v{16+u%3}, s[52:55], s{47 if u<3 else 46} offen lds"); vm.issue(("W",c))
    a(f"s_mul_i32 s41, s{SW}, {8*2688}")
    a("s_add_u32 s41, s41, s40")
    a(f"s_mul_i32 s42, s{SW}, 3072")
    a(f"s_add_u32 s42, s42, {WB}")
    def w8(c,vm):
        a(f"s_mul_i32 s47, s{66+c}, {64*2688}")
        a("s_add_u32 s47, s47, s41")
        for u in range(3):
            a(f"s_add_u32 m0, s42, {(c%4)*WSLOT+u*1024}")
            a("s_nop 0")
            a(f"buffer_load_dwordx4 v{16+u}, s[52:55], s47 offen lds"); vm.issue(("W",c))
    a("v_lshrrev_b32 v5, 3, v1")
    a(f"s_add_u32 s38, s{SW}, s{CB}" if XTR else f"s_mov_b32 s38, s{SW}")
    a("s_and_b32 s38, s38, 7")
    a("s_lshl_b32 s38, s38, 3")
    a("v_add_u32 v5, s38, v5")
    a("v_mul_u32_u24 v6, 896, v5")
    a("v_and_b32 v7, 7, v1")
    a("v_lshl_add_u32 v6, v7, 4, v6")
    a(f"s_mul_i32 s38, s{RB}, {64*896}")
    a("v_bfe_u32 v8, v5, 1, 3")
    a("v_xor_b32 v8, v8, v7")
    a("v_lshlrev_b32 v8, 4, v8")
    a("v_lshl_add_u32 v8, v5, 7, v8")
    for i in range(7):
        a(f"s_lshl_b32 s{78+i}, s{66+i}, 7")
        a(f"s_add_u32 s{78+i}, s{78+i}, s38")
    a("v_mov_b32 v19, 0x3f803f80")
    a("s_mov_b32 s39, 0xffff0000")
    for r in range(20,24): a(f"v_mov_b32 v{r}, 0")
    a("s_waitcnt lgkmcnt(0)")
    st(a,"kernarg")
    srd(a,48,PX,PX+1,S*D*2)
    vm=Cnt(a,"vmcnt")
    XR=32; FR=96
    for i in range(7):
        a(f"buffer_load_dwordx4 {v(XR+4*i,4)}, v6, s[48:51], s{78+i} offen"); vm.issue(("x",i))
    srd(a,52,PWQKV,PWQKV+1,D*NQKV*2)
    for c in range(KA_WPRE): w8(c,vm)
    for i in range(7):
        vm.wait(("x",i))
        for d_ in range(4):
            x=XR+4*i+d_
            a(f"v_dot2c_f32_bf16 v{20+(d_&1)}, v{x}, v19")
            a(f"v_dot2c_f32_bf16 v{22+(d_&1)}, v{x}, v{x}")
    st(a,"x")
    vmC=Cnt(a,"vmcnt"); vmL=Cnt(a,"vmcnt")
    if XBAR: a("s_barrier")
    a(f"s_cmp_lt_u32 s{SW}, 4")
    a(f"s_cbranch_scc1 {P('nw01')}")
    w_ops(0,vmC)
    if not W1LATE: w_ops(1,vmC)
    a.label(P('nw01'))
    a("v_add_f32 v20, v20, v21")
    a("v_add_f32 v22, v22, v23")
    for dpp in ("quad_perm:[1,0,3,2]","quad_perm:[2,3,0,1]","row_half_mirror"):
        a("s_nop 1")
        for r in (20,22):
            a(f"v_add_f32_dpp v{r}, v{r}, v{r} {dpp} row_mask:0xf bank_mask:0xf")
    m=20; q=22
    a(f"v_mul_f32 v{m}, {f32bits(1.0/D)}, v{m}")
    a(f"v_mul_f32 v{q}, {f32bits(1.0/D)}, v{q}")
    a(f"v_fma_f32 v{q}, -v{m}, v{m}, v{q}")
    a(f"v_max_f32 v{q}, 0, v{q}")
    a(f"v_add_f32 v{q}, {f32bits(1e-5)}, v{q}")
    a(f"v_rsq_f32 v{q}, v{q}")
    a("s_nop 0")
    a(f"v_mul_f32 v{m}, v{m}, v{q}")
    a(f"v_sub_f32 v{m}, 0, v{m}")
    for i in range(7):
        fb=FR+8*(i&1)
        for d_ in range(4):
            x=XR+4*i+d_
            a(f"v_lshlrev_b32 v{fb+2*d_}, 16, v{x}")
            a(f"v_and_b32 v{fb+2*d_+1}, s39, v{x}")
        for d_ in range(4):
            a(f"v_pk_fma_f32 {v(fb+2*d_,2)}, {v(fb+2*d_,2)}, {v(q,2)}, {v(m,2)} op_sel_hi:[1,0,0]")
        for d_ in range(4):
            a(f"v_cvt_pk_bf16_f32 v{XR+4*i+d_}, v{fb+2*d_}, v{fb+2*d_+1}")
        a(f"ds_write_b128 v8, {v(XR+4*i,4)} offset:{XB+8192*i}")
    st(a,"ln")
    ops0=list(vmC.ops)
    a(f"s_cmp_ge_u32 s{SW}, 4")
    a(f"s_cbranch_scc1 {P('C')}")
    vm=vmL
    a("s_waitcnt lgkmcnt(0)")
    sched={c:[] for c in range(7)}
    for c in range(7):
        for i in sched[c]: norm(i)
        if sched[c]: a("s_waitcnt lgkmcnt(0)")
        vm.wait(("W",c))
        st(a,f"L{c}")
        a("s_barrier")
        if c+2<7: w_ops(c+2,vm)
        if c==KA_TOUCH_AT:
            srd(a,56,PWS,PWS+1,SZ_QA,WS_QA)
            a("v_lshlrev_b32 v9, 7, v1")
            a("v_mov_b32 v10, 0x40000000")
            a("v_cmp_gt_u32 vcc, 48, v1")
            a(f"s_lshl_b32 s60, s{RB}, 1")
            a("s_lshr_b32 s61, s43, 1")
            a("v_cndmask_b32 v9, v10, v9, vcc")
            a("s_add_u32 s60, s60, s61")
            a(f"s_mul_i32 s60, s60, {TBS}")
            a(f"s_mul_i32 s61, s{CB}, 12288")
            a("s_add_u32 s60, s60, s61")
            a("s_and_b32 s61, s43, 1")
            a("s_mul_i32 s61, s61, 6144")
            a("s_add_u32 s60, s60, s61")
            a("buffer_load_dword v30, v9, s[56:59], s60 offen sc1"); vm.issue("t")
        if c==E('KA_PF_AT',4) and E('KA_PF',0):
            srd(a,56,PWG,PWG+1,D*F*2)
            srd(a,60,PWU,PWU+1,D*F*2)
            a("v_lshrrev_b32 v9, 3, v1")
            a("v_mul_u32_u24 v9, 3584, v9")
            a("v_and_b32 v10, 7, v1")
            a("v_lshl_add_u32 v9, v10, 4, v9")
            a(f"s_mul_i32 s36, s43, {16*3584}")
            a(f"s_lshl_b32 s37, s{SI}, 7")
            a("s_add_u32 s36, s36, s37")
            for k in range(E('KA_PF',0)):
                rot_idx(a,37,k+E('KA_PF0',0),89,7)
                if not ROT4: a(f"s_mov_b32 s37, {k+E('KA_PF0',0)}")
                a(f"s_mul_i32 s37, s37, {64*3584}")
                a("s_add_u32 s37, s37, s36")
                a(f"s_add_u32 s38, s37, {8*3584}")
                for m in range(2):
                    for sr in (37,38):
                        a(f"buffer_load_dwordx4 v[100:103], v9, s[{56+4*m}:{59+4*m}], s{sr} offen sc1"); vm.issue("t")
    dump(a)
    a("s_endpgm")
    a.label(P('C'))
    vm=Cnt(a,"vmcnt"); lg=Cnt(a,"lgkmcnt"); vm.ops=list(ops0)
    if W1LATE: w_ops(1,vm)
    a("s_and_b32 s36, s43, 1")
    a("s_lshr_b32 s37, s43, 1")
    srd(a,56,PWS,PWS+1,SZ_QA,WS_QA)
    a("v_and_b32 v3, 31, v1")
    a("s_lshl_b32 s60, s36, 5")
    a("v_add_u32 v3, s60, v3")
    a("v_lshrrev_b32 v4, 5, v1")
    a("v_bfe_u32 v5, v3, 1, 3")
    a("v_xor_b32 v5, v5, v4")
    a("v_lshlrev_b32 v5, 4, v5")
    a("v_lshl_add_u32 v10, v3, 7, v5")
    for s_ in range(1,4): a(f"v_xor_b32 v{10+s_}, {32*s_}, v10")
    a("v_bfe_u32 v5, v1, 2, 2")
    a("v_lshl_add_u32 v6, v4, 3, v5")
    a("v_mul_u32_u24 v6, 384, v6")
    a("v_bfe_u32 v7, v1, 4, 1")
    a("v_lshl_add_u32 v6, v7, 5, v6")
    a("v_and_b32 v7, 1, v1")
    a("v_lshl_add_u32 v6, v7, 4, v6")
    a("v_bfe_u32 v7, v1, 1, 1")
    a("v_lshl_add_u32 v6, v7, 3, v6")
    a(f"v_add_u32 v6, {WB}, v6")
    a("v_lshrrev_b32 v5, 1, v5")
    a("s_mul_i32 s60, s37, 3")
    for jj in range(3):
        a(f"s_add_u32 s61, s60, {jj}")
        a("v_xor_b32 v7, s61, v5")
        a(f"v_lshl_add_u32 v{20+jj}, v7, 6, v6")
        a(f"v_add_u32 v{24+jj}, {2*WSLOT}, v{20+jj}")
    a(f"s_mul_i32 s60, s{CB}, 192")
    a("s_mul_i32 s61, s37, 96")
    a("s_add_u32 s60, s60, s61")
    a(f"s_lshl_b32 s62, s{RB}, 1")
    a("s_add_u32 s62, s62, s36")
    a(f"s_mul_i32 s62, s62, {TBS}")
    a("s_lshl_b32 s61, s60, 6")
    a("s_add_u32 s62, s62, s61")
    a("s_add_u32 s63, s62, 4096")
    for jj in range(3):
        a(f"s_add_u32 s61, s60, {32*jj}")
        a("s_cmp_lt_u32 s61, 448")
        a(f"s_cselect_b32 s{78+2*jj}, {f32bits(DH**-0.5*LOG2E)}, {f32bits(1.0)}")
        a(f"s_mov_b32 s{79+2*jj}, s{78+2*jj}")
    a("v_lshlrev_b32 v5, 4, v1")
    ACC=32; BFq=96; AFq=112
    NK=28
    def rdB(k):
        c=k//4; s_=k%4; b=k%3
        a(f"ds_read_b128 {v(BFq+4*b,4)}, v{10+s_} offset:{XB+c*8192}"); lg.issue(("f",k,0))
    def rdA(k,jj):
        c=k//4; s_=k%4; slot=c%4; b=k%3
        ab=(20 if slot<2 else 24)+jj
        o=(slot&1)*WSLOT+s_*16*384
        a(f"ds_read_b64_tr_b16 {v(AFq+12*b+4*jj,2)}, v{ab} offset:{o}"); lg.issue(("f",k,jj))
        a(f"ds_read_b64_tr_b16 {v(AFq+12*b+4*jj+2,2)}, v{ab} offset:{o+4*384}"); lg.issue(("f",k,jj))
    vm.wait(("W",0))
    a("s_waitcnt lgkmcnt(0)")
    st(a,"C0")
    a("s_barrier")
    st(a,"B0")
    for k in (0,1):
        rdB(k)
        for jj in range(3): rdA(k,jj)
    for k in range(NK):
        b=k%3
        for jj in range(3):
            lg.wait(("f",k,jj))
            cin="0" if k==0 else v(ACC+16*jj,16)
            a(f"v_mfma_f32_32x32x16_bf16 {v(ACC+16*jj,16)}, {v(AFq+12*b+4*jj,4)}, {v(BFq+4*b,4)}, {cin}")
            if k+2<NK:
                if jj==0:
                    if (k+2)%4==0:
                        vm.wait(("W",(k+2)//4))
                        a("s_barrier")
                    rdB(k+2)
                rdA(k+2,jj)
    st(a,"mfma")
    a("s_nop 7")
    a("s_nop 1")
    OB=160
    for jj in range(3):
        for r in range(8): a(f"v_pk_mul_f32 {v(ACC+16*jj+2*r,2)}, {v(ACC+16*jj+2*r,2)}, s[{78+2*jj}:{79+2*jj}]")
        for r in range(8): a(f"v_cvt_pk_bf16_f32 v{OB+8*jj+r}, v{ACC+16*jj+2*r}, v{ACC+16*jj+2*r+1}")
        sb=62 if jj<2 else 63; o=2048*(jj%2)
        a(f"buffer_store_dwordx4 {v(OB+8*jj,4)}, v5, s[56:59], s{sb} offen offset:{o}")
        a(f"buffer_store_dwordx4 {v(OB+8*jj+4,4)}, v5, s[56:59], s{sb} offen offset:{o+1024}")
    st(a,"epi")
    dump(a)
    a("s_endpgm")
    a.label(P('spare'))
    a(f"s_sub_u32 s36, s{SI}, 28")
    a("s_lshl_b32 s36, s36, 3")
    a(f"s_add_u32 s36, s36, s{SX}")
    sdiv(a,37,38,36,14,39)
    a("v_lshrrev_b32 v3, 4, v1")
    a(f"s_lshl_b32 s39, s{SW}, 2")
    a("v_add_u32 v3, s39, v3")
    a("v_mul_u32_u24 v4, 3584, v3")
    a("v_and_b32 v5, 15, v1")
    a("v_lshl_add_u32 v4, v5, 4, v4")
    a("s_waitcnt lgkmcnt(0)")
    a("s_cmp_lt_u32 s36, 28")
    a(f"s_cbranch_scc1 {P('cs')}")
    a("s_cmp_lg_u32 s36, 31")
    a(f"s_cbranch_scc1 {P('end')}")
    srd(a,SRD_FLAG,PWS,PWS+1,SZ_FLAG,WS_FLAG)
    a("v_lshlrev_b32 v3, 4, v0")
    for r in range(4,8): a(f"v_mov_b32 v{r}, 0")
    a(f"buffer_store_dwordx4 v[4:7], v3, s[{SRD_FLAG}:{SRD_FLAG+3}], 0 offen")
    a("s_endpgm")
    a.label(P('cs'))
    if not CS_KB: colsum_body(a,'')
    dump(a)
    a.label(P('end'))
    a("s_endpgm")
    return a.text(), kdesc(name,256 if STAMP else 192)

def CH(c): return 16384*c if c<3 else (KVB+16384*(c-3) if c<6 else UB)
MISC=49152
NEARLY=5; NRES=19
def p5_group_addr(n):
    if n<5: return UB+16384+8192*n
    if n<19:
        k=n-5; return CH(k//2)+8192*(k%2)
    return p5_group_addr(n-19)
VW=254; VG=252; VU=253; VL16=251; VL4=250; VRES=240
S_GU=94; S_W1K=95; S_WD=78; S_WDROT=93; S_WOROT=77
SRD_G=80; SRD_U=84; SRD_WD=96
def gu_dma(a, c, m, vm=None):
    a(f"s_add_u32 m0, s{S_W1K}, {CH(c)+8192*m}")
    if m==1: a(f"s_add_u32 s92, s90, {64*3584}")
    else: a("s_nop 0")
    if not NOW and not (E('NOGU4',0) and c>=3):
        a(f"buffer_load_dwordx4 v{VG+m}, s[{SRD_G+4*m}:{SRD_G+3+4*m}], s90 offen"+os.environ.get("GUF","")+" lds")
        if vm: vm.issue(("W",c))
    if m==1:
        a("s_cmp_eq_u32 s92, s91")
        a(f"s_cselect_b32 s90, s{S_GU}, s92")
def wd_dma(a, n, vm=None):
    a(f"s_add_u32 m0, s{S_W1K}, {p5_group_addr(n)}")
    a(f"s_add_u32 s92, s79, {64*896}")
    if not NOW and not (E('NOWD4',0) and n<E('NOWD4',0)):
        a(f"buffer_load_dwordx4 v{VW}, s[{SRD_WD}:{SRD_WD+3}], s79 offen lds")
        if vm: vm.issue(("wd",n))
    a("s_cmp_eq_u32 s92, s75")
    a(f"s_cselect_b32 s79, s{S_WD}, s92")

def csdma(a,vm=None):
    srd(a,68,PWS,PWS+1,SZ_CS,WS_CS)
    a(f"s_mul_i32 s66, s{SW}, {F*4}")
    a(f"s_lshl_b32 s67, s{SI}, 8")
    a("s_add_u32 s66, s66, s67")
    a(f"s_min_u32 s67, s{SW}, 2")
    a("s_lshl_b32 s67, s67, 8")
    a(f"s_add_u32 m0, s67, {MISC}")
    a("s_nop 0")
    a(f"buffer_load_dword v{VL4}, s[68:71], s66 offen sc1 lds")
    if vm: vm.issue("cs")

PEND=[]
def run_pending():
    while PEND: PEND.pop(0)()

def kb_phase2(a):
    KB=KVB; VB=KVB+24576
    HD,QB=36,37
    a(f"s_getreg_b32 s{SXC}, hwreg(HW_REG_XCC_ID)")
    a(f"s_lshr_b32 s{HD}, s{SI}, 1")
    a(f"s_and_b32 s38, s{SI}, 1")
    a(f"s_lshl_b32 s{QB}, s{SX}, 1")
    a(f"s_add_u32 s{QB}, s{QB}, s38")
    a(f"s_mul_i32 s40, s{HD}, 7")
    a("s_lshr_b32 s40, s40, 1")
    a(f"s_and_b32 s41, s{HD}, 1")
    a("v_and_b32 v3, 15, v1")
    a("v_lshrrev_b32 v4, 4, v1")
    a("v_lshlrev_b32 v5, 9, v4")
    a("v_lshl_add_u32 v6, v3, 4, v5")
    a("v_and_b32 v7, 1, v4")
    a("v_lshlrev_b32 v7, 3, v7")
    a("v_xor_b32 v7, v7, v3")
    a("v_lshl_add_u32 v7, v7, 4, v5")
    a(f"s_lshl_b32 s42, s{QB}, 3")
    a(f"s_add_u32 s42, s42, s{SW}")
    a("s_lshr_b32 s43, s42, 1")
    a(f"s_mul_i32 s43, s43, {TBS}")
    a("s_and_b32 s44, s42, 1")
    a("s_lshl_b32 s44, s44, 8")
    a("s_add_u32 s43, s43, s44")
    a("s_lshl_b32 s45, s40, 9")
    a("s_add_u32 s46, s43, s45")
    for u in range(3):
        a(f"s_mul_i32 s56, s{SW}, 3")
        a(f"s_add_u32 s56, s56, {u}")
        a(f"s_lshl_b32 s57, s{QB}, 3")
        a("s_add_u32 s57, s57, s56")
        a("s_sub_u32 s57, s57, 16")
        a("s_lshr_b32 s58, s57, 1")
        a(f"s_mul_i32 s58, s58, {TBS}")
        a("s_and_b32 s59, s57, 1")
        a("s_lshl_b32 s59, s59, 8")
        a("s_add_u32 s58, s58, s59")
        a("s_add_u32 s58, s58, s45")
        a("s_cmp_lt_i32 s57, 0")
        a("s_cselect_b32 s58, 0x40000000, s58")
        a(f"s_add_u32 s{66+2*u}, s58, {56*512}")
        a(f"s_add_u32 s{67+2*u}, s58, {112*512}")
    a(f"s_mul_i32 s60, s{SW}, 3072")
    a(f"s_add_u32 s60, s60, {KB}")
    a(f"s_and_b32 s{SXC}, s{SXC}, 15")
    a(f"s_add_u32 s{SXC}, s{SXC}, 1")
    QF=12
    a("s_waitcnt lgkmcnt(0)")
    st(a,"kernarg")
    srd(a,48,PWS,PWS+1,SZ_QA,WS_QA)
    a(f"buffer_load_dwordx4 {v(QF,4)}, v6, s[48:51], s46 offen sc1")
    for u in range(3):
        a(f"s_add_u32 m0, s60, {1024*u}")
        a("s_nop 0")
        a(f"buffer_load_dwordx4 v6, s[48:51], s{66+2*u} offen sc1 lds")
    for u in range(3):
        a(f"s_add_u32 m0, s60, {VB-KB+1024*u}")
        a("s_nop 0")
        a(f"buffer_load_dwordx4 v7, s[48:51], s{67+2*u} offen sc1 lds")
    srd(a,SRD_FLAG,PWS,PWS+1,SZ_FLAG,WS_FLAG)
    a(f"s_lshl_b32 s74, s{SX}, 7")
    a(f"s_lshl_b32 s56, s{SI}, 2")
    a("s_add_u32 s56, s56, s74")
    a(f"s_cmp_eq_u32 s{SW}, 7")
    a("s_cselect_b32 s56, s56, 0x40000000")
    a(f"v_mov_b32 v2, s{SXC}")
    a("v_mov_b32 v8, 0")
    a("s_mov_b64 exec, 1")
    a(f"buffer_store_dword v2, v8, s[{SRD_FLAG}:{SRD_FLAG+3}], s56 offen sc1")
    a("s_mov_b64 exec, -1")
    M0R=16; M16=20
    a("v_lshlrev_b32 v8, 2, v4")
    a(f"v_mov_b32 v9, {NEG}")
    for r in range(4):
        a(f"v_add_u32 v10, {r}, v8")
        a("v_cmp_lt_u32 vcc, v3, v10")
        a("s_nop 1")
        a(f"v_cndmask_b32_e64 v{M0R+r}, v9, 0, vcc")
        a(f"v_cndmask_b32_e64 v{M16+r}, 0, v9, vcc")
    a(f"v_lshlrev_b32 v{VL16}, 4, v1")
    a(f"v_lshlrev_b32 v{VL4}, 2, v1")
    a(f"s_lshl_b32 s{S_W1K}, s{SW}, 10")
    a(f"s_add_u32 s47, s{S_W1K}, {KB}")
    a(f"v_add_u32 v10, s47, v{VL16}")
    a("v_bfe_u32 v24, v1, 2, 2")
    a("v_add_u32 v24, v24, v8")
    a("v_bfe_u32 v25, v1, 1, 1")
    a("v_lshlrev_b32 v26, 3, v25")
    a("v_xor_b32 v24, v24, v26")
    a("v_lshlrev_b32 v24, 4, v24")
    a("v_lshl_add_u32 v24, v25, 8, v24")
    a("v_and_b32 v25, 1, v1")
    a("v_lshl_add_u32 v24, v25, 3, v24")
    a(f"v_add_u32 v24, {VB-KB}, v24")
    a("v_add_u32 v11, s47, v24")
    a("v_lshrrev_b32 v28, 1, v4")
    a("v_lshlrev_b32 v28, 9, v28")
    a("v_lshl_add_u32 v28, v3, 4, v28")
    a("v_and_b32 v29, 1, v4")
    a("v_lshl_add_u32 v28, v29, 3, v28")
    a("v_add_u32 v29, 1024, v28")
    a("v_mov_b32 v30, 0x40000000")
    a("s_cmp_eq_u32 s41, 0")
    a("s_cselect_b32 s62, 64, 0")
    a("s_cselect_b32 s63, 3, 64")
    a("v_cmp_eq_u32 vcc, s62, v4")
    a("s_nop 1")
    a("v_cndmask_b32 v28, v28, v30, vcc")
    a("v_cmp_eq_u32 vcc, s63, v4")
    a("s_nop 1")
    a("v_cndmask_b32 v29, v29, v30, vcc")
    a(f"s_lshl_b32 s33, s{QB}, 4")
    a(f"s_add_u32 s33, s33, s{HD}")
    a("s_lshl_b32 s33, s33, 2")
    a(f"s_add_u32 s33, s33, {F2}")
    a(f"v_lshrrev_b32 v{VW}, 3, v1")
    a(f"v_mul_u32_u24 v150, 3584, v{VW}")
    a(f"v_mul_u32_u24 v{VW}, 896, v{VW}")
    a("v_bfe_u32 v151, v1, 2, 1")
    a("v_bfe_u32 v152, v1, 4, 1")
    a("v_xor_b32 v151, v151, v152")
    a(f"v_lshl_add_u32 v{VW}, v151, 6, v{VW}")
    a("v_and_b32 v151, 3, v1")
    a(f"v_lshl_add_u32 v{VW}, v151, 4, v{VW}")
    a("v_bfe_u32 v151, v1, 1, 2")
    a("v_xor_b32 v151, v151, v152")
    a("v_and_b32 v152, 1, v1")
    a("v_lshl_add_u32 v150, v152, 4, v150")
    a(f"v_lshl_add_u32 v{VG}, v151, 5, v150")
    a("v_xor_b32 v151, 2, v151")
    a(f"v_lshl_add_u32 v{VU}, v151, 5, v150")
    srd(a,SRD_G,PWG,PWG+1,D*F*2)
    srd(a,SRD_U,PWU,PWU+1,D*F*2)
    srd(a,SRD_WD,PWO,PWO+1,D*D*2)
    a(f"s_mul_i32 s{S_GU}, s{SW}, {8*3584}")
    a(f"s_lshl_b32 s56, s{SI}, 7")
    a(f"s_add_u32 s{S_GU}, s{S_GU}, s56")
    a(f"s_mul_i32 s{S_WD}, s{SW}, {8*896}")
    a("s_lshl_b32 s56, s89, 7")
    a(f"s_add_u32 s{S_WD}, s{S_WD}, s56")
    a(f"s_lshl_b32 s56, s92, 1")
    if ROTB: rot_idx(a,S_WOROT,"s56",89,7)
    else: a(f"s_mov_b32 s{S_WOROT}, s56")
    a("s_mul_i32 s56, s92, 7")
    a("s_lshl_b32 s57, s89, 2")
    if ROTB: rot_idx(a,S_WDROT,"s56",57,28)
    else: a(f"s_mov_b32 s{S_WDROT}, s56")
    a(f"s_cmp_ge_u32 s{SI}, 28")
    a(f"s_cselect_b32 s{S_GU}, 0x40000000, s{S_GU}")
    a(f"s_cselect_b32 s{S_WD}, 0x40000000, s{S_WD}")
    a(f"s_mul_i32 s90, s89, {64*3584 if ROT4 else 0}")
    a(f"s_add_u32 s90, s90, s{S_GU}")
    a(f"s_add_u32 s91, s{S_GU}, {7*64*3584}")
    a(f"s_mul_i32 s79, s{S_WOROT}, {64*896}")
    a(f"s_add_u32 s79, s79, s{S_WD}")
    a(f"s_add_u32 s75, s{S_WD}, {7*64*896}")
    a(f"s_and_b32 s56, s{SW}, 3")
    a(f"s_lshr_b32 s57, s{SW}, 2")
    a("s_lshl_b32 s58, s88, 1")
    a("s_add_u32 s58, s58, s57")
    a(f"s_mul_i32 s58, s58, {32*896}")
    a("s_lshl_b32 s59, s89, 7")
    a("s_add_u32 s58, s58, s59")
    a("s_lshl_b32 s59, s56, 5")
    a("s_add_u32 s73, s58, s59")
    a(f"s_cmp_ge_u32 s{SI}, 28")
    a("s_cselect_b32 s73, 0x40000000, s73")
    a("v_and_b32 v150, 31, v1")
    a("v_mul_u32_u24 v150, 896, v150")
    a("v_lshrrev_b32 v151, 5, v1")
    a("v_lshl_add_u32 v249, v151, 4, v150")
    srd(a,56,PX,PX+1,S*D*2)
    a("s_waitcnt vmcnt(7)")
    a("s_cmp_eq_u32 s41, 0")
    a(f"s_cbranch_scc0 {P('p2_odd')}")
    a("v_cmp_gt_u32 vcc, 48, v1")
    a("s_nop 1")
    a(f"v_cndmask_b32 v{QF+2}, 0, v{QF+2}, vcc")
    a(f"v_cndmask_b32 v{QF+3}, 0, v{QF+3}, vcc")
    a(f"s_branch {P('p2_qd')}")
    a.label(P('p2_odd'))
    a("v_cmp_le_u32 vcc, 16, v1")
    a("s_nop 1")
    a(f"v_cndmask_b32 v{QF+0}, 0, v{QF+0}, vcc")
    a(f"v_cndmask_b32 v{QF+1}, 0, v{QF+1}, vcc")
    a.label(P('p2_qd'))
    st(a,"setup")
    a("s_waitcnt vmcnt(1)")
    a("s_barrier")
    st(a,"kv")
    def wo_dma(n):
        a(f"s_add_u32 m0, s{S_W1K}, {UB+8192*n}")
        a(f"s_add_u32 s92, s79, {64*896}")
        if not NOW: a(f"buffer_load_dwordx4 v{VW}, s[{SRD_WD}:{SRD_WD+3}], s79 offen lds")
        a("s_cmp_eq_u32 s92, s75")
        a(f"s_cselect_b32 s79, s{S_WD}, s92")
    pf=[lambda n=n: wo_dma(n) for n in range(7)]
    pf+=[lambda: a(f"buffer_load_dwordx4 {v(VRES,4)}, v249, s[56:59], s73 offen")]
    pf+=[lambda k=k: gu_dma(a,k//2,k%2) for k in range(2*P2_CH)]
    def htouch():
        srd(a,68,PWS,PWS+1,SZ_H,WS_H)
        a(f"s_lshr_b32 s66, s{SW}, 2")
        a("s_lshl_b32 s67, s88, 1")
        a("s_add_u32 s66, s66, s67")
        a(f"s_mul_i32 s67, s66, {56*512}")
        a("s_lshl_b32 s72, s89, 12")
        a("s_add_u32 s67, s67, s72")
        a(f"s_and_b32 s72, s{SW}, 3")
        a("s_lshl_b32 s72, s72, 10")
        a("s_add_u32 s67, s67, s72")
        a(f"s_cmp_ge_u32 s{SI}, 28")
        a("s_cselect_b32 s67, 0x40000000, s67")
        a(f"buffer_load_dwordx4 v[144:147], v{VL16}, s[68:71], s67 offen sc1")
        srd(a,68,PWS,PWS+1,SZ_ST2,WS_ST2)
        a(f"s_mul_i32 s67, s89, {S*8}")
        a("s_lshl_b32 s66, s66, 8")
        a("s_add_u32 s67, s67, s66")
        a(f"buffer_load_dword v148, v{VL4}, s[68:71], s67 offen sc1")
    if TOUCH: htouch()
    if not CS_KB: csdma(a)
    SR=32; KF=100; NB=6
    for t in range(NB):
        a(f"ds_read_b128 {v(KF+4*(t%NB),4)}, v10 offset:{1024*t}")
    for t in range(17):
        outstanding=min(17,t+NB)-t-1
        a(f"s_waitcnt lgkmcnt({outstanding})")
        cin = v(M0R,4) if t==0 else (v(M16,4) if t==16 else "0")
        a(f"v_mfma_f32_16x16x32_bf16 {v(SR+4*t,4)}, {v(KF+4*(t%NB),4)}, {v(QF,4)}, {cin}")
        if t+NB<17:
            a(f"ds_read_b128 {v(KF+4*(t%NB),4)}, v10 offset:{1024*(t+NB)}")
        if t%3==2 and pf: pf.pop(0)()
    VF=100
    def vread(j):
        b=VF+8*(j%3)
        for dt in range(2):
            a(f"ds_read_b64_tr_b16 {v(b+4*dt,2)}, v11 offset:{1024*(2*j)+512*dt}")
            if 2*j+1<17:
                a(f"ds_read_b64_tr_b16 {v(b+4*dt+2,2)}, v11 offset:{1024*(2*j+1)+512*dt}")
    vread(0); vread(1); vread(2)
    a("s_cmp_ge_u32 s42, 16")
    a(f"s_cbranch_scc1 {P('p2_nomask')}")
    a("s_sub_u32 s63, 16, s42")
    for t in range(16):
        a(f"s_cmp_le_u32 s63, {t}")
        a(f"s_cbranch_scc1 {P('p2_nomask')}")
        for r in range(4): a(f"v_mov_b32 v{SR+4*t+r}, v9")
    a.label(P('p2_nomask'))
    st(a,"qk")
    a(f"v_max3_f32 v24, v{SR}, v{SR+1}, v{SR+2}")
    a(f"v_max3_f32 v25, v{SR+3}, v{SR+4}, v{SR+5}")
    i=6; k=0
    while i+1<68:
        a(f"v_max3_f32 v{24+k}, v{24+k}, v{SR+i}, v{SR+i+1}")
        i+=2; k^=1
    a("v_max_f32 v24, v24, v25")
    a("v_mov_b32 v25, v24")
    a("s_nop 1")
    a("v_permlane32_swap_b32 v24, v25")
    a("v_max_f32 v24, v24, v25")
    a("v_mov_b32 v25, v24")
    a("s_nop 1")
    a("v_permlane16_swap_b32 v24, v25")
    a("v_max_f32 v24, v24, v25")
    a("v_mov_b32 v25, v24")
    a("v_mov_b32 v26, 0\nv_mov_b32 v27, 0")
    O0=124; O1=128; PP=132
    after_id=[0]
    for j in range(9):
        nt = 2 if 2*j+1<17 else 1
        pb=PP+4*(j%2)
        regs=[SR+8*j+r for r in range(4*nt)]
        for r in regs[::2]: a(f"v_pk_add_f32 {v(r,2)}, {v(r,2)}, v[24:25] neg_lo:[0,1] neg_hi:[0,1]")
        for r in regs: a(f"v_exp_f32 v{r}, v{r}")
        if pf:
            pf.pop(0)()
            if j>4: after_id[0]+=1
        else: a("s_nop 0")
        for q,r in enumerate(regs[::2]):
            a(f"v_cvt_pk_bf16_f32 v{pb+q}, v{r}, v{r+1}")
        for r in regs[::2]: a(f"v_pk_add_f32 v[26:27], v[26:27], {v(r,2)}")
        rem=0
        for jj in range(j+1,min(9,j+3)):
            rem += 4 if 2*jj+1<17 else 2
        a(f"s_waitcnt lgkmcnt({rem})")
        b=VF+8*(j%3)
        c0 = "0" if j==0 else v(O0,4)
        c1 = "0" if j==0 else v(O1,4)
        if nt==2:
            a(f"v_mfma_f32_16x16x32_bf16 {v(O0,4)}, {v(b,4)}, {v(pb,4)}, {c0}")
            a(f"v_mfma_f32_16x16x32_bf16 {v(O1,4)}, {v(b+4,4)}, {v(pb,4)}, {c1}")
        else:
            a(f"v_mfma_f32_16x16x16_bf16 {v(O0,4)}, {v(b,2)}, {v(pb,2)}, {c0}")
            a(f"v_mfma_f32_16x16x16_bf16 {v(O1,4)}, {v(b+4,2)}, {v(pb,2)}, {c1}")
        if j+3<9: vread(j+3)
        if j==4:
            a(f"buffer_load_dword v31, v{VL4}, s[{SRD_FLAG}:{SRD_FLAG+3}], s74 offen sc1")
    while pf: pf.pop(0)(); after_id[0]+=1
    a("v_add_f32 v26, v26, v27")
    a("v_mov_b32 v27, v26")
    a("s_nop 1")
    a("v_permlane32_swap_b32 v26, v27")
    a("v_add_f32 v26, v26, v27")
    a("v_mov_b32 v27, v26")
    a("s_nop 1")
    a("v_permlane16_swap_b32 v26, v27")
    a("v_add_f32 v26, v26, v27")
    a("v_rcp_f32 v26, v26")
    a("s_nop 0")
    for r in range(8): a(f"v_mul_f32 v{O0+r}, v26, v{O0+r}")
    for r in range(4): a(f"v_cvt_pk_bf16_f32 v{PP+r}, v{O0+2*r}, v{O0+2*r+1}")
    a(f"s_waitcnt vmcnt({0 if NOW else after_id[0]})")
    a("v_cmp_eq_u32 vcc, 0, v31")
    a("s_nop 3")
    a("s_cmp_eq_u32 vcc_lo, 0")
    a(f"s_cbranch_scc1 {P('idok')}")
    spin(a,VL4,"s74",-1,0,"wid",vd=31)
    a.label(P('idok'))
    a(f"v_cmp_ne_u32 vcc, s{SXC}, v31")
    a("s_nop 3")
    a("s_cmp_eq_u32 vcc_lo, 0")
    a(f"s_cselect_b32 s{SMODE}, {0 if FORCE_SLOW else 1}, 0")
    hstore(a,[f"buffer_store_dwordx2 {v(PP,2)}, v28, s[48:51], s46 offen",
              f"buffer_store_dwordx2 {v(PP+2,2)}, v29, s[48:51], s46 offen"])
    def fin():
        signal(a,33,"s2")
        a(f"s_cmp_lg_u32 s{SW}, 2")
        a(f"s_cbranch_scc1 {P('nofn')}")
        a(f"s_lshl_b32 s33, s{SI}, 2")
        a("s_add_u32 s33, s33, s74")
        a(f"s_add_u32 s33, s33, {FN}")
        a("v_mov_b32 v2, 1")
        a("v_mov_b32 v3, 0")
        a("s_mov_b64 exec, 1")
        a(f"buffer_store_dword v2, v3, s[{SRD_FLAG}:{SRD_FLAG+3}], s33 offen sc1")
        a("s_mov_b64 exec, -1")
        a.label(P('nofn'))
        a(f"s_cmp_ge_u32 s{SI}, 28")
        a(f"s_cbranch_scc1 {P('spare2')}")
    PEND.append(fin)
    if not HOIST: run_pending()

def kb_phase35(a, mode):
    k3=(mode==3); tag=f"p{mode}"
    KD=D if k3 else F
    NST=KD//64
    vm=Cnt(a,"vmcnt"); lg=Cnt(a,"lgkmcnt")
    KS,TG=36,37
    a(f"s_and_b32 s{KS}, s{SW}, 3")
    a(f"s_lshr_b32 s{TG}, s{SW}, 2")
    a(f"s_lshr_b32 s38, s{KS}, 1")
    a(f"s_and_b32 s39, s{KS}, 1")
    a("v_lshrrev_b32 v4, 5, v1")
    a("v_bfe_u32 v5, v1, 2, 2")
    a("v_lshl_add_u32 v8, v4, 3, v5")
    a("v_lshlrev_b32 v8, 7, v8")
    a("v_lshrrev_b32 v5, 1, v5")
    a("v_xor_b32 v5, s38, v5")
    a("v_lshl_add_u32 v8, v5, 6, v8")
    a("v_bfe_u32 v5, v1, 4, 1")
    a("v_xor_b32 v5, s39, v5")
    a("v_lshl_add_u32 v8, v5, 5, v8")
    a("v_and_b32 v5, 1, v1")
    a("v_lshl_add_u32 v8, v5, 4, v8")
    a("v_bfe_u32 v5, v1, 1, 1")
    a("v_lshl_add_u32 v8, v5, 3, v8")
    a(f"s_lshl_b32 s40, s{KS}, 11")
    a("v_add_u32 v8, s40, v8")
    a("v_xor_b32 v9, 64, v8")
    a("v_add_u32 v10, 0x10000, v8")
    a("v_add_u32 v11, 0x10000, v9")
    if not k3:
        a("v_add_u32 v12, 0x20000, v8")
        a("v_add_u32 v13, 0x20000, v9")
    if k3:
        srd(a,56,PWS,PWS+1,SZ_H,WS_H)
        srd(a,60,PWS,PWS+1,SZ_ST2,WS_ST2)
    else:
        srd(a,48,PWS,PWS+1,SZ_QA,WS_QA)
        srd(a,52,PWS,PWS+1,SZ_H,WS_H)
        srd(a,56,POUT,POUT+1,S*D*2)
    a("s_lshl_b32 s40, s88, 1")
    a(f"s_add_u32 s40, s40, s{TG}")
    a(f"s_mul_i32 s41, s40, {TBS}")
    a(f"s_lshl_b32 s42, s{KS}, 10")
    a("s_add_u32 s41, s41, s42")
    a(f"s_add_u32 s43, s41, {NST*4096}")
    a(f"s_lshl_b32 s42, s{S_WOROT if k3 else S_WDROT}, 12")
    a("s_add_u32 s42, s42, s41")
    a(f"s_mul_i32 s45, s40, {56*512}")
    a("s_lshl_b32 s46, s89, 12")
    a("s_add_u32 s45, s45, s46")
    a(f"s_lshl_b32 s46, s{KS}, 10")
    a("s_add_u32 s45, s45, s46")
    if k3: b0,b1=(KVB,KVB+24576) if P3_LAST<3 else (UB,UB+24576)
    else: b0,b1=KVB,KVB+24576
    a(f"s_mul_i32 s46, s{TG}, {b1-b0}")
    a(f"s_add_u32 s46, s46, {b0}")
    a(f"s_mul_i32 s47, s{KS}, 6144")
    a("s_add_u32 s47, s47, s46")
    a(f"v_add_u32 v24, s47, v{VL16}")
    for j in (1,2,3):
        a(f"s_xor_b32 s47, s{KS}, {j}")
        a("s_mul_i32 s47, s47, 6144")
        a("s_add_u32 s47, s47, s46")
        a(f"v_add_u32 v{24+j}, s47, v{VL16}")
    RES=VRES if k3 else 16; ACC=32; AF=64; BF=96
    RB_=(16 if P5_REG else 28) if not k3 else 7
    NREG=9; AREG=160
    if k3:
        a(f"s_mul_i32 s44, s89, {S*8}")
        a(f"s_lshl_b32 s47, s{SW}, 9")
        a(f"s_add_u32 s47, s47, {MISC+1024}")
        a("v_lshlrev_b32 v28, 3, v1")
        a("v_add_u32 v28, s47, v28")
        a(f"s_lshl_b32 s47, s{TG}, 11")
        a(f"s_add_u32 s47, s47, {MISC+1024}")
        a("v_and_b32 v29, 31, v1")
        a("v_lshlrev_b32 v29, 3, v29")
        a("v_add_u32 v29, s47, v29")
        a("s_lshl_b32 s47, s40, 8")
        a("s_add_u32 s44, s44, s47")
        a("v_lshlrev_b32 v14, 3, v1")
        a("v_mov_b32 v15, 0x40000000")
        a("v_cmp_gt_u32 vcc, 32, v1")
        a("s_nop 1")
        a("v_cndmask_b32 v14, v15, v14, vcc")
        a(f"s_lshl_b32 s47, s{SI}, 2")
        a("s_add_u32 s34, s74, s47")
        a(f"s_add_u32 s34, s34, {F3}")
        a("s_lshr_b32 s46, s88, 1")
        a("s_lshl_b32 s46, s46, 6")
        a(f"s_add_u32 s46, s46, {F2}")
        a("s_mov_b32 s47, 0xffff0000")
        run_pending()
        poll(a,VL4,"s46",0xffff,0,"w2")
    else:
        run_pending()
        a(f"buffer_load_dwordx4 {v(RES,4)}, v{VL16}, s[52:55], s45 offen"); vm.issue("res")
        if P5_REG:
            for n in range(15,19): wd_dma(a,n,vm)
            for n in range(NREG):
                ga=p5_group_addr(n); hi=ga>>16; o=ga&0xffff; r0=8+2*hi; b=AREG+8*n
                for sl in range(2):
                    a(f"ds_read_b64_tr_b16 {v(b+4*sl,2)}, v{r0+sl} offset:{o}")
                    a(f"ds_read_b64_tr_b16 {v(b+4*sl+2,2)}, v{r0+sl} offset:{o+512}")
                if n%3==2: a("s_waitcnt lgkmcnt(0)")
            a("s_barrier")
            for n in range(19,28): wd_dma(a,n,vm)
        a(f"s_add_u32 s46, s74, {F4}")
        a("s_mov_b32 s47, 0xffff0000")
        poll(a,VL4,"s46",0x0fffffff,0,"w4")
    def bload(n):
        a("s_add_u32 s46, s42, 4096")
        a(f"buffer_load_dwordx4 {v(BF+4*(n%RB_),4)}, v{VL16}, s[48:51], s42 offen sc1"); vm.issue(("B",n))
        a("s_cmp_eq_u32 s46, s43")
        a("s_cselect_b32 s42, s41, s46")
    def inreg(n): return (not k3) and P5_REG and n<NREG
    def aread(n):
        if inreg(n): return
        ga = UB+8192*n if k3 else p5_group_addr(n)
        hi=ga>>16; o=ga&0xffff
        r0=8+2*hi
        b=AF+8*(n%2)
        for sl in range(2):
            a(f"ds_read_b64_tr_b16 {v(b+4*sl,2)}, v{r0+sl} offset:{o}"); lg.issue(("A",n))
            a(f"ds_read_b64_tr_b16 {v(b+4*sl+2,2)}, v{r0+sl} offset:{o+512}"); lg.issue(("A",n))
    LA0=7 if k3 else E('P5_LA0',6)
    for n in range(LA0): bload(n)
    nb=LA0
    if k3:
        for c in range(P2_CH,P3_LAST+1):
            for m in range(2): gu_dma(a,c,m,vm)
    aread(0)
    pend=[]
    NB1=15; NB2=NRES
    for n in range(NST):
        if n+1<NST:
            if not k3 and n+1==NB1:
                vm.wait(("wd",NRES-1 if not P5_REG else 27)); a("s_barrier")
            if not k3 and n+1==NB2:
                if not P5_REG: vm.wait(("wd",27))
                a("s_barrier")
            aread(n+1)
        vm.wait(("B",n)); lg.wait(("A",n))
        for sl in range(2):
            cin="0" if n==0 else v(ACC+16*sl,16)
            a(f"v_mfma_f32_32x32x16_bf16 {v(ACC+16*sl,16)}, {v((AREG+8*n if inreg(n) else AF+8*(n%2))+4*sl,4)}, {v(BF+4*(n%RB_),4)}, {cin}")
        for _ in range(E('P5_BPS',1)):
            if nb<NST and nb-n<=E('P5_LAM',10): bload(nb); nb+=1
        if STAMP==1 and n in (0,8,18): lg.waitall(); st(a,f"{tag}_n{n}")
        if not k3 and not P5_REG:
            if n==3: pend=list(range(NB1,NRES))
            if n==8:
                a("s_barrier")
                pend+=list(range(NRES,28))
            for _ in range(1 if n<8 else 2):
                if pend: wd_dma(a,pend.pop(0),vm)
    st(a,tag+"_mfma")
    if k3 and P3_LAST>=3: a("s_barrier")
    a("s_nop 7")
    a("s_nop 3")
    for j in (1,2,3):
        for q in range(2): a(f"ds_write_b128 v24, {v(ACC+8*j+4*q,4)} offset:{(j-1)*2048+q*1024}")
    vm.wait("res")
    UBr=AF
    for d_ in range(4):
        a(f"v_lshlrev_b32 v{UBr+2*d_}, 16, v{RES+d_}")
        a(f"v_and_b32 v{UBr+2*d_+1}, s47, v{RES+d_}")
    for d_ in range(4):
        a(f"v_pk_add_f32 {v(ACC+2*d_,2)}, {v(ACC+2*d_,2)}, {v(UBr+2*d_,2)}")
    a("s_waitcnt lgkmcnt(0)")
    a("s_barrier")
    st(a,tag+"_red")
    PR=BF
    for j in (1,2,3):
        for q in range(2): a(f"ds_read_b128 {v(PR+8*j+4*q,4)}, v{24+j} offset:{(j-1)*2048+q*1024}")
    for j in (1,2,3):
        a(f"s_waitcnt lgkmcnt({2*(3-j)})")
        for d_ in range(4):
            a(f"v_pk_add_f32 {v(ACC+2*d_,2)}, {v(ACC+2*d_,2)}, {v(PR+8*j+2*d_,2)}")
    OB=16
    for d_ in range(4): a(f"v_cvt_pk_bf16_f32 v{OB+d_}, v{ACC+2*d_}, v{ACC+2*d_+1}")
    if k3:
        hstore(a,[f"buffer_store_dwordx4 {v(OB,4)}, v{VL16}, s[56:59], s45 offen"])
        a("v_mov_b32 v22, 0x3f803f80")
        a("v_mov_b32 v20, 0")
        a("v_mov_b32 v21, 0")
        for d_ in range(4):
            a(f"v_dot2c_f32_bf16 v20, v{OB+d_}, v22")
            a(f"v_dot2c_f32_bf16 v21, v{OB+d_}, v{OB+d_}")
        a("s_nop 2")
        a("ds_write_b64 v28, v[20:21]")
        a("s_waitcnt lgkmcnt(0)")
        a("s_barrier")
        a(f"s_cmp_lg_u32 s{KS}, 0")
        a(f"s_cbranch_scc1 {P('p3_nost')}")
        for q in range(8): a(f"ds_read_b64 {v(32+2*q,2)}, v29 offset:{256*q}")
        a("s_waitcnt lgkmcnt(0)")
        for q in (0,2,4,6): a(f"v_pk_add_f32 {v(32+2*q,2)}, {v(32+2*q,2)}, {v(34+2*q,2)}")
        a("v_pk_add_f32 v[32:33], v[32:33], v[36:37]")
        a("v_pk_add_f32 v[40:41], v[40:41], v[44:45]")
        a("v_pk_add_f32 v[32:33], v[32:33], v[40:41]")
        hstore(a,[f"buffer_store_dwordx2 v[32:33], v14, s[60:63], s44 offen"])
        a.label(P('p3_nost'))
        PEND.append(lambda: signal(a,34,"s3"))
        if not HOIST: run_pending()
    else:
        a(f"buffer_store_dwordx4 {v(OB,4)}, v249, s[56:59], s73 offen"+os.environ.get("OUTF",""))

def kb_phase4(a):
    vm=Cnt(a,"vmcnt"); lg=Cnt(a,"lgkmcnt")
    srd(a,SRD_WD,PWD,PWD+1,F*D*2)
    a(f"s_mul_i32 s79, s{S_WDROT}, {64*896}")
    a(f"s_add_u32 s79, s79, s{S_WD}")
    a(f"s_add_u32 s75, s{S_WD}, {28*64*896}")
    a("v_lshrrev_b32 v4, 5, v1")
    a("v_bfe_u32 v5, v1, 2, 2")
    a("v_lshl_add_u32 v9, v4, 3, v5")
    a("v_lshlrev_b32 v9, 7, v9")
    a("v_bfe_u32 v10, v1, 4, 1")
    a("v_and_b32 v11, 1, v1")
    a("v_lshl_add_u32 v9, v11, 4, v9")
    a("v_bfe_u32 v11, v1, 1, 1")
    a("v_lshl_add_u32 v9, v11, 3, v9")
    a("v_lshrrev_b32 v5, 1, v5")
    a("v_lshl_add_u32 v5, v10, 1, v5")
    a("v_lshl_add_u32 v9, v5, 5, v9")
    a("v_lshl_add_u32 v12, v10, 13, v9")
    for t in range(1,4): a(f"v_xor_b32 v{12+t}, {32*t}, v12")
    a(f"v_add_u32 v25, {KVB}, v12")
    a("v_xor_b32 v26, 32, v25")
    a("v_xor_b32 v27, 64, v25")
    a("v_xor_b32 v29, 96, v25")
    a("v_and_b32 v17, 31, v1")
    a("v_lshlrev_b32 v17, 3, v17")
    a(f"v_mul_u32_u24 v16, {S*8}, v4")
    a("v_add_u32 v17, v17, v16")
    a("v_lshlrev_b32 v28, 5, v4")
    a(f"s_lshl_b32 s56, s{SX}, 3")
    a(f"s_add_u32 s56, s56, s{SW}")
    a(f"s_mul_i32 s57, s56, {28*1024}")
    a(f"s_add_u32 s54, s57, {7*4096}")
    a(f"s_mul_i32 s55, s89, {4096 if ROT4 else 0}")
    a("s_add_u32 s55, s55, s57")
    a("s_lshl_b32 s58, s56, 8")
    a(f"s_mul_i32 s59, s56, {112*1024}")
    a(f"s_lshl_b32 s60, s{SI}, 12")
    a("s_add_u32 s59, s59, s60")
    a(f"s_lshl_b32 s60, s{SI}, 8")
    a(f"s_add_u32 s61, s60, {F*4}")
    srd(a,36,PWS,PWS+1,SZ_H,WS_H)
    srd(a,40,PWS,PWS+1,SZ_QA,WS_QA)
    srd(a,44,PWS,PWS+1,SZ_ST2,WS_ST2)
    srd(a,48,PWS,PWS+1,SZ_CS,WS_CS)
    a(f"s_lshl_b32 s35, s{SI}, 2")
    a("s_add_u32 s35, s35, s74")
    a(f"s_add_u32 s35, s35, {F4}")
    a(f"s_add_u32 s62, s74, {F3}")
    a(f"v_mul_u32_u24 v16, {FN-F3}, v4")
    a(f"v_add_u32 v16, v16, v{VL4}")
    if CS_KB:
        a(f"s_lshr_b32 s63, s{SI}, 1")
        a("s_lshl_b32 s63, s63, 2")
        a(f"s_add_u32 s63, s63, {FC}")
        a("s_sub_u32 s63, s63, s62")
        a("v_mov_b32 v18, s63")
        a(f"v_add_u32 v19, {14*4}, v18")
        a("v_cmp_eq_u32 vcc, 28, v1")
        a("s_nop 1")
        a("v_cndmask_b32 v16, v16, v18, vcc")
        a("v_cmp_eq_u32 vcc, 29, v1")
        a("s_nop 1")
        a("v_cndmask_b32 v16, v16, v19, vcc")
    a(f"s_cmp_eq_u32 s{SX}, 7")
    a("s_cselect_b32 s63, 0, -1")
    run_pending()
    for c in range(P3_LAST+1,S3_LAST+1):
        for m in range(2): gu_dma(a,c,m)
    poll(a,16,"s62",0x3fffffff if CS_KB else 0x0fffffff,"s63","w3")
    BFR=64; ACC=176; AF=32; STR=240
    def hb(c,s_):
        def f():
            if s_==0 and c>0:
                a("s_add_u32 s55, s55, 4096")
                a("s_cmp_eq_u32 s55, s54")
                a("s_cselect_b32 s55, s57, s55")
            if E('NOH',0): return
            a(f"buffer_load_dwordx4 {v(BFR+16*c+4*s_,4)}, v{VL16}, s[36:39], s55 offen offset:{1024*s_}"); vm.issue(("h",c,s_))
        return f
    hq=[hb(c,s_) for c in range(7) for s_ in range(4)]
    NPRE=E('P4_NPRE',6)
    for f in hq[:NPRE]: f()
    steps=[(c,s_,t) for c in range(5) for s_ in range(4) for t in range(4)]
    steps+=[(c,s_,t) for t in range(4) for c in (5,6) for s_ in range(4)]
    NS=len(steps); PF=6
    def rd(i):
        c,s_,t=steps[i]
        b=AF+4*(i%8); o=CH(c)+s_*2048
        ar=12+t
        if o>=KVB: o-=KVB; ar=(25,26,27,29)[t]
        a(f"ds_read_b64_tr_b16 {v(b,2)}, v{ar} offset:{o}"); lg.issue(("A",i))
        a(f"ds_read_b64_tr_b16 {v(b+2,2)}, v{ar} offset:{o+512}"); lg.issue(("A",i))
    fill={i:[] for i in range(NS)}
    HSP=float(os.environ.get('P4_HSP','3'))
    for k,f in enumerate(hq[NPRE:]): fill[int(1+HSP*k)].append(f)
    for sl in range(4):
        def f(sl=sl):
            a(f"s_add_u32 s62, s58, {sl*2*S*8}")
            a(f"buffer_load_dwordx2 {v(STR+2*sl,2)}, v17, s[44:47], s62 offen"); vm.issue("st")
        fill[2+3*sl].append(f)
    for k in range(2*(6-S3_LAST)): fill[E('GU0',3)+E('GUS',6)*k].append(lambda k=k: gu_dma(a,S3_LAST+1+k//2,k%2,vm))
    def atouch():
        a("v_and_b32 v30, 31, v1")
        a("v_lshlrev_b32 v30, 7, v30")
        a(f"s_cmp_ge_u32 s{SI}, {0 if E('ATALL',1) else 21}")
        a("s_cselect_b32 s62, s59, 0x40000000")
        a("buffer_load_dword v31, v30, s[40:43], s62 offen"+os.environ.get("ATF"," sc1")); vm.issue("t")
    if TOUCH: fill[E('P4_AT',36)].append(atouch)
    if CS_KB: fill[5].append(lambda: csdma(a,vm))
    def stats_math():
        vm.wait("st")
        for sl in range(1,4):
            a(f"v_add_f32 v{STR}, v{STR}, v{STR+2*sl}")
            a(f"v_add_f32 v{STR+1}, v{STR+1}, v{STR+2*sl+1}")
        a(f"v_mov_b32 v18, v{STR}")
        a(f"v_mov_b32 v19, v{STR+1}")
        a("s_nop 1")
        a(f"v_permlane32_swap_b32 v18, v{STR}")
        a(f"v_permlane32_swap_b32 v19, v{STR+1}")
        a(f"v_add_f32 v18, v18, v{STR}")
        a(f"v_add_f32 v19, v19, v{STR+1}")
        a(f"v_mul_f32 v18, {f32bits(1.0/D)}, v18")
        a(f"v_mul_f32 v19, {f32bits(1.0/D)}, v19")
        a("v_fma_f32 v19, -v18, v18, v19")
        a("v_max_f32 v19, 0, v19")
        a(f"v_add_f32 v24, {f32bits(1e-5)}, v19")
        a("v_rsq_f32 v20, v24")
        a("v_sub_f32 v22, 0, v18")
        a(f"v_mul_f32 v20, {f32bits(-LOG2E)}, v20")
    fill[40].append(stats_math)
    def rdcs(t):
        CS=64+16*t
        for q,o in enumerate((64*t,64*t+16,256+64*t,256+64*t+16)):
            a(f"ds_read_b128 {v(CS+4*q,4)}, v28 offset:{MISC+o}"); lg.issue(("cs",t))
    for t in range(4): fill[70+2*t].append(lambda t=t: rdcs(t))
    for n in range(NEARLY): fill[E('WD0',75)+E('WD0S',1)*n].append(lambda n=n: wd_dma(a,n,vm))
    def epi_ops(t):
        CS=64+16*t; T0=CS; OB=CS+8
        A0=ACC+16*t
        ops=[]
        ops.append(lambda: a("s_nop 3"))
        for r in range(8): ops.append(lambda r=r: a(f"v_fmac_f32 v{A0+r}, v22, v{CS+r}"))
        for r in range(8): ops.append(lambda r=r: a(f"v_mul_f32 v{T0+r}, v20, v{A0+r}"))
        for r in range(8):
            ops.append(lambda r=r: a(f"v_exp_f32 v{T0+r}, v{T0+r}"))
            ops.append(lambda r=r: a(f"v_fmac_f32 v{A0+8+r}, v22, v{CS+8+r}"))
        for r in range(8): ops.append(lambda r=r: a(f"v_fma_f32 v{T0+r}, v{T0+r}, v24, v24"))
        for r in range(8):
            ops.append(lambda r=r: a(f"v_rcp_f32 v{T0+r}, v{T0+r}"))
            ops.append(lambda r=r: a(f"v_mul_f32 v{A0+r}, v{A0+r}, v{A0+8+r}"))
        for r in range(8): ops.append(lambda r=r: a(f"v_mul_f32 v{A0+r}, v{A0+r}, v{T0+r}"))
        for p in range(4): ops.append(lambda p=p: a(f"v_cvt_pk_bf16_f32 v{OB+p}, v{A0+2*p}, v{A0+2*p+1}"))
        def stv():
            hstore(a,[f"buffer_store_dwordx4 {v(OB,4)}, v{VL16}, s[40:43], s59 offen offset:{1024*t}"]); vm.issue("out")
        ops.append(stv)
        return ops
    tail_ops=[]
    for t in range(4):
        ops=epi_ops(t)
        base=80+8*t
        if t<3:
            nb=base+8
            per=-(-len(ops)//7)
            for k,f in enumerate(ops): fill[nb+1+k//per].append(f)
        else: tail_ops=ops
    fill[80].insert(0,lambda: a("s_barrier"))
    for n in range(NEARLY,15): fill[81+E('WDSP',1)*(n-NEARLY)].append(lambda n=n: wd_dma(a,n,vm))
    for i in range(PF): rd(i)
    landed=P3_LAST
    for i in range(NS):
        c,s_,t=steps[i]
        vm.wait(("h",c,s_))
        lg.wait(("A",i))
        cin="0" if (c==0 and s_==0) else v(ACC+16*t,16)
        a(f"v_mfma_f32_32x32x16_bf16 {v(ACC+16*t,16)}, {v(AF+4*(i%8),4)}, {v(BFR+16*c+4*s_,4)}, {cin}")
        for f in fill[i]: f()
        if i+PF<NS:
            nc=steps[i+PF][0]
            if nc>landed:
                tgt = nc if nc<5 else 6
                vm.wait(("W",tgt))
                if not E('NOBAR',0): a("s_barrier")
                landed=tgt
            rd(i+PF)
        if STAMP==1 and i in (0,15,31,47,63,79,95,111): lg.waitall(); st(a,f"p4_i{i}")
        if STAMP==2 and i in (79,111): lg.waitall(); st(a,f"p4_i{i}")
    a("s_nop 7")
    a("s_nop 1")
    for f in tail_ops: f()
    a("s_nop 1")
    PEND.append(lambda: signal(a,35,"s4"))
    if not HOIST: run_pending()

def gen_kb(name):
    KN[0]="kb"
    a=Asm(); prologue(a,name)
    if E('PRIO',0):
        a(f"s_cmp_lt_u32 s{SW}, 4")
        a(f"s_cbranch_scc1 {P('noprio')}")
        a("s_setprio 1")
        a.label(P('noprio'))
    kb_phase2(a)
    kb_phase35(a,3)
    kb_phase4(a)
    kb_phase35(a,5)
    dump(a)
    a.label(P('end'))
    a("s_endpgm")
    a.label(P('spare2'))
    if CS_KB:
        colsum_ids(a)
        a("s_cmp_ge_u32 s36, 28")
        a(f"s_cbranch_scc1 {P('cs_skip')}")
        colsum_body(a," sc1")
        a("s_waitcnt vmcnt(0)")
        a("s_barrier")
        a(f"s_cmp_lg_u32 s{SW}, 1")
        a(f"s_cbranch_scc1 {P('cs_skip')}")
        a("s_lshl_b32 s60, s36, 2")
        a(f"s_add_u32 s60, s60, {FC}")
        a("v_mov_b32 v2, 1")
        a("v_mov_b32 v3, 0")
        a("s_mov_b64 exec, 1")
        a(f"buffer_store_dword v2, v3, s[{SRD_FLAG}:{SRD_FLAG+3}], s60 offen sc1")
        a("s_mov_b64 exec, -1")
        a.label(P('cs_skip'))
    if SP_TOUCH:
        a("v_lshlrev_b32 v9, 7, v1")
        a(f"s_sub_u32 s36, s{SI}, 28")
        a("s_lshl_b32 s36, s36, 3")
        a(f"s_add_u32 s36, s36, s{SW}")
        a("s_bitcmp1_b32 s36, 0")
        a(f"s_cselect_b32 s{SRD_G}, s{SRD_U}, s{SRD_G}")
        a(f"s_cselect_b32 s{SRD_G+1}, s{SRD_U+1}, s{SRD_G+1}")
        a("s_lshr_b32 s37, s36, 1")
        a("s_lshl_b32 s37, s37, 13")
        q0=256*3584//8192
        def gut():
            for i in range(6):
                a(f"s_add_u32 s38, s37, {(q0+16*i)*8192}")
                a(f"buffer_load_dword v{30+i}, v9, s[{SRD_G}:{SRD_G+3}], s38 offen")
        def wdt():
            srd(a,SRD_WD,PWD,PWD+1,F*D*2)
            a("s_lshl_b32 s39, s36, 13")
            for i in range(7):
                a(f"s_add_u32 s38, s39, {i*32*8192}")
                a(f"buffer_load_dword v{40+i}, v9, s[{SRD_WD}:{SRD_WD+3}], s38 offen")
        if SP_TOUCH==1: gut(); wdt()
        elif SP_TOUCH==2: wdt(); gut()
        else: wdt()
    if E('WBL2',0):
        a(f"s_cmp_lg_u32 s{SI}, 28")
        a(f"s_cbranch_scc1 {P('nowb')}")
        a(f"s_cmp_lg_u32 s{SW}, 0")
        a(f"s_cbranch_scc1 {P('nowb')}")
        a(f"s_add_u32 s46, s74, {F4}")
        spin(a,VL4,"s46",0x0fffffff,0,"wwb",sleep=16)
        a("buffer_wbl2 sc1")
        a("s_waitcnt vmcnt(0)")
        a.label(P('nowb'))
    dump(a)
    a("s_endpgm")
    return a.text(), kdesc(name,256)

def build(path):
    hdr=open("sequential_preLN__sliding_block__swiglu_ffn__prompt.s.ref").read().split("; Override launch")[0]
    ta,da=gen_ka("ka_kernel"); tb,db=gen_kb("kb_kernel")
    L=[hdr.rstrip(), f"; @launch kernel=ka_kernel grid=({NWG},1,1) block=({THREADS},1,1) lds=155648",
       f"; @launch kernel=kb_kernel grid=({NWG},1,1) block=({THREADS},1,1) lds={LDS}",
       '.amdgcn_target "amdgcn-amd-amdhsa--gfx950"\n.text', ta, tb, '.section .rodata,"a"', da, db]
    open(path,"w").write("\n".join(L)+"\n")
    if STAMP: open(path+".names","w").write(" ".join(STN))
if __name__=="__main__":
    build(sys.argv[1])
```
